```python
import torch

def _softmax(x, axis=-1):
    return torch.softmax(x, dim=axis)
def _gelu(x):
    return torch.nn.functional.gelu(x, approximate="tanh")
def _silu(x):
    return torch.nn.functional.silu(x)
def _sigmoid(x):
    return torch.sigmoid(x)
def _layernorm(x, axis=-1, eps=1e-5):
    m = x.mean(dim=axis, keepdim=True)
    v = x.var(dim=axis, keepdim=True, unbiased=False)
    return (x - m) / torch.sqrt(v + eps)
def _scatter_add(tgt, idx, src, axis=0):
    return tgt.clone().index_add_(axis, idx, src)
def _segment_sum(src, seg, n):
    out = torch.zeros((n,) + src.shape[1:], dtype=src.dtype)
    return out.index_add_(0, seg, src)
def _pad(x, pw):
    flat = tuple(v for pair in reversed(pw) for v in pair)
    return torch.nn.functional.pad(x, flat)

kernel_name = 'gated_mix__ssm_conv_s5__ssm_conv_s4__prompt'

def setup_inputs():

    _w = (lambda a: (lambda t: t.to(torch.bfloat16) if t.is_floating_point() else t)(torch.as_tensor(a)))
    def _A_setup():
        B, S, D = 1, 2048, 512
        P = D
        Lambda_re = -0.5 * (lambda _x: torch.exp(torch.as_tensor(_x)))((lambda *s: torch.randn(*s, dtype=torch.bfloat16) * 0.2)(P))
        Lambda_im = (lambda *s: torch.randn(*s, dtype=torch.bfloat16) * 0.4)(P) * 1.0
        B_re = (lambda *s: torch.randn(*s, dtype=torch.bfloat16) * 0.2)(P, D) * (D ** -0.5)
        B_im = (lambda *s: torch.randn(*s, dtype=torch.bfloat16) * 0.2)(P, D) * (D ** -0.5)
        C_re = (lambda *s: torch.randn(*s, dtype=torch.bfloat16) * 0.2)(D, P) * (P ** -0.5)
        C_im = (lambda *s: torch.randn(*s, dtype=torch.bfloat16) * 0.2)(D, P) * (P ** -0.5)
        log_dt = (lambda *s: torch.randn(*s, dtype=torch.bfloat16) * 0.2)(P) * 0.3 - 2.0
        Dskip = (lambda *s: torch.randn(*s, dtype=torch.bfloat16) * 0.05)(D)
        return {
            "x": _w((lambda *s: torch.randn(*s, dtype=torch.bfloat16) * 0.05)(B, S, D)),
            "Lambda_re": _w(Lambda_re),
            "Lambda_im": _w(Lambda_im),
            "B_re": _w(B_re),
            "B_im": _w(B_im),
            "C_re": _w(C_re),
            "C_im": _w(C_im),
            "log_dt": _w(log_dt),
            "Dskip": _w(Dskip),
        }
    _A_in = _A_setup()

    def _B_setup():
        B, L, D, N = 1, 2048, 512, 128
        A_re = -(lambda _x: torch.exp(torch.as_tensor(_x)))((lambda *s: torch.randn(*s, dtype=torch.bfloat16) * 3.2)(D, N))
        A_im = torch.pi * (lambda *s: torch.randn(*s, dtype=torch.bfloat16) * 0.05)(D, N)
        B_re = (lambda *s: torch.randn(*s, dtype=torch.bfloat16) * 0.1)(D, N)
        B_im = (lambda *s: torch.randn(*s, dtype=torch.bfloat16) * 0.1)(D, N)
        C_re = (lambda *s: torch.randn(*s, dtype=torch.bfloat16) * 0.1)(D, N)
        C_im = (lambda *s: torch.randn(*s, dtype=torch.bfloat16) * 0.1)(D, N)
        log_dt = (lambda *s: torch.randn(*s, dtype=torch.bfloat16) * 0.05)(D) * 0.5 - 4.0
        Dskip = (lambda *s: torch.randn(*s, dtype=torch.bfloat16) * 0.05)(D)
        return {
            "u": _w((lambda *s: torch.randn(*s, dtype=torch.bfloat16) * 0.05)(B, L, D)),
            "A_re": _w(A_re),
            "A_im": _w(A_im),
            "B_re": _w(B_re),
            "B_im": _w(B_im),
            "C_re": _w(C_re),
            "C_im": _w(C_im),
            "log_dt": _w(log_dt),
            "Dskip": _w(Dskip),
        }
    _B_in = _B_setup()

    return {
        "A_x": _A_in["x"],
        "A_Lambda_re": _A_in["Lambda_re"],
        "A_Lambda_im": _A_in["Lambda_im"],
        "A_B_re": _A_in["B_re"],
        "A_B_im": _A_in["B_im"],
        "A_C_re": _A_in["C_re"],
        "A_C_im": _A_in["C_im"],
        "A_log_dt": _A_in["log_dt"],
        "A_Dskip": _A_in["Dskip"],
        "B_u": _B_in["u"],
        "B_A_re": _B_in["A_re"],
        "B_A_im": _B_in["A_im"],
        "B_B_re": _B_in["B_re"],
        "B_B_im": _B_in["B_im"],
        "B_C_re": _B_in["C_re"],
        "B_C_im": _B_in["C_im"],
        "B_log_dt": _B_in["log_dt"],
        "B_Dskip": _B_in["Dskip"],
        "gate_w": _w((lambda *s: torch.randn(*s, dtype=torch.bfloat16) * 0.05)(512) * 16.0),
    }

def reference(A_x, A_Lambda_re, A_Lambda_im, A_B_re, A_B_im, A_C_re, A_C_im, A_log_dt, A_Dskip, B_u, B_A_re, B_A_im, B_B_re, B_B_im, B_C_re, B_C_im, B_log_dt, B_Dskip, gate_w):
    def _A_ref(x, Lambda_re, Lambda_im, B_re, B_im, C_re, C_im, log_dt, Dskip):
        Bsz, L, H = x.shape
        Lam = Lambda_re + 1j * Lambda_im
        Bmat = B_re + 1j * B_im
        Cmat = C_re + 1j * C_im
        dt = torch.exp(log_dt)
        Lam_bar = torch.exp(dt * Lam)
        B_bar = ((Lam_bar - 1.0) / Lam)[:, None] * Bmat
        Bu = torch.einsum("bld,pd->blp", x + 0j, B_bar)
        h = torch.zeros_like(Bu[:, 0, :])
        hs = []
        for t in range(L):
            h = Lam_bar[None, :] * h + Bu[:, t, :]
            hs.append(h)
        hseq = torch.stack(hs, 1)
        y = 2.0 * torch.einsum("blp,dp->bld", hseq, Cmat).real + x * Dskip[None, None, :]
        return y

    def _B_ref(u, A_re, A_im, B_re, B_im, C_re, C_im, log_dt, Dskip):
        Bsz, L, D = u.shape
        dt = torch.exp(log_dt)[:, None]
        A = A_re + 1j * A_im
        Bc = B_re + 1j * B_im
        Cc = C_re + 1j * C_im
        logdA = dt * A
        dB = dt * Bc
        l = (lambda x, dt: x.to(dt))(torch.arange(L), A_re.dtype)
        P = torch.exp(logdA[:, :, None] * l[None, None, :])
        K = torch.einsum("dn,dnl,dn->dl", Cc, P, dB).real
        L2 = 2 * L
        Kp = _pad(K, ((0, 0), (0, L)))
        up = (lambda x, *d: x.permute(*d))(u, 0, 2, 1)
        up = _pad(up, ((0, 0), (0, 0), (0, L)))
        Kf = (lambda x, axes=(-2,-1): torch.fft.rfft2(x.float(), dim=axes))(Kp[:, None, :], axes=(-2, -1))
        Uf = (lambda x, axes=(-2,-1): torch.fft.rfft2(x.float(), dim=axes))(up[:, :, None, :], axes=(-2, -1))
        Yf = Uf * Kf[None, :, :, :]
        y = (lambda x, s, axes=(-2,-1): torch.fft.irfft2(x, s=s, dim=axes).to(torch.bfloat16))(Yf, (1, L2), axes=(-2, -1))[:, :, 0, :L]
        y = (lambda x, *d: x.permute(*d))(y, 0, 2, 1) + u * Dskip[None, None, :]
        return y

    x = A_x
    g = _sigmoid((x * gate_w).sum(-1, keepdims=True))
    a = _A_ref(x, A_Lambda_re, A_Lambda_im, A_B_re, A_B_im, A_C_re, A_C_im, A_log_dt, A_Dskip)
    b = _B_ref(x, B_A_re, B_A_im, B_B_re, B_B_im, B_C_re, B_C_im, B_log_dt, B_Dskip)
    return g * a + (1 - g) * b
```

```python
import re
TRANS = ("v_exp_f32", "v_log_f32", "v_rcp_f32", "v_rsq_f32", "v_sqrt_f32", "v_sin_f32", "v_cos_f32")
def regs(tok):
    tok = tok.strip().lstrip("-").strip("|")
    m = re.fullmatch(r"([vs])\[(\d+):(\d+)\]", tok)
    if m: return {(m[1], i) for i in range(int(m[2]), int(m[3]) + 1)}
    m = re.fullmatch(r"([vs])(\d+)", tok)
    if m: return {(m[1], int(m[2]))}
    if tok == "vcc": return {("s", 106), ("s", 107)}
    if tok == "exec": return {("s", 126), ("s", 127)}
    if tok == "m0": return {("s", 124)}
    return set()
class I:
    def __init__(s, line):
        s.line = line
        t = line.split(";")[0].strip()
        s.label = t.endswith(":")
        p = t.split(None, 1)
        s.op = p[0] if p else ""
        rest = p[1] if len(p) > 1 else ""
        ops = []
        for o in rest.split(","):
            o = o.strip()
            if not o: continue
            ops.append(o.split()[0])
        s.mods = rest
        op = s.op
        s.mfma = op.startswith("v_mfma")
        s.valu = op.startswith("v_") and not s.mfma
        s.trans = op.replace("_e32", "").replace("_e64", "") in TRANS
        s.ds = op.startswith("ds_")
        s.vmem = op.startswith("global_") or op.startswith("buffer_")
        s.salu = op.startswith("s_")
        s.dpp = "_dpp" in op or "row_" in rest or "quad_perm" in rest
        s.perm = op.startswith("v_permlane")
        s.rl = op.startswith("v_readlane") or op.startswith("v_readfirstlane")
        s.dot = op.startswith("v_dot")
        s.lds_dma = s.vmem and ("_lds_" in op or re.search(r"\blds\b", rest) is not None)
        R = [regs(o) for o in ops]
        s.w = set(); s.r = set(); s.srcC = set(); s.ab = set(); s.wide = set()
        U = lambda L: set().union(*L) if L else set()
        if s.label or not op: pass
        elif s.mfma:
            s.w = R[0]; s.ab = R[1] | R[2]; s.srcC = R[3]; s.r = s.ab | s.srcC
            s.big = "32x32" in op
        elif s.valu:
            s.w = R[0]; s.r = U(R[1:])
            if s.perm or op.startswith("v_swap"): s.w = R[0] | R[1]; s.r = R[0] | R[1]
            if op.startswith("v_fmac") or op.startswith("v_dot2c") or s.dpp: s.r |= R[0]
            if op.startswith("v_cndmask") and len(ops) == 3: s.r |= regs("vcc")
        elif s.ds:
            if op.startswith("ds_read") or op.startswith("ds_bpermute"): s.w = R[0]; s.r = U(R[1:])
            else: s.r = U(R)
        elif s.vmem:
            if "load" in op and not s.lds_dma: s.w = R[0]; s.r = U(R[1:])
            else:
                s.r = U(R)
                if "store" in op and ("x4" in op or "x3" in op):
                    s.wide = R[1] if op.startswith("global_") else R[0]
        elif s.salu:
            if op.startswith("s_cmp") or op.startswith("s_cbranch") or op in ("s_waitcnt", "s_nop", "s_barrier", "s_endpgm", "s_branch", "s_sleep", "s_setprio"):
                s.r = U(R)
            else:
                s.w = R[0] if R else set(); s.r = U(R[1:])
                if "saveexec" in op: s.w |= regs("exec")
        s.states = (int(ops[0]) + 1) if op == "s_nop" else (0 if s.label or not op else 1)
def V(S): return {x for x in S if x[0] == "v"}
def Sg(S): return {x for x in S if x[0] == "s"}
def need(p, c):
    n = 0
    if p.valu:
        if c.mfma and V(p.w) & c.r: n = max(n, 2)
        if p.trans and c.valu and not c.trans and V(p.w) & c.r: n = max(n, 1)
        if Sg(p.w) & c.r:
            if c.valu: n = max(n, 4 if c.op.startswith("v_readlane") or c.op.startswith("v_writelane") else 2)
            if c.vmem: n = max(n, 5)
        if V(p.w) & c.r:
            if c.rl: n = max(n, 1)
            if c.dpp or c.perm: n = max(n, 2)
        if p.dot and (V(p.w) & (c.r | c.w)) and not (c.op == p.op): n = max(n, 3)
        if "dst_sel:WORD" in p.mods and c.valu and V(p.w) & (c.r | c.w): n = max(n, 1)
    if p.mfma:
        a, b, w = (12, 10, 7) if p.big else (8, 6, 3)
        if c.mfma:
            if p.w & c.ab: n = max(n, a)
            if p.w & c.srcC and p.w != c.srcC: n = max(n, b)
            if p.w & c.w and p.w != c.srcC: n = max(n, b)
        elif (c.valu or c.ds or c.vmem) and p.w & (c.r | c.w): n = max(n, a)
        if c.valu and p.srcC & c.w: n = max(n, w)
    if p.vmem and p.wide and c.valu and p.wide & c.w: n = max(n, 2)
    if p.vmem and p.wide and (c.ds or c.vmem) and p.wide & c.w: n = max(n, 1)
    if p.salu and ("s", 124) in p.w and c.lds_dma: n = max(n, 1)
    return n
def fix(lines):
    out = []; added = 0
    for line in lines:
        c = I(line)
        if c.states and not c.op == "s_nop":
            dist = 0; req = 0
            for p in reversed(out[-24:]):
                r = need(p, c) - dist
                if r > req: req = r
                dist += p.states
                if dist >= 12 or p.op in ("s_endpgm", "s_branch"): break
            while req > 0:
                k = min(req, 8); out.append(I(f"    s_nop {k-1}")); req -= k; added += 1
        out.append(c)
    return [i.line for i in out], added
```

```python
NAME = "gated_mix__ssm_conv_s5__ssm_conv_s4__prompt"
REF = open("cdna_kernels/" + NAME + ".s.ref").read().split("\n")
HEADER = [l for l in REF if l.startswith(";") and "@launch" not in l]

class K:
    def __init__(self, label, grid, block, lds, vgpr=256, sgpr=102, agpr=0):
        self.label, self.grid, self.block, self.lds = label, grid, block, lds
        self.vgpr, self.sgpr, self.agpr = vgpr, sgpr, agpr
        self.L = []
        self.nlab = 0
    def __call__(self, s):
        for line in s.strip("\n").split("\n"):
            line = line.strip()
            if line: self.L.append("    " + line if not line.endswith(":") else line)
    def lab(self, p="L"):
        self.nlab += 1
        return f"{self.label}_{p}{self.nlab}"
    def nop(self, n):
        while n > 0:
            k = min(n, 8); self(f"s_nop {k-1}"); n -= k

def emit(kernels, path, single=False):
    o = list(HEADER)
    if single:
        k = kernels[0]
        o.append(f"; @launch grid=({k.grid},1,1) block=({k.block},1,1) lds={k.lds}")
    else:
        for k in kernels:
            o.append(f"; @launch kernel={k.label} grid=({k.grid},1,1) block=({k.block},1,1) lds={k.lds}")
    o += ['.amdgcn_target "amdgcn-amd-amdhsa--gfx950"', ".text"]
    seen = []
    for k in kernels:
        if k in seen: continue
        seen.append(k)
        o += [f".globl {k.label}", ".p2align 8", f".type {k.label},@function", f"{k.label}:"] + k.L + ["s_endpgm"]
    o += ['.section .rodata,"a"']
    for k in seen:
        acc = (k.vgpr + 3) // 4 * 4
        o += [".p2align 6", f".amdhsa_kernel {k.label}",
              f"  .amdhsa_next_free_vgpr {acc + k.agpr if k.agpr else k.vgpr}", f"  .amdhsa_next_free_sgpr {k.sgpr}",
              f"  .amdhsa_accum_offset {acc}", "  .amdhsa_group_segment_fixed_size 0", "  .amdhsa_kernarg_size 176",
              "  .amdhsa_user_sgpr_count 2", "  .amdhsa_user_sgpr_kernarg_segment_ptr 1",
              "  .amdhsa_system_sgpr_workgroup_id_x 1", ".end_amdhsa_kernel"]
    open(path, "w").write("\n".join(o) + "\n")
```

```python
import sys, math
from lib import *
import haz
FUSED  = "--fused" in sys.argv
STAMPS = "--stamps" in sys.argv
OUT = [a for a in sys.argv[1:] if a.endswith(".s")][0]

XT_OFF, H_OFF, Y_OFF, E_OFF = 0, 0x200000, 0x600000, 0x800000
F1_OFF, F2_OFF, F3_OFF, ST_OFF = 0x820000, 0x821000, 0x825000, 0x830000
LB, LX, LS = 0, 65536, 131072
LKC, LP, CHS = LS, LS + 2752, 11008
LPR = LS + 22016
LXT, XTS = LS + 22048, 4608
LDS_TOTAL = LS + 31264
LOG2E = 1.4426950408889634
INV2PI = 0.15915494309189535
import struct
def fl(x): return "0x%08x" % struct.unpack("<I", struct.pack("<f", x))[0]
SPIN = 1 << 20

X_, LRE, LIM, BRE, BIM, CRE, CIM, ALDT = [f"s[{16+2*i}:{17+2*i}]" for i in range(8)]
ADS, _BU, SARE, SAIM, SBRE, SBIM, SCRE, SCIM = [f"s[{32+2*i}:{33+2*i}]" for i in range(8)]
BLDT, BDS, GW, OUTP, DBG, WS = [f"s[{48+2*i}:{49+2*i}]" for i in range(6)]
sW, sXCD, sI, sC, sJ, sR, sDT = "s3", "s4", "s5", "s6", "s7", "s8", "s9"
sTAG = "s10"

class RA:
    def __init__(s, start=2, end=256): s.n = start; s.end = end; s.hi = start
    def __call__(s, n=1, al=1):
        s.n = (s.n + al - 1) // al * al
        r = s.n; s.n += n; s.hi = max(s.hi, s.n); assert s.n <= s.end, "out of vgprs"
        return r
def vr(a, n): return f"v[{a}:{a+n-1}]" if n > 1 else f"v{a}"

class VM:
    def __init__(s, k): s.k = k; s.q = []
    def op(s, line, tag=None): s.k(line); s.q.append(tag)
    def wait(s, tag):
        idx = max(i for i, t in enumerate(s.q) if t == tag)
        n = len(s.q) - 1 - idx
        assert n <= 63
        s.k(f"s_waitcnt vmcnt({n})")
    def all(s): s.k("s_waitcnt vmcnt(0)")

def stamp(k, i):
    if STAMPS:
        k(f"s_memrealtime s[96:97]\ns_waitcnt lgkmcnt(0)\ns_mov_b32 s{80+i}, s96")
def stamps_out(k, kern):
    if not STAMPS: return
    L = k.lab("NST")
    k(f"""s_and_b32 s11, {sW}, 3
    s_cmp_lg_u32 s11, 0
    s_cbranch_scc1 {L}
    s_lshr_b32 s11, {sW}, 2
    s_add_u32 s11, s11, {kern*2}
    s_lshl_b32 s11, s11, 8
    s_add_u32 s11, s11, s2
    s_lshl_b32 s11, s11, 6
    s_add_u32 s11, s11, {ST_OFF}
    v_mov_b32 v2, s11
    s_mov_b64 exec, 1""")
    for i in range(16):
        k(f"v_mov_b32 v3, s{80+i}\nglobal_store_dword v2, v3, {WS} offset:{4*i}")
    k(f"{L}:")

def srd(k, s, ptr, size):
    a = int(ptr[2:ptr.index(":")])
    k(f"s_mov_b32 s{s}, s{a}\ns_and_b32 s{s+1}, s{a+1}, 0xffff\ns_mov_b32 s{s+2}, {size}\ns_mov_b32 s{s+3}, 0x20000")

def prologue(k, first=True):
    k(f"""s_cmp_ge_u32 s2, 256
    s_cbranch_scc1 {k.label}_END
    s_load_dwordx16 s[16:31], s[0:1], 0
    s_load_dwordx16 s[32:47], s[0:1], 64
    s_load_dwordx8 s[48:55], s[0:1], 128
    s_load_dwordx4 s[56:59], s[0:1], 160
    s_memrealtime s[98:99]
    s_getpc_b64 s[12:13]
    {k.label}_PC:
    v_lshrrev_b32 v2, 6, v0
    v_and_b32 v1, 63, v0
    v_readfirstlane_b32 {sW}, v2
    s_and_b32 {sXCD}, s2, 7
    s_lshr_b32 {sI}, s2, 3
    """)
    L = k.lab("NPF")
    k(f"""s_cmp_lg_u32 {sW}, {k.block//64-1}
    s_cbranch_scc1 {L}
    s_and_b32 s11, {sI}, 3
    s_lshl_b32 s11, s11, 13
    v_lshlrev_b32 v2, 7, v1
    v_add_u32 v2, s11, v2
    v_min_u32 v2, {k.label}_END-{k.label}_PC, v2
    global_load_dword v3, v2, s[12:13]
    {L}:
    s_and_b32 s11, {sXCD}, 3
    s_and_b32 s14, {sI}, 3
    s_lshl_b32 {sC}, s11, 2
    s_add_u32 {sC}, {sC}, s14
    s_lshr_b32 s15, {sXCD}, 2
    s_lshr_b32 {sDT}, {sI}, 2
    s_lshl_b32 {sJ}, s15, 3
    s_add_u32 {sJ}, {sJ}, {sDT}
    s_lshl_b32 {sR}, s11, 3
    s_lshl_b32 s15, s15, 2
    s_add_u32 {sR}, {sR}, s15
    s_add_u32 {sR}, {sR}, s14
    """)
    if STAMPS:
        for i in range(16): k(f"s_mov_b32 s{80+i}, 0")

def lds_zero_and_nonce(k):
    L = k.lab("NN")
    k(f"""s_lshl_b32 s11, {sW}, 10
    s_add_u32 s14, s11, {LS}
    s_add_u32 s15, s11, {LS + CHS - 3072}
    s_cmp_lt_u32 {sW}, 3
    s_cselect_b32 s14, s14, s15
    s_cmp_eq_u32 {sW}, 6
    s_cselect_b32 s14, {LPR}, s14
    s_cmp_eq_u32 {sW}, 7
    s_cselect_b32 s14, {LXT + XTS}, s14
    v_lshl_add_u32 v2, v1, 4, s14
    v_mov_b32 v4, 0
    v_mov_b32 v5, 0
    v_mov_b32 v6, 0
    v_mov_b32 v7, 0
    ds_write_b128 v2, v[4:7]
    s_waitcnt lgkmcnt(0)
    s_or_b32 s11, s2, {sW}
    s_cmp_lg_u32 s11, 0
    s_cbranch_scc1 {L}
    s_or_b32 s11, s98, 1
    v_mov_b32 v5, s11
    s_mov_b64 exec, 1
    global_store_dword v4, v5, {DBG} sc1
    s_mov_b64 exec, -1
    {L}:
    s_barrier""")
    if STAMPS: k("s_mov_b32 s80, s98")

def get_tag(k, vm, vt, vz):
    L, D = k.lab("TG"), k.lab("TD")
    vm.wait("tag")
    k(f"""v_readfirstlane_b32 {sTAG}, v{vt}
    s_cmp_lg_u32 {sTAG}, 0
    s_cbranch_scc1 {D}
    s_mov_b32 s11, {SPIN}
    {L}:
    global_load_dword v{vt}, v{vz}, {DBG} sc1
    s_waitcnt vmcnt(0)
    v_readfirstlane_b32 {sTAG}, v{vt}
    s_sub_u32 s11, s11, 1
    s_cmp_eq_u32 s11, 0
    s_cbranch_scc1 {D}
    s_cmp_eq_u32 {sTAG}, 0
    s_cbranch_scc1 {L}
    {D}:""")

def prog_set(k, vaddr, vtmp, val):
    k(f"v_mov_b32 v{vtmp}, {val}\nds_write_b32 v{vaddr}, v{vtmp}")
def prog_wait4(k, vz, vt4, off, val):
    L, D = k.lab("PW"), k.lab("PD")
    k(f"""s_mov_b32 s11, {SPIN}
    {L}:
    ds_read_b128 {vr(vt4,4)}, v{vz} offset:{off}
    s_waitcnt lgkmcnt(0)
    v_min3_u32 v{vt4}, v{vt4}, v{vt4+1}, v{vt4+2}
    v_min_u32 v{vt4}, v{vt4}, v{vt4+3}
    s_sub_u32 s11, s11, 1
    v_readfirstlane_b32 s14, v{vt4}
    s_cmp_eq_u32 s11, 0
    s_cbranch_scc1 {D}
    s_cmp_lt_u32 s14, {val}
    s_cbranch_scc1 {L}
    {D}:""")
def prog_wait1(k, vaddr, vt, val):
    L, D = k.lab("PW"), k.lab("PD")
    k(f"""s_mov_b32 s11, {SPIN}
    {L}:
    ds_read_b32 v{vt}, v{vaddr}
    s_waitcnt lgkmcnt(0)
    s_sub_u32 s11, s11, 1
    v_readfirstlane_b32 s14, v{vt}
    s_cmp_eq_u32 s11, 0
    s_cbranch_scc1 {D}
    s_cmp_lt_u32 s14, {val}
    s_cbranch_scc1 {L}
    {D}:""")

def cexp(k, va, vth, n, dre, dim, t0, t1):
    k(f"""v_mul_f32 v{t0}, {n}, v{va}
    v_mul_f32 v{t1}, {n}, v{vth}
    v_exp_f32 v{t0}, v{t0}
    v_fract_f32 v{t1}, v{t1}
    v_cos_f32 v{dre}, v{t1}
    v_sin_f32 v{dim}, v{t1}
    v_mul_f32 v{dre}, v{dre}, v{t0}
    v_mul_f32 v{dim}, v{dim}, v{t0}""")
def cmul(k, dr, di, ar, ai, br, bi):
    k(f"""v_mul_f32 v{dr}, v{ar}, v{br}
    v_mul_f32 v{di}, v{ar}, v{bi}
    v_fma_f32 v{dr}, -v{ai}, v{bi}, v{dr}
    v_fmac_f32 v{di}, v{ai}, v{br}""")
def cfma(k, dr, di, ar, ai, br, bi):
    k(f"""v_fmac_f32 v{dr}, v{ar}, v{br}
    v_fmac_f32 v{di}, v{ar}, v{bi}
    v_fma_f32 v{dr}, -v{ai}, v{bi}, v{dr}
    v_fmac_f32 v{di}, v{ai}, v{br}""")

def dma_patterns(k, VP, t):
    k(f"""v_lshrrev_b32 v{t}, 4, v1
    v_and_b32 v{VP}, 15, v1
    v_xor_b32 v{VP}, v{VP}, v{t}
    v_lshlrev_b32 v{VP}, 4, v{VP}
    v_lshl_add_u32 v{VP}, v{t}, 10, v{VP}""")
    for q in range(1, 4): k(f"v_xor_b32 v{VP+q}, {64*q}, v{VP}")

def c_dma(k, vm, VP, half, wsg):
    for sl in (2*half, 2*half+1):
        for comp in range(2):
            for q in range(4):
                k(f"s_add_u32 m0, s77, {sl*32768 + comp*16384 + q*1024}")
                k(f"s_add_u32 s15, s76, {q*4096 + sl*256}")
                vm.op(f"buffer_load_dwordx4 v{VP+q}, s[{68+4*comp}:{71+4*comp}], s15 offen lds", f"C{half}")
def c_setup(k, wsg):
    srd(k, 68, CRE, 524288); srd(k, 72, CIM, 524288)
    k(f"""s_lshl_b32 s76, {sDT}, 16
    s_lshl_b32 s77, {wsg}, 14
    s_add_u32 s76, s76, s77
    s_lshl_b32 s77, {wsg}, 12""")

def s5(k):
    ra = RA(); vm = VM(k)
    VP = ra(4); VA = ra(8); VX = ra(8)
    T = ra(8, 4); vPR = ra(); vPW = ra(); vZ = ra(); vTG = ra()
    pLre, pLim, pDt = ra(), ra(), ra()
    va, vth, lr, li, l16r, l16i = [ra() for _ in range(6)]
    GX = ra(8, 4); GWv = ra(8, 4)
    ACR = ra(16, 4); ACI = ra(16, 4)
    FR = ra(36, 4)
    EX = ra(16, 4)
    EG = ra(32, 4)
    RT = ra(32, 4)
    Wt = ra(16)
    Sr, Si, c2r, c2i, lsr, lsi, Hr, Hi, vS, vG = [ra() for _ in range(10)]
    srd(k, 60, X_, 2097152)
    k(f"""s_and_b32 s11, {sW}, 1
    s_cmp_eq_u32 s11, 0
    s_cselect_b32 s64, s22, s24
    s_cselect_b32 s65, s23, s25
    s_and_b32 s65, s65, 0xffff
    s_mov_b32 s66, 524288
    s_mov_b32 s67, 0x20000""")
    dma_patterns(k, VP, T)
    k(f"""v_and_b32 v{T}, 31, v1
    s_lshl_b32 s14, {sJ}, 6
    v_lshl_add_u32 v{T+1}, v{T}, 1, s14
    v_lshrrev_b32 v{T+2}, 5, v1
    s_lshl_b32 s14, {sC}, 7
    s_lshl_b32 s15, {sW}, 5
    s_add_u32 s14, s14, s15
    s_lshl_b32 s36, s14, 10
    s_lshl_b32 s15, {sJ}, 11
    s_add_u32 s15, s15, s36
    v_lshlrev_b32 v{T+3}, 5, v{T}
    v_lshl_add_u32 v{T+4}, v{T+2}, 10, v{T+3}
    v_add_u32 v{T+4}, s15, v{T+4}
    v_mov_b32 v{vZ}, 0""")
    vm.op(f"global_load_ushort v{pDt}, v{T+1}, {ALDT}", "par")
    vm.op(f"global_load_ushort v{pLre}, v{T+1}, {LRE}", "par")
    vm.op(f"global_load_ushort v{pLim}, v{T+1}, {LIM}", "par")
    k(f"""s_add_u32 s11, {sC}, {sJ}
    s_and_b32 s11, s11, 3
    s_lshl_b32 s37, s11, 8
    s_add_u32 s38, s37, 256
    s_and_b32 s38, s38, 1023
    s_add_u32 s39, s37, 512
    s_and_b32 s39, s39, 1023
    s_add_u32 s40, s37, 768
    s_and_b32 s40, s40, 1023
    s_lshr_b32 s11, {sW}, 1
    s_lshl_b32 s41, {sJ}, 15
    s_lshl_b32 s14, s11, 14
    s_add_u32 s41, s41, s14
    s_lshl_b32 s42, s11, 12
    s_and_b32 s11, {sW}, 1
    s_lshl_b32 s11, s11, 13
    s_add_u32 s42, s42, s11
    s_lshl_b32 s43, {sW}, 14
    s_add_u32 s43, s43, {LX}""")
    def dB(slot):
        k(f"s_add_u32 s14, s41, s{37+slot}")
        for q in range(4):
            k(f"s_add_u32 m0, s42, {LB + slot*16384 + q*1024}")
            k(f"s_add_u32 s15, s14, {q*4096}")
            vm.op(f"buffer_load_dwordx4 v{VP+q}, s[64:67], s15 offen lds", f"B{slot}")
    def dX(slot):
        k(f"s_add_u32 s14, s36, s{37+slot}")
        for n in range(8):
            k(f"s_add_u32 m0, s43, {(slot&1)*8192 + n*1024}")
            k(f"s_add_u32 s15, s14, {(16*(n&1) + 4*(n>>1))*1024}")
            vm.op(f"buffer_load_dwordx4 v{VP+(n&3)}, s[60:63], s15 offen lds", f"X{slot}")
    dB(0); dX(0)
    vm.op(f"global_load_dwordx4 {vr(GX,4)}, v{T+4}, {X_}", "gate")
    vm.op(f"global_load_dwordx4 {vr(GX+4,4)}, v{T+4}, {X_} offset:16", "gate")
    vm.op(f"global_load_dwordx4 {vr(GWv,4)}, v{T+3}, {GW}", "gate")
    vm.op(f"global_load_dwordx4 {vr(GWv+4,4)}, v{T+3}, {GW} offset:16", "gate")
    k(f"""v_and_b32 v{T+5}, 15, v1
    v_xor_b32 v{T+5}, v{T+5}, v{T+2}
    v_lshlrev_b32 v{T+5}, 4, v{T+5}
    v_lshl_add_u32 v{VA}, v{T}, 8, v{T+5}""")
    for ks in range(1, 8): k(f"v_xor_b32 v{VA+ks}, {32*ks}, v{VA}")
    for ks in range(8): k(f"v_add_u32 v{VX+ks}, s43, v{VA+ks}")
    k(f"""v_mov_b32 v{vPR}, {LPR}
    s_lshl_b32 s11, {sW}, 2
    v_add_u32 v{vPW}, s11, v{vPR}
    s_lshl_b32 s11, {sW}, 1
    v_add_u32 v{vS}, s11, v{T+2}""")
    dB(1); dX(1)
    vm.wait("par")
    k(f"""v_lshlrev_b32 v{pDt}, 16, v{pDt}
    v_lshlrev_b32 v{pLre}, 16, v{pLre}
    v_mul_f32 v{pDt}, {fl(LOG2E)}, v{pDt}
    v_lshlrev_b32 v{pLim}, 16, v{pLim}
    v_exp_f32 v{pDt}, v{pDt}
    v_cvt_pk_bf16_f32 v{pDt}, v{pDt}, v{pDt}
    v_lshlrev_b32 v{pDt}, 16, v{pDt}
    v_mul_f32 v{va}, v{pDt}, v{pLre}
    v_mul_f32 v{vth}, v{pDt}, v{pLim}
    v_mul_f32 v{va}, {fl(LOG2E)}, v{va}
    v_mul_f32 v{vth}, {fl(INV2PI)}, v{vth}""")
    dB(2)
    cexp(k, va, vth, "1.0", lr, li, T, T+1)
    dB(3)
    cexp(k, va, vth, fl(16.0), l16r, l16i, T, T+1)
    vm.op(f"global_load_dword v{vTG}, v{vZ}, {DBG} sc1", "tag")
    stamp(k, 1)
    def rd(slot, ks):
        f = FR + 12 * (ks % 3)
        k(f"ds_read_b128 {vr(f,4)}, v{VX+ks} offset:{(slot&1)*8192}")
        k(f"ds_read_b128 {vr(f+4,4)}, v{VA+ks} offset:{LB + slot*16384}")
        k(f"ds_read_b128 {vr(f+8,4)}, v{VA+ks} offset:{LB + slot*16384 + 8192}")
    for slot in range(4):
        vm.wait(f"X{slot}")
        if slot < 3:
            prog_set(k, vPW, T, slot + 1)
            prog_wait4(k, vPR, T, 0, slot + 1)
        stamp(k, 2 + slot)
        rd(slot, 0); rd(slot, 1)
        for ks in range(8):
            if ks + 2 < 8:
                rd(slot, ks + 2); k("s_waitcnt lgkmcnt(6)")
            elif ks + 1 < 8: k("s_waitcnt lgkmcnt(3)")
            else:
                k("s_waitcnt lgkmcnt(0)")
            f = FR + 12 * (ks % 3)
            z = slot == 0 and ks == 0
            k(f"v_mfma_f32_32x32x16_bf16 {vr(ACR,16)}, {vr(f,4)}, {vr(f+4,4)}, {'0' if z else vr(ACR,16)}")
            k(f"v_mfma_f32_32x32x16_bf16 {vr(ACI,16)}, {vr(f,4)}, {vr(f+8,4)}, {'0' if z else vr(ACI,16)}")
            if ks == 7 and slot < 2: dX(slot + 2)
    stamp(k, 6)
    for t in range(1, 16):
        cfma(k, ACR + t, ACI + t, lr, li, ACR + t - 1, ACI + t - 1)
    k(f"""v_mov_b32 v{T}, v{ACR+15}
    v_mov_b32 v{T+1}, v{ACI+15}
    v_lshlrev_b32 v{T+2}, 3, v1
    v_add_u32 v{T+3}, s43, v{T+2}
    ds_write_b64 v{T+3}, {vr(T,2)} offset:4096""")
    prog_set(k, vPW, T + 4, 4)
    k(f"""v_and_b32 v{T+5}, 0xf8, v{T+2}
    v_add_u32 v{T+5}, {LX + 4096}, v{T+5}""")
    get_tag(k, vm, vTG, vZ)
    prog_wait4(k, vPR, T, 0, 4)
    for s in range(8):
        k(f"ds_read_b64 {vr(EX+2*s,2)}, v{T+5} offset:{(s>>1)*16384 + (s&1)*256}")
    if FUSED:
        c_setup(k, sW)
    k(f"v_mov_b32 v{Sr}, 0\nv_mov_b32 v{Si}, 0")
    for s in range(1, 8):
        k(f"s_waitcnt lgkmcnt({7-s})")
        k(f"v_cmp_eq_u32 vcc, {s}, v{vS}")
        cfma(k, EX + 2*s, EX + 2*s + 1, l16r, l16i, EX + 2*s - 2, EX + 2*s - 1)
        k(f"v_cndmask_b32 v{Sr}, v{Sr}, v{EX+2*s-2}, vcc\nv_cndmask_b32 v{Si}, v{Si}, v{EX+2*s-1}, vcc")
    L = k.lab("NE")
    k(f"""v_mov_b32 v{T}, v{EX+14}
    v_mov_b32 v{T+1}, v{EX+15}
    v_mov_b32 v{T+2}, {sTAG}
    v_mov_b32 v{T+3}, {sTAG}
    s_lshl_b32 s14, {sJ}, 13
    s_add_u32 s14, s14, {E_OFF}
    v_lshl_add_u32 v{T+5}, v1, 4, s14
    s_lshl_b32 s15, {sC}, 9
    v_add_u32 v{T+4}, s15, v{T+5}
    s_cmp_lg_u32 {sW}, 0
    s_cbranch_scc1 {L}
    s_mov_b64 exec, 0xffffffff
    global_store_dwordx4 v{T+4}, {vr(T,4)}, {WS} sc1
    s_mov_b64 exec, -1
    {L}:""")
    prog_set(k, vPW, T + 6, 5)
    vGA = ra(); vGB = ra()
    k(f"v_mov_b32 v{vGA}, v{T+5}\nv_add_u32 v{vGB}, 4096, v{T+5}")
    stamp(k, 7)
    if FUSED: c_dma(k, vm, VP, 0, sW)
    k(f"""v_mul_f32 v{T}, v{pLre}, v{pLre}
    v_fmac_f32 v{T}, v{pLim}, v{pLim}
    v_rcp_f32 v{T}, v{T}
    v_add_f32 v{T+1}, -1.0, v{lr}
    v_mul_f32 v{c2r}, v{T+1}, v{pLre}
    v_fmac_f32 v{c2r}, v{li}, v{pLim}
    v_mul_f32 v{c2i}, v{li}, v{pLre}
    v_fma_f32 v{c2i}, -v{T+1}, v{pLim}, v{c2i}
    v_add_f32 v{T}, v{T}, v{T}
    v_mul_f32 v{c2r}, v{c2r}, v{T}
    v_mul_f32 v{c2i}, v{c2i}, v{T}""")
    cmul(k, RT, RT + 1, c2r, c2i, lr, li)
    for t in range(1, 16): cmul(k, RT + 2*t, RT + 2*t + 1, RT + 2*t - 2, RT + 2*t - 1, lr, li)
    for t in range(16):
        k(f"""v_mul_f32 v{T}, v{c2i}, v{ACI+t}
        v_mul_f32 v{ACI+t}, v{c2r}, v{ACI+t}
        v_fmac_f32 v{ACI+t}, v{c2i}, v{ACR+t}
        v_fma_f32 v{ACR+t}, v{c2r}, v{ACR+t}, -v{T}""")
    k(f"v_cvt_f32_u32 v{T+2}, v{vS}\nv_mul_f32 v{T+2}, {fl(16.0)}, v{T+2}")
    cexp(k, va, vth, f"v{T+2}", lsr, lsi, T, T + 1)
    k(f"""v_lshrrev_b32 v{T+3}, 5, v1
    s_sub_u32 s14, {sC}, 1
    v_sub_u32 v{T+3}, s14, v{T+3}""")
    for i in range(8):
        k(f"""v_subrev_u32 v{T+4}, {2*i}, v{T+3}
        v_cmp_le_i32 s[{36+2*i}:{37+2*i}], 0, v{T+4}
        v_max_i32 v{T+4}, 0, v{T+4}
        v_cvt_f32_i32 v{T+2}, v{T+4}
        v_mul_f32 v{T+2}, {fl(128.0)}, v{T+2}""")
        cexp(k, va, vth, f"v{T+2}", Wt + 2*i, Wt + 2*i + 1, T, T + 1)
    vm.wait("gate")
    k(f"v_mov_b32 v{vG}, 0\ns_mov_b32 s14, 0x3f803f80")
    for i in range(8):
        k(f"""v_lshlrev_b32 v{T}, 16, v{GX+i}
        v_and_b32 v{T+1}, 0xffff0000, v{GX+i}
        v_lshlrev_b32 v{T+2}, 16, v{GWv+i}
        v_and_b32 v{T+3}, 0xffff0000, v{GWv+i}
        v_mul_f32 v{T}, v{T}, v{T+2}
        v_mul_f32 v{T+1}, v{T+1}, v{T+3}
        v_cvt_pk_bf16_f32 v{T}, v{T}, v{T+1}
        v_lshlrev_b32 v{T+1}, 16, v{T}
        v_and_b32 v{T}, 0xffff0000, v{T}
        v_add_f32 v{vG}, v{vG}, v{T+1}
        v_add_f32 v{vG}, v{vG}, v{T}""")
    for sh in (1, 2, 4, 8):
        k(f"v_add_f32_dpp v{vG}, v{vG}, v{vG} row_ror:{sh} row_mask:0xf bank_mask:0xf")
    k(f"""v_mov_b32 v{T}, v{vG}
    v_permlane16_swap_b32 v{T}, v{vG}
    v_add_f32 v{vG}, v{vG}, v{T}
    v_cvt_pk_bf16_f32 v{vG}, v{vG}, v{vG}
    v_lshlrev_b32 v{vG}, 16, v{vG}
    v_mul_f32 v{vG}, {fl(-LOG2E)}, v{vG}
    v_exp_f32 v{vG}, v{vG}
    v_add_f32 v{vG}, 1.0, v{vG}
    v_rcp_f32 v{vG}, v{vG}
    v_cvt_pk_bf16_f32 v{vG}, v{vG}, v{vG}
    v_lshlrev_b32 v{vG}, 16, v{vG}""")
    stamp(k, 8)
    L, D = k.lab("GE"), k.lab("GD")
    k(f"""v_mov_b32 v{Hr}, 0
    v_mov_b32 v{Hi}, 0
    s_cmp_eq_u32 {sC}, 0
    s_cbranch_scc1 {D}
    s_mov_b32 s11, {SPIN}
    {L}:""")
    for i in range(8):
        k(f"global_load_dwordx4 {vr(EG+4*i,4)}, v{vGA if i < 4 else vGB}, {WS} offset:{(i&3)*1024} sc1")
    k("s_waitcnt vmcnt(0)\ns_mov_b64 s[12:13], 0")
    for i in range(8):
        k(f"""v_cmp_ne_u32 vcc, {sTAG}, v{EG+4*i+2}
        s_and_b64 vcc, vcc, s[{36+2*i}:{37+2*i}]
        s_or_b64 s[12:13], s[12:13], vcc""")
    L2 = k.lab("GX")
    k(f"""s_sub_u32 s11, s11, 1
    s_cmp_eq_u32 s11, 0
    s_cbranch_scc1 {L2}
    s_cmp_lg_u64 s[12:13], 0
    s_cbranch_scc1 {L}
    {L2}:""")
    for i in range(8):
        k(f"s_mov_b64 exec, s[{36+2*i}:{37+2*i}]")
        cfma(k, Hr, Hi, Wt + 2*i, Wt + 2*i + 1, EG + 4*i, EG + 4*i + 1)
    k(f"""s_mov_b64 exec, -1
    v_mov_b32 v{T}, v{Hr}
    v_mov_b32 v{T+1}, v{Hi}
    v_permlane32_swap_b32 v{T}, v{Hr}
    v_permlane32_swap_b32 v{T+1}, v{Hi}
    v_add_f32 v{Hr}, v{Hr}, v{T}
    v_add_f32 v{Hi}, v{Hi}, v{T+1}
    {D}:""")
    stamp(k, 9)
    cfma(k, Sr, Si, lsr, lsi, Hr, Hi)
    for t in range(16): cfma(k, ACR + t, ACI + t, RT + 2*t, RT + 2*t + 1, Sr, Si)
    HB = EG
    for t in range(8):
        k(f"v_cvt_pk_bf16_f32 v{HB+t}, v{ACR+2*t}, v{ACR+2*t+1}")
        k(f"v_cvt_pk_bf16_f32 v{HB+8+t}, -v{ACI+2*t}, -v{ACI+2*t+1}")
    k(f"""s_lshl_b32 s43, {sW}, 14
    s_add_u32 s43, s43, {LX}
    v_lshl_add_u32 v{T}, v1, 5, s43
    ds_write_b128 v{T}, {vr(HB,4)}
    ds_write_b128 v{T}, {vr(HB+4,4)} offset:16
    ds_write_b128 v{T}, {vr(HB+8,4)} offset:2048
    ds_write_b128 v{T}, {vr(HB+12,4)} offset:2064
    v_lshrrev_b32 v{T+1}, 4, v1
    v_and_b32 v{T+2}, 15, v1
    v_lshlrev_b32 v{T+2}, 3, v{T+2}
    v_lshl_add_u32 v{T+1}, v{T+1}, 8, v{T+2}
    v_add_u32 v{T+1}, s43, v{T+1}
    s_lshl_b32 s14, {sC}, 3
    s_lshl_b32 s15, {sW}, 1
    s_add_u32 s14, s14, s15
    s_lshl_b32 s14, s14, 15
    s_lshl_b32 s15, {sJ}, 11
    s_add_u32 s14, s14, s15
    s_add_u32 s14, s14, {H_OFF}
    v_lshl_add_u32 v{T+2}, v1, 4, s14
    v_add_u32 v{T+3}, 32768, v{T+2}
    s_waitcnt lgkmcnt(0)""")
    HF = EG + 16
    for hh in range(2):
        for comp in range(2):
            f = HF + 4 * (2*hh + comp)
            k(f"ds_read_b64_tr_b16 {vr(f,2)}, v{T+1} offset:{comp*2048 + hh*1024}")
            k(f"ds_read_b64_tr_b16 {vr(f+2,2)}, v{T+1} offset:{comp*2048 + hh*1024 + 128}")
    for hh in range(2):
        for comp in range(2):
            f = HF + 4 * (2*hh + comp)
            k(f"s_waitcnt lgkmcnt({6 - 2*(2*hh+comp)})")
            k(f"global_store_dwordx4 v{T+2+hh}, {vr(f,4)}, {WS} offset:{comp*1024} sc1")
    k(f"""v_mov_b32 v{T+5}, v{vG}
    v_mov_b32 v{T+4}, v{vG}
    v_mov_b32 v{T+6}, {sTAG}
    v_permlane32_swap_b32 v{T+4}, v{T+5}
    v_mov_b32 v{T+7}, {sTAG}
    s_lshl_b32 s14, {sC}, 2
    s_add_u32 s14, s14, {sW}
    s_lshl_b32 s14, s14, 4
    s_add_u32 s14, s14, {sJ}
    s_lshl_b32 s14, s14, 4
    s_add_u32 s14, s14, {F2_OFF}
    v_mov_b32 v{T}, s14
    s_waitcnt vmcnt(0)
    s_mov_b64 exec, 1
    global_store_dwordx4 v{T}, {vr(T+4,4)}, {WS} sc1
    s_mov_b64 exec, -1""")
    stamp(k, 10)
    if FUSED:
        vm.q = []
        prog_set(k, vPW, T + 1, 6)
        prog_wait4(k, vPR, T, 0, 6)
        c_dma(k, vm, VP, 1, sW)
        vm.all()
        prog_set(k, vPW, T + 1, 7)
        stamp(k, 11)
    stamps_out(k, 0)
    k("s_endpgm")
    return ra.hi

def pcmul(k, d, a, b):
    k(f"v_pk_mul_f32 {vr(d,2)}, {vr(a,2)}, {vr(b,2)} op_sel:[0,0] op_sel_hi:[0,1]")
    k(f"v_pk_fma_f32 {vr(d,2)}, {vr(a,2)}, {vr(b,2)}, {vr(d,2)} op_sel:[1,1,0] op_sel_hi:[1,0,1] neg_lo:[1,0,0]")

def s4(k):
    ra = RA(); vm = VM(k)
    sWp, sCH, sH, sD, sLC, sSC = "s60", "s61", "s62", "s63", "s64", "s65"
    T = ra(8, 4); vZ = ra(); vTG = ra(); vPW = ra(); vPP = ra(); vFA = ra(); va = ra(); vth = ra()
    VF = ra(8); VG = ra(); vYA = ra(); vSC = ra()
    ACC = ra(32, 4)
    base = ra.n
    XL = ra(8, 4); XO = ra(8, 4); PA = ra(8)
    IX = ra(20); SW = ra(16); SR = ra(4); DA = ra(3)
    Z = ra(32, 2); TB = ra(18, 2); U = ra(4, 2); z16 = ra(2, 2); PKD = ra(4)
    OPB = ra(16, 4); OPA = ra(32, 4); KD = ra(12, 4)
    k(f"""s_sub_u32 {sWp}, {sW}, 4
    s_lshr_b32 {sCH}, {sWp}, 1
    s_and_b32 {sH}, {sWp}, 1
    s_lshl_b32 {sD}, s2, 1
    s_add_u32 {sD}, {sD}, {sCH}
    s_mul_i32 {sLC}, {sCH}, {CHS}
    s_add_u32 {sLC}, {sLC}, {LS}
    s_lshl_b32 {sSC}, {sH}, 12
    s_add_u32 {sSC}, {sSC}, {sLC}
    s_add_u32 {sSC}, {sSC}, {LP + 64 - LS}
    s_lshl_b32 s14, {sC}, 7
    s_lshl_b32 s15, {sH}, 6
    s_add_u32 s14, s14, s15
    s_lshl_b32 s15, {sJ}, 5
    s_lshl_b32 s11, {sCH}, 4
    s_add_u32 s15, s15, s11
    s_lshl_b32 s12, s14, 10
    s_lshl_b32 s13, s15, 1
    s_add_u32 s12, s12, s13
    v_and_b32 v{T}, 7, v1
    v_lshrrev_b32 v{T+1}, 3, v1
    v_lshlrev_b32 v{T+2}, 13, v{T+1}
    v_lshl_add_u32 v{T+2}, v{T}, 2, v{T+2}
    v_add_u32 v{T+2}, s12, v{T+2}
    v_add_u32 v{T+3}, 4096, v{T+2}""")
    for i in range(8):
        vm.op(f"global_load_dword v{XL+i}, v{T+2+(i>>2)}, {X_} offset:{(i&3)*1024}", "xl")
    k(f"""s_lshl_b32 s12, {sD}, 8
    s_lshl_b32 s13, {sH}, 7
    s_add_u32 s12, s12, s13
    v_lshl_add_u32 v{T+4}, v1, 1, s12
    s_lshl_b32 s12, {sD}, 1
    v_mov_b32 v{T+5}, s12
    v_mov_b32 v{vZ}, 0""")
    vm.op(f"global_load_ushort v{PA+6}, v{T+5}, {BLDT}", "par")
    for i, p in enumerate((SARE, SAIM, SBRE, SBIM, SCRE, SCIM)):
        vm.op(f"global_load_ushort v{PA+i}, v{T+4}, {p}", "par")
    vm.op(f"global_load_dword v{vTG}, v{vZ}, {DBG} sc1", "tag")
    vXS = ra(2)
    k(f"""s_lshl_b32 s12, s15, 12
    s_lshl_b32 s13, s14, 1
    s_add_u32 s12, s12, s13
    s_add_u32 s12, s12, {XT_OFF}
    v_lshlrev_b32 v{vXS}, 13, v{T}
    v_lshl_add_u32 v{vXS}, v{T+1}, 4, v{vXS}
    v_add_u32 v{vXS}, s12, v{vXS}
    v_add_u32 v{vXS+1}, 4096, v{vXS}
    s_lshl_b32 s12, {sJ}, 1
    s_add_u32 s12, s12, {sCH}
    s_lshl_b32 s12, s12, 4
    s_add_u32 s12, s12, {sC}
    s_lshl_b32 s12, s12, 1
    s_add_u32 s12, s12, {sH}
    s_lshl_b32 s12, s12, 2
    s_add_u32 s66, s12, {F1_OFF}
    s_lshl_b32 s12, {sW}, 2
    s_add_u32 s12, s12, {LPR}
    v_mov_b32 v{vPW}, s12
    v_xor_b32 v{vPP}, 4, v{vPW}
    v_lshl_add_u32 v{SW}, v1, 2, {sSC}
    v_lshl_add_u32 v{vSC}, v1, 4, {sSC}
    v_and_b32 v{T}, 15, v1
    v_lshrrev_b32 v{T+1}, 4, v1
    v_xor_b32 v{T+2}, v{T}, v{T+1}
    v_lshlrev_b32 v{T+2}, 4, v{T+2}
    v_lshl_add_u32 v{T+2}, v{T}, 8, v{T+2}
    v_add_u32 v{SR}, {sSC}, v{T+2}""")
    for r in range(1, 16): k(f"v_xor_b32 v{SW+r}, {16*r}, v{SW}")
    for s in range(1, 4): k(f"v_xor_b32 v{SR+s}, {64*s}, v{SR}")
    k(f"""s_add_u32 s12, {sLC}, 4
    v_lshlrev_b32 v{T+2}, 4, v{T+1}
    v_lshl_add_u32 v{DA}, v{T}, 6, v{T+2}
    v_add_u32 v{DA}, s12, v{DA}
    v_lshl_add_u32 v{T+3}, v{T}, 5, v{T+2}
    v_lshlrev_b32 v{T+4}, 8, v{T+1}
    v_lshl_add_u32 v{T+5}, v{T}, 4, v{T+4}
    v_cmp_gt_u32 vcc, 2, v{T+1}
    v_cndmask_b32 v{DA+1}, v{T+5}, v{T+3}, vcc
    v_add_u32 v{DA+1}, s12, v{DA+1}
    v_lshl_add_u32 v{DA+2}, v{T}, 3, v{T+4}
    v_add_u32 v{DA+2}, s12, v{DA+2}""")
    k(f"""s_lshl_b32 s12, {sH}, 9
    s_add_u32 s12, s12, {sLC}
    s_add_u32 s12, s12, {LP - LS + 26*4}
    v_lshlrev_b32 v{T+2}, 5, v{T+1}
    v_lshl_add_u32 v{VF}, v{T}, 2, s12
    v_sub_u32 v{VF}, v{VF}, v{T+2}
    s_mul_i32 s12, {sCH}, {XTS}
    s_add_u32 s67, s12, {LXT}
    s_lshl_b32 s13, {sH}, 8
    s_sub_u32 s12, s67, s13
    s_add_u32 s12, s12, {480 - 192}
    v_lshlrev_b32 v{T+2}, 4, v{T+1}
    v_lshl_add_u32 v{VG}, v{T}, 5, v{T+2}
    v_add_u32 v{VG}, s12, v{VG}
    s_lshl_b32 s12, {sD}, 12
    s_lshl_b32 s13, {sH}, 11
    s_add_u32 s68, s12, s13
    s_add_u32 s12, s68, {Y_OFF}
    v_and_b32 v{T+2}, 1, v{T+1}
    v_lshlrev_b32 v{T+2}, 9, v{T+2}
    v_lshl_add_u32 v{T+2}, v{T}, 5, v{T+2}
    v_lshrrev_b32 v{T+3}, 1, v{T+1}
    v_lshl_add_u32 v{T+2}, v{T+3}, 4, v{T+2}
    v_add_u32 v{vYA}, s12, v{T+2}
    s_lshr_b32 s12, s2, 3
    s_lshl_b32 s12, s12, 7
    s_add_u32 s12, s12, {F1_OFF}
    v_and_b32 v{T+2}, 31, v1
    v_lshl_add_u32 v{vFA}, v{T+2}, 2, s12""")
    for m in range(1, 8): k(f"v_add_u32 v{VF+m}, {1024*m}, v{VF}")
    k(f"""s_lshl_b32 s12, {sH}, 10
    s_sub_u32 s12, s12, 1
    v_lshl_add_u32 v{T}, v1, 2, s12
    v_cvt_f32_i32 v{T+1}, v{T}
    s_add_u32 s13, {sLC}, 4
    s_sub_u32 s12, s13, {0x4280*4}
    v_mov_b32 v{T+7}, s12
    v_lshl_add_u32 v{T+6}, v{T}, 2, s13
    s_cmp_eq_u32 {sH}, 0
    s_cselect_b64 vcc, -1, 0""")
    for it in range(4):
        for e in range(5):
            c = 256*it + e
            if c: k(f"v_add_f32 v{PKD+(e&1)}, {fl(float(c))}, v{T+1}")
            else: k(f"v_mov_b32 v{PKD}, v{T+1}")
            if e & 1 or e == 4:
                k(f"v_cvt_pk_bf16_f32 v{T+2}, v{PKD}, v{PKD+1}")
                e0 = e & ~1
                k(f"v_mad_u32_u16 v{IX+5*it+e0}, v{T+2}, 4, v{T+7}")
                if e & 1: k(f"v_mad_u32_u16 v{IX+5*it+e}, v{T+2}, 4, v{T+7} op_sel:[1,0,0,0]")
    for e in range(5):
        k(f"v_add_u32 v{T+2}, {4*e}, v{T+6}\nv_cndmask_b32 v{IX+e}, v{IX+e}, v{T+2}, vcc")
    vm.wait("xl")
    k("s_mov_b32 s12, 0x05040100\ns_mov_b32 s13, 0x07060302")
    for i in range(4):
        k(f"v_perm_b32 v{XO+i}, v{XL+2*i+1}, v{XL+2*i}, s12")
        k(f"v_perm_b32 v{XO+4+i}, v{XL+2*i+1}, v{XL+2*i}, s13")
    vm.op(f"global_store_dwordx4 v{vXS}, {vr(XO,4)}, {WS} sc1", "xs")
    vm.op(f"global_store_dwordx4 v{vXS+1}, {vr(XO+4,4)}, {WS} sc1", "xs")
    stamp(k, 1)
    vm.wait("par")
    for i in range(7): k(f"v_lshlrev_b32 v{PA+i}, 16, v{PA+i}")
    k(f"""v_mul_f32 v{PA+6}, {fl(LOG2E)}, v{PA+6}
    v_exp_f32 v{PA+6}, v{PA+6}
    v_cvt_pk_bf16_f32 v{PA+6}, v{PA+6}, v{PA+6}
    v_lshlrev_b32 v{PA+6}, 16, v{PA+6}
    v_mul_f32 v{va}, v{PA+6}, v{PA}
    v_mul_f32 v{vth}, v{PA+6}, v{PA+1}
    v_mul_f32 v{va}, {fl(LOG2E)}, v{va}
    v_mul_f32 v{vth}, {fl(INV2PI)}, v{vth}
    v_mul_f32 v{PA+2}, v{PA+6}, v{PA+2}
    v_mul_f32 v{PA+3}, v{PA+6}, v{PA+3}""")
    cmul(k, U, U + 1, PA + 4, PA + 5, PA + 2, PA + 3)
    cexp(k, va, vth, fl(16.0), z16, z16 + 1, T, T + 1)
    cexp(k, va, vth, "1.0", Z + 2, Z + 3, T + 2, T + 3)
    cexp(k, va, vth, fl(256.0), TB + 2, TB + 3, T + 4, T + 5)
    npk = [0]
    def put(row, src, neg=False):
        p = PKD + (npk[0] & 3); npk[0] += 1
        k(f"v_cvt_pk_bf16_f32 v{p}, v{src}, {'-' if neg else ''}v{src+1}")
        k(f"ds_write_b32 v{SW+row}, v{p} offset:{256*row}")
    def get(dst):
        for s in range(4): k(f"ds_read_b128 {vr(dst+4*s,4)}, v{SR+s}")
    for m in range(16):
        cur = U + 2 * (m & 1)
        if m < 15: pcmul(k, U + 2 * ((m + 1) & 1), cur, z16)
        put(m, cur, True)
        r = m + 2
        if r < 16:
            if r % 2 == 0: pcmul(k, Z + 2*r, Z + r, Z + r)
            else: pcmul(k, Z + 2*r, Z + 2*r - 2, Z + 2)
    get(OPB)
    k(f"v_mov_b32 v{Z}, 1.0\nv_mov_b32 v{Z+1}, 0")
    tb = [(2,1,1),(3,2,1),(4,2,2),(6,3,3),(5,4,1),(8,4,4),(7,6,1)]
    for r in range(16):
        put(r, Z + 2*r)
        if r < 7: pcmul(k, TB + 2*tb[r][0], TB + 2*tb[r][1], TB + 2*tb[r][2])
    get(OPA)
    get_tag(k, vm, vTG, vZ)
    rows1 = [(1, 2*i) for i in range(8)] + [(2, 4*i) for i in range(4)] + [(3, 4*i) for i in range(4)]
    rows2 = [(4 + (i >> 1), 8 * (i & 1)) for i in range(9)]
    def vrows(rows):
        for r, (B, f) in enumerate(rows):
            if f == 0: put(r, TB + 2*B)
            else:
                d = U + 2 * (r & 1)
                pcmul(k, d, TB + 2*B, Z + 2*f); put(r, d)
    vrows(rows1)
    get(OPA + 16)
    k("s_waitcnt lgkmcnt(15)")
    for s in range(4):
        k(f"v_mfma_f32_16x16x32_bf16 {vr(KD,4)}, {vr(OPA+4*s,4)}, {vr(OPB+4*s,4)}, {'0' if s == 0 else vr(KD,4)}")
    k(f"""v_mov_b32 v{T}, s66
    v_mov_b32 v{T+1}, {sTAG}
    s_waitcnt vmcnt(0)
    s_mov_b64 exec, 1
    global_store_dword v{T}, v{T+1}, {WS} sc1
    s_mov_b64 exec, -1""")
    stamp(k, 2)
    vrows(rows2)
    get(OPA)
    k("s_waitcnt lgkmcnt(13)")
    for s in range(4):
        k(f"v_mfma_f32_16x16x32_bf16 {vr(KD+4,4)}, {vr(OPA+16+4*s,4)}, {vr(OPB+4*s,4)}, {'0' if s == 0 else vr(KD+4,4)}")
    for r in range(4): k(f"ds_add_f32 v{DA}, v{KD+r} offset:{4*r}")
    k("s_waitcnt lgkmcnt(4)")
    for s in range(4):
        k(f"v_mfma_f32_16x16x32_bf16 {vr(KD+8,4)}, {vr(OPA+4*s,4)}, {vr(OPB+4*s,4)}, {'0' if s == 0 else vr(KD+8,4)}")
    for r in range(4): k(f"ds_add_f32 v{DA+1}, v{KD+4+r} offset:{1024+4*r}")
    k(f"global_load_dword v{T+6}, v{vFA}, {WS} sc1")
    k("s_mov_b32 exec_hi, 1")
    for r in range(4):
        k(f"ds_add_f32 v{DA+2}, v{KD+8+r} offset:{2048+128*(r>>1)+4*(r&1)}")
        if r == 0: k("s_mov_b32 exec_hi, 0")
    k("s_mov_b32 exec_hi, -1\ns_waitcnt lgkmcnt(0)")
    prog_set(k, vPW, T, 1)
    prog_wait1(k, vPP, T, 1)
    stamp(k, 3)
    KV = Z; PO = OPB
    for it in range(4):
        for e in range(5): k(f"ds_read_b32 v{KV+5*it+e}, v{IX+5*it+e}")
        if it == 2: k("s_waitcnt lgkmcnt(10)")
    k(f"s_lshl_b32 s12, {sH}, 12\ns_add_u32 s12, s12, {sLC}\ns_add_u32 s12, s12, {LP+64-LS}\nv_lshl_add_u32 v{T}, v1, 4, s12")
    for it in range(4):
        k(f"s_waitcnt lgkmcnt({15 - 4*it})")
        for e in range(4): k(f"v_cvt_pk_bf16_f32 v{PO+4*it+e}, v{KV+5*it+e+1}, v{KV+5*it+e}")
        k(f"ds_write_b128 v{T}, {vr(PO+4*it,4)} offset:{1024*it}")
    stamp(k, 4)
    L, D = k.lab("F1"), k.lab("F1D")
    k(f"""s_mov_b32 s11, {SPIN}
    s_waitcnt vmcnt(0)
    v_cmp_ne_u32 vcc, {sTAG}, v{T+6}
    s_cbranch_vccz {D}
    {L}:
    global_load_dword v{T+6}, v{vFA}, {WS} sc1
    s_sub_u32 s11, s11, 1
    s_cmp_eq_u32 s11, 0
    s_cbranch_scc1 {D}
    s_waitcnt vmcnt(0)
    v_cmp_ne_u32 vcc, {sTAG}, v{T+6}
    s_cbranch_vccnz {L}
    {D}:
    v_lshl_add_u32 v{T+1}, v1, 4, s68
    global_load_dwordx4 {vr(XL,4)}, v{T+1}, {WS} sc1
    global_load_dwordx4 {vr(XL+4,4)}, v{T+1}, {WS} offset:1024 sc1
    s_lshl_b32 s12, {sH}, 11
    s_add_u32 s12, s12, s67
    v_lshl_add_u32 v{T+2}, v1, 4, s12""")
    stamp(k, 5)
    k(f"""s_waitcnt vmcnt(1)
    ds_write_b128 v{T+2}, {vr(XL,4)} offset:512
    s_waitcnt vmcnt(0)
    ds_write_b128 v{T+2}, {vr(XL+4,4)} offset:1536
    s_waitcnt lgkmcnt(0)""")
    prog_set(k, vPW, T, 2)
    prog_wait1(k, vPP, T, 2)
    stamp(k, 6)
    ra.n = base
    FB = [ra(32, 4), ra(32, 4)]; GB = [ra(32, 4), ra(32, 4)]
    def reads(kk):
        o = []
        F, G = FB[kk & 1], GB[kk & 1]
        for i in range(8):
            o.append(f"ds_read_b128 {vr(G+4*i,4)}, v{VG} offset:{512*i + 192 - 64*kk}")
            o.append(f"ds_read2_b32 {vr(F+4*i,2)}, v{VF+i} offset0:{32*kk+6} offset1:{32*kk+4}")
            o.append(f"ds_read2_b32 {vr(F+4*i+2,2)}, v{VF+i} offset0:{32*kk+2} offset1:{32*kk}")
        return o
    for l in reads(0): k(l)
    for kk in range(4):
        k("s_waitcnt lgkmcnt(0)")
        nxt = reads(kk + 1) if kk < 3 else []
        F, G = FB[kk & 1], GB[kk & 1]
        for n in range(8):
            for m in range(8 - n):
                a = ACC + 4 * (m + n)
                z = kk == 0 and n == 0
                k(f"v_mfma_f32_16x16x32_bf16 {vr(a,4)}, {vr(F+4*m,4)}, {vr(G+4*n,4)}, {'0' if z else vr(a,4)}")
                if nxt: k(nxt.pop(0))
        if kk == 2: pass
    stamp(k, 7)
    prog_set(k, vPW, T, 3)
    prog_wait1(k, vPP, T, 3)
    RD = FB[0]; YO = FB[0] + 16
    L1, L2 = k.lab("RH"), k.lab("RE")
    k(f"v_xor_b32 v{T+1}, v{vSC}, v{vSC}\ns_cmp_lg_u32 {sH}, 0\ns_cbranch_scc1 {L1}")
    for h in range(2):
        keep, send = ACC + 16*h, ACC + 16*(1-h)
        for q in range(4): k(f"ds_write_b128 v{vSC}, {vr(send+4*q,4)} offset:{1024*q}")
        k(f"v_add_u32 v{T+1}, {4096 if h == 0 else -4096}, v{vSC}\ns_waitcnt lgkmcnt(0)")
        prog_set(k, vPW, T, 4)
        prog_wait1(k, vPP, T, 4)
        for q in range(4): k(f"ds_read_b128 {vr(RD+4*q,4)}, v{T+1} offset:{1024*q}")
        for q in range(4):
            k(f"s_waitcnt lgkmcnt({3-q})")
            for r in range(4): k(f"v_add_f32 v{RD+4*q+r}, v{RD+4*q+r}, v{keep+4*q+r}")
        if h == 0: k(f"s_branch {L2}\n{L1}:")
    k(f"{L2}:")
    for q in range(4):
        for r in range(2): k(f"v_cvt_pk_bf16_f32 v{YO+2*q+r}, v{RD+4*q+2*r}, v{RD+4*q+2*r+1}")
    for p in range(2):
        for r in range(2): k(f"v_permlane16_swap_b32 v{YO+4*p+r}, v{YO+4*p+2+r}")
    for p in range(2):
        k(f"global_store_dwordx4 v{vYA}, {vr(YO+4*p,4)}, {WS} offset:{1024*p} sc1")
    k(f"""s_lshl_b32 s12, {sH}, 9
    s_add_u32 s12, s12, {sD}
    s_lshl_b32 s12, s12, 2
    s_add_u32 s12, s12, {F3_OFF}
    v_mov_b32 v{T}, s12
    v_mov_b32 v{T+1}, {sTAG}
    s_waitcnt vmcnt(0)
    s_mov_b64 exec, 1
    global_store_dword v{T}, v{T+1}, {WS} sc1
    s_mov_b64 exec, -1""")
    stamp(k, 8)
    stamps_out(k, 0)
    k("s_endpgm")
    return ra.hi

def phase2(k, fused):
    ra = RA(); vm = VM(k)
    sRP, sKQ, sRT, sDP = "s60", "s61", "s62", "s63"
    T = ra(8, 4); VP = ra(4); VC = ra(4); vH = ra(4); vO = ra(); vRW = ra(); vRR = ra()
    X2 = ra(4, 2); AD = ra(4, 2); BD = ra(4, 2); Y8 = ra(8); vG = ra(); SA = ra(8)
    ACC = ra(32, 4); HF = ra(64, 4); CF = ra(96, 4)
    k(f"""s_and_b32 {sKQ}, {sW}, 3
    s_lshr_b32 {sRP}, {sW}, 2
    s_and_b32 {sRT}, {sKQ}, 1
    s_lshr_b32 {sDP}, {sKQ}, 1""")
    if not fused:
        k("s_waitcnt lgkmcnt(0)")
        dma_patterns(k, VP, T)
        c_setup(k, sKQ)
        k(f"s_lshl_b32 s11, {sRP}, 16\ns_add_u32 s77, s77, s11\ns_lshl_b32 s11, {sRP}, 9\ns_add_u32 s76, s76, s11")
        c_dma(k, vm, VP, 0, sKQ)
    k(f"""s_lshl_b32 s12, {sR}, 2
    s_lshl_b32 s13, {sRP}, 1
    s_add_u32 s12, s12, s13
    s_lshl_b32 s14, s12, 15
    s_lshl_b32 s13, {sKQ}, 13
    s_add_u32 s14, s14, s13
    s_add_u32 s14, s14, {H_OFF}
    v_lshl_add_u32 v{vH}, v1, 4, s14
    v_add_u32 v{vH+1}, 4096, v{vH}
    v_add_u32 v{vH+2}, 32768, v{vH}
    v_add_u32 v{vH+3}, {32768+4096}, v{vH}""")
    for ks in range(8):
        for rt in range(2):
            vm.op(f"global_load_dwordx4 {vr(HF+8*ks+4*rt,4)}, v{vH+2*rt+(ks>>2)}, {WS} offset:{(ks&3)*1024} sc1", f"h{ks}")
    k(f"""s_add_u32 s12, s12, {sRT}
    s_lshl_b32 s12, s12, 4
    s_lshl_b32 s13, {sDT}, 6
    s_lshl_b32 s14, {sDP}, 5
    s_add_u32 s13, s13, s14
    v_and_b32 v{T}, 15, v1
    v_lshrrev_b32 v{T+1}, 4, v1
    v_add_u32 v{T+2}, s12, v{T}
    v_lshl_add_u32 v{T+3}, v{T+1}, 2, s13
    v_lshlrev_b32 v{T+4}, 1, v{T+3}
    v_lshl_add_u32 v{T+5}, v{T+2}, 10, v{T+4}
    v_lshlrev_b32 v{vO}, 1, v{T+5}
    v_lshlrev_b32 v{T+6}, 1, v{T+2}
    v_lshl_add_u32 v{T+6}, v{T+3}, 12, v{T+6}
    v_add_u32 v{T+6}, {Y_OFF}, v{T+6}
    v_lshrrev_b32 v{T+7}, 1, v{T+2}
    v_lshlrev_b32 v{T+7}, 4, v{T+7}
    v_and_b32 v{vG}, 1, v{T}
    v_lshl_add_u32 v{T+7}, v{vG}, 2, v{T+7}
    v_add_u32 v{T+7}, {F2_OFF}, v{T+7}""")
    for e in range(2):
        vm.op(f"global_load_dwordx2 {vr(X2+2*e,2)}, v{T+5}, {X_} offset:{32*e}", "ep")
        vm.op(f"global_load_dwordx2 {vr(AD+2*e,2)}, v{T+4}, {ADS} offset:{32*e}", "ep")
        vm.op(f"global_load_dwordx2 {vr(BD+2*e,2)}, v{T+4}, {BDS} offset:{32*e}", "ep")
    vm.op(f"global_load_dword v{vG}, v{T+7}, {WS} sc1", "ep")
    for i in range(8): k(f"v_mov_b32 v{Y8+i}, 0")
    for i in range(8):
        e, r = i >> 2, i & 3
        k(f"v_add_u32 v{SA+i}, {(16*e+r)*4096}, v{T+6}")
        vm.op(f"global_load_short_d16_hi v{Y8+i}, v{SA+i}, {WS} sc1", "ep")
    k(f"""v_xor_b32 v{T+2}, v{T}, v{T+1}
    v_lshlrev_b32 v{T+2}, 4, v{T+2}
    v_lshl_add_u32 v{T+2}, v{T}, 8, v{T+2}
    s_lshl_b32 s12, {sKQ}, 15
    v_add_u32 v{VC}, s12, v{T+2}""")
    for q in range(1, 4): k(f"v_xor_b32 v{VC+q}, {64*q}, v{VC}")
    k(f"""s_lshl_b32 s12, {sRP}, 15
    s_lshl_b32 s13, {sKQ}, 11
    s_add_u32 s13, s13, s12
    v_lshl_add_u32 v{vRW}, v1, 4, s13
    s_lshl_b32 s13, {sKQ}, 13
    s_add_u32 s13, s13, s12
    v_lshl_add_u32 v{vRR}, v1, 4, s13""")
    if not fused:
        vm.wait("C0")
        k("s_barrier")
    stamp(k, 1)
    def cf(ks, dt):
        i = 4 * ks + dt
        return CF + 4 * (i % 24)
    def crd(ks):
        for dt in range(4):
            k(f"ds_read_b128 {vr(cf(ks,dt),4)}, v{VC+(ks>>1)} offset:{(ks&1)*16384 + dt*4096}")
    for ks in range(6): crd(ks)
    for ks in range(8):
        if ks == 0: k("s_waitcnt lgkmcnt(0)")
        if ks == 6: k("s_waitcnt lgkmcnt(0)")
        vm.wait(f"h{ks}")
        if ks == 0: stamp(k, 2)
        for dt in range(4):
            for rt in range(2):
                a = ACC + 16 * rt + 4 * dt
                k(f"v_mfma_f32_16x16x32_bf16 {vr(a,4)}, {vr(cf(ks,dt),4)}, {vr(HF+8*ks+4*rt,4)}, {'0' if ks == 0 else vr(a,4)}")
        if ks in (1, 2): crd(ks + 5)
    stamp(k, 3)
    vm.wait("ep")
    U = HF
    TBv = HF + 32
    k(f"""v_sub_f32 v{T+7}, 1.0, v{vG}
    v_cvt_pk_bf16_f32 v{T+7}, v{T+7}, v{T+7}
    v_and_b32 v{T+7}, 0xffff0000, v{T+7}""")
    for w in range(4):
        k(f"""v_lshlrev_b32 v{T}, 16, v{X2+w}
        v_and_b32 v{T+1}, 0xffff0000, v{X2+w}
        v_lshlrev_b32 v{T+2}, 16, v{AD+w}
        v_and_b32 v{T+3}, 0xffff0000, v{AD+w}
        v_lshlrev_b32 v{T+4}, 16, v{BD+w}
        v_and_b32 v{T+5}, 0xffff0000, v{BD+w}
        v_mul_f32 v{T+2}, v{T}, v{T+2}
        v_mul_f32 v{T+3}, v{T+1}, v{T+3}
        v_mul_f32 v{T+4}, v{T}, v{T+4}
        v_mul_f32 v{T+5}, v{T+1}, v{T+5}
        v_cvt_pk_bf16_f32 v{T+2}, v{T+2}, v{T+3}
        v_cvt_pk_bf16_f32 v{T+4}, v{T+4}, v{T+5}
        v_lshlrev_b32 v{SA+2*w}, 16, v{T+2}
        v_and_b32 v{SA+2*w+1}, 0xffff0000, v{T+2}
        v_lshlrev_b32 v{T}, 16, v{T+4}
        v_and_b32 v{T+1}, 0xffff0000, v{T+4}
        v_add_f32 v{T}, v{T}, v{Y8+2*w}
        v_add_f32 v{T+1}, v{T+1}, v{Y8+2*w+1}
        v_cvt_pk_bf16_f32 v{T}, v{T}, v{T+1}
        v_and_b32 v{T+1}, 0xffff0000, v{T}
        v_lshlrev_b32 v{T}, 16, v{T}
        v_mul_f32 v{T}, v{T+7}, v{T}
        v_mul_f32 v{T+1}, v{T+7}, v{T+1}
        v_cvt_pk_bf16_f32 v{T}, v{T}, v{T+1}
        v_lshlrev_b32 v{Y8+2*w}, 16, v{T}
        v_and_b32 v{Y8+2*w+1}, 0xffff0000, v{T}""")
    k("s_barrier")
    for dst in range(4):
        for e in range(2):
            a = ACC + 16 * (dst & 1) + 4 * (2 * (dst >> 1) + e)
            k(f"ds_write_b128 v{vRW}, {vr(a,4)} offset:{dst*8192 + e*1024}")
    k("s_waitcnt lgkmcnt(0)\ns_barrier")
    for src in range(4):
        for e in range(2):
            k(f"ds_read_b128 {vr(U+8*src+4*e,4)}, v{vRR} offset:{src*2048 + e*1024}")
    for src in range(4):
        k(f"s_waitcnt lgkmcnt({6-2*src})")
        for i in range(8): k(f"v_add_f32 v{SA+i}, v{SA+i}, v{U+8*src+i}")
    for i in range(8): k(f"v_fma_f32 v{TBv+i}, v{vG}, v{SA+i}, v{Y8+i}")
    for e in range(2):
        k(f"global_store_dwordx4 v{vO}, {vr(TBv+4*e,4)}, {OUTP} offset:{64*e}")
    stamp(k, 4)
    stamps_out(k, 1)
    return ra.hi

def finish(k):
    k(f"{k.label}_END:")
    k.L, n = haz.fix(k.L)
    print(k.label, "nops added", n, "vgpr", k.vgpr, "lines", len(k.L))

k1 = K(NAME + "_kernel", 256, 512, LDS_TOTAL)
prologue(k1)
lds_zero_and_nonce(k1)
k1(f"s_cmp_ge_u32 {sW}, 4\ns_cbranch_scc1 {k1.label}_S4")
h5 = s5(k1)
k1(f"{k1.label}_S4:")
h4 = s4(k1)
k1.vgpr = max(h5, h4); print(h5, h4)
finish(k1)
if FUSED:
    emit([k1], OUT, single=True)
else:
    k2 = K("phase2_kernel", 256, 512, 131072)
    prologue(k2)
    if STAMPS: k2("s_waitcnt lgkmcnt(0)\ns_mov_b32 s80, s98")
    k2.vgpr = phase2(k2, False)
    finish(k2)
    emit([k1, k2], OUT)
```

```python
import sys, math
from lib import *
import haz
FUSED  = "--fused" in sys.argv
STAMPS = "--stamps" in sys.argv
OUT = [a for a in sys.argv[1:] if a.endswith(".s")][0]

XT_OFF, H_OFF, Y_OFF, E_OFF = 0, 0x200000, 0x600000, 0x800000
F1_OFF, F2_OFF, F3_OFF, ST_OFF = 0x820000, 0x821000, 0x825000, 0x830000
LB, LX, LS = 0, 65536, 131072
LKC, LP, CHS = LS, LS + 2752, 11008
LPR = LS + 22016
LXT, XTS = LS + 22048, 4608
LDS_TOTAL = LS + 31264
LOG2E = 1.4426950408889634
INV2PI = 0.15915494309189535
import struct
def fl(x): return "0x%08x" % struct.unpack("<I", struct.pack("<f", x))[0]
SPIN = 1 << 20

X_, LRE, LIM, BRE, BIM, CRE, CIM, ALDT = [f"s[{16+2*i}:{17+2*i}]" for i in range(8)]
ADS, _BU, SARE, SAIM, SBRE, SBIM, SCRE, SCIM = [f"s[{32+2*i}:{33+2*i}]" for i in range(8)]
BLDT, BDS, GW, OUTP, DBG, WS = [f"s[{48+2*i}:{49+2*i}]" for i in range(6)]
sW, sXCD, sI, sC, sJ, sR, sDT = "s3", "s4", "s5", "s6", "s7", "s8", "s9"
sTAG = "s10"

class RA:
    def __init__(s, start=2, end=256): s.n = start; s.end = end; s.hi = start
    def __call__(s, n=1, al=1):
        s.n = (s.n + al - 1) // al * al
        r = s.n; s.n += n; s.hi = max(s.hi, s.n); assert s.n <= s.end, "out of vgprs"
        return r
def vr(a, n): return f"v[{a}:{a+n-1}]" if n > 1 else f"v{a}"

class VM:
    def __init__(s, k): s.k = k; s.q = []
    def op(s, line, tag=None): s.k(line); s.q.append(tag)
    def wait(s, tag):
        idx = max(i for i, t in enumerate(s.q) if t == tag)
        n = len(s.q) - 1 - idx
        n = min(n, 63)
        s.k(f"s_waitcnt vmcnt({n})")
    def all(s): s.k("s_waitcnt vmcnt(0)")

def stamp(k, i):
    if STAMPS:
        k(f"s_memrealtime s[96:97]\ns_waitcnt lgkmcnt(0)\ns_mov_b32 s{80+i}, s96")
def stamps_out(k, kern):
    if not STAMPS: return
    L = k.lab("NST")
    k("s_memtime s[96:97]\ns_waitcnt lgkmcnt(0)\ns_sub_u32 s95, s96, s94\ns_memrealtime s[96:97]\ns_waitcnt lgkmcnt(0)\ns_sub_u32 s94, s96, s80")
    k(f"""s_add_u32 s11, {sW}, {kern*8}
    s_lshl_b32 s11, s11, 8
    s_add_u32 s11, s11, s2
    s_lshl_b32 s11, s11, 6
    s_add_u32 s11, s11, {ST_OFF}
    v_mov_b32 v2, s11
    s_mov_b64 exec, 1""")
    for i in range(16):
        k(f"v_mov_b32 v3, s{80+i}\nglobal_store_dword v2, v3, {WS} offset:{4*i}")
    k(f"{L}:\ns_mov_b64 exec, -1")

def srd(k, s, ptr, size):
    a = int(ptr[2:ptr.index(":")])
    k(f"s_mov_b32 s{s}, s{a}\ns_and_b32 s{s+1}, s{a+1}, 0xffff\ns_mov_b32 s{s+2}, {size}\ns_mov_b32 s{s+3}, 0x20000")

def prologue(k, first=True):
    k(f"""s_cmp_ge_u32 s2, 256
    s_cbranch_scc1 {k.label}_END
    s_load_dwordx16 s[16:31], s[0:1], 0
    s_load_dwordx16 s[32:47], s[0:1], 64
    s_load_dwordx8 s[48:55], s[0:1], 128
    s_load_dwordx4 s[56:59], s[0:1], 160
    s_memrealtime s[98:99]
    s_getpc_b64 s[12:13]
    {k.label}_PC:
    v_lshrrev_b32 v2, 6, v0
    v_and_b32 v1, 63, v0
    v_readfirstlane_b32 {sW}, v2
    s_and_b32 {sXCD}, s2, 7
    s_lshr_b32 {sI}, s2, 3
    """)
    L = k.lab("NPF")
    k(f"""s_cmp_lg_u32 {sW}, {k.block//64-1}
    s_cbranch_scc1 {L}
    s_and_b32 s11, {sI}, 3
    s_lshl_b32 s11, s11, 13
    v_lshlrev_b32 v2, 7, v1
    v_add_u32 v2, s11, v2
    v_min_u32 v2, {k.label}_END-{k.label}_PC, v2
    global_load_dword v3, v2, s[12:13]
    {L}:
    s_and_b32 s11, {sXCD}, 3
    s_and_b32 s14, {sI}, 3
    s_lshl_b32 {sC}, s11, 2
    s_add_u32 {sC}, {sC}, s14
    s_lshr_b32 s15, {sXCD}, 2
    s_lshr_b32 {sDT}, {sI}, 2
    s_lshl_b32 {sJ}, s15, 3
    s_add_u32 {sJ}, {sJ}, {sDT}
    s_lshl_b32 {sR}, s11, 3
    s_lshl_b32 s15, s15, 2
    s_add_u32 {sR}, {sR}, s15
    s_add_u32 {sR}, {sR}, s14
    """)
    if STAMPS:
        for i in range(16): k(f"s_mov_b32 s{80+i}, 0")

def lds_zero_and_nonce(k):
    L = k.lab("NN")
    k(f"""s_lshl_b32 s11, {sW}, 10
    s_add_u32 s14, s11, {LS}
    s_add_u32 s15, s11, {LS + CHS - 3072}
    s_cmp_lt_u32 {sW}, 3
    s_cselect_b32 s14, s14, s15
    s_cmp_eq_u32 {sW}, 6
    s_cselect_b32 s14, {LPR}, s14
    s_cmp_eq_u32 {sW}, 7
    s_cselect_b32 s14, {LXT + XTS}, s14
    v_lshl_add_u32 v2, v1, 4, s14
    v_mov_b32 v4, 0
    v_mov_b32 v5, 0
    v_mov_b32 v6, 0
    v_mov_b32 v7, 0
    ds_write_b128 v2, v[4:7]
    s_waitcnt lgkmcnt(0)
    s_or_b32 s11, s2, {sW}
    s_cmp_lg_u32 s11, 0
    s_cbranch_scc1 {L}
    s_or_b32 s11, s98, 1
    v_mov_b32 v5, s11
    s_mov_b64 exec, 1
    global_store_dword v4, v5, {DBG} sc1
    s_mov_b64 exec, -1
    {L}:""")
    if STAMPS: k("s_mov_b32 s80, s98\ns_memtime s[96:97]\ns_waitcnt lgkmcnt(0)\ns_mov_b32 s94, s96")

def get_tag(k, vm, vt, vz):
    L, D = k.lab("TG"), k.lab("TD")
    vm.wait("tag")
    k(f"""v_readfirstlane_b32 {sTAG}, v{vt}
    s_cmp_lg_u32 {sTAG}, 0
    s_cbranch_scc1 {D}
    s_mov_b32 s11, {SPIN}
    {L}:
    global_load_dword v{vt}, v{vz}, {DBG} sc1
    s_waitcnt vmcnt(0)
    v_readfirstlane_b32 {sTAG}, v{vt}
    s_sub_u32 s11, s11, 1
    s_cmp_eq_u32 s11, 0
    s_cbranch_scc1 {D}
    s_cmp_eq_u32 {sTAG}, 0
    s_cbranch_scc1 {L}
    {D}:""")

def prog_set(k, vaddr, vtmp, val):
    k(f"v_mov_b32 v{vtmp}, {val}\nds_write_b32 v{vaddr}, v{vtmp}")
def prog_wait4(k, vz, vt4, off, val):
    L, D = k.lab("PW"), k.lab("PD")
    k(f"""s_mov_b32 s11, {SPIN}
    {L}:
    ds_read_b128 {vr(vt4,4)}, v{vz} offset:{off}
    s_waitcnt lgkmcnt(0)
    v_min3_u32 v{vt4}, v{vt4}, v{vt4+1}, v{vt4+2}
    v_min_u32 v{vt4}, v{vt4}, v{vt4+3}
    s_sub_u32 s11, s11, 1
    v_readfirstlane_b32 s14, v{vt4}
    s_cmp_eq_u32 s11, 0
    s_cbranch_scc1 {D}
    s_cmp_lt_u32 s14, {val}
    s_cbranch_scc1 {L}
    {D}:""")
def prog_wait1(k, vaddr, vt, val):
    L, D = k.lab("PW"), k.lab("PD")
    k(f"""s_mov_b32 s11, {SPIN}
    {L}:
    ds_read_b32 v{vt}, v{vaddr}
    s_waitcnt lgkmcnt(0)
    s_sub_u32 s11, s11, 1
    v_readfirstlane_b32 s14, v{vt}
    s_cmp_eq_u32 s11, 0
    s_cbranch_scc1 {D}
    s_cmp_lt_u32 s14, {val}
    s_cbranch_scc1 {L}
    {D}:""")

def cexp(k, va, vth, n, dre, dim, t0, t1):
    k(f"""v_mul_f32 v{t0}, {n}, v{va}
    v_mul_f32 v{t1}, {n}, v{vth}
    v_exp_f32 v{t0}, v{t0}
    v_fract_f32 v{t1}, v{t1}
    v_cos_f32 v{dre}, v{t1}
    v_sin_f32 v{dim}, v{t1}
    v_mul_f32 v{dre}, v{dre}, v{t0}
    v_mul_f32 v{dim}, v{dim}, v{t0}""")
def cmul(k, dr, di, ar, ai, br, bi):
    k(f"""v_mul_f32 v{dr}, v{ar}, v{br}
    v_mul_f32 v{di}, v{ar}, v{bi}
    v_fma_f32 v{dr}, -v{ai}, v{bi}, v{dr}
    v_fmac_f32 v{di}, v{ai}, v{br}""")
def cfma(k, dr, di, ar, ai, br, bi):
    k(f"""v_fmac_f32 v{dr}, v{ar}, v{br}
    v_fmac_f32 v{di}, v{ar}, v{bi}
    v_fma_f32 v{dr}, -v{ai}, v{bi}, v{dr}
    v_fmac_f32 v{di}, v{ai}, v{br}""")

def dma_patterns(k, VP, t):
    k(f"""v_lshrrev_b32 v{t}, 4, v1
    v_and_b32 v{VP}, 15, v1
    v_xor_b32 v{VP}, v{VP}, v{t}
    v_lshlrev_b32 v{VP}, 4, v{VP}
    v_lshl_add_u32 v{VP}, v{t}, 10, v{VP}""")
    for q in range(1, 4): k(f"v_xor_b32 v{VP+q}, {64*q}, v{VP}")

def c_dma(k, vm, VP, half, wsg):
    for sl in (2*half, 2*half+1):
        for comp in range(2):
            for q in range(4):
                k(f"s_add_u32 m0, s77, {sl*32768 + comp*16384 + q*1024}")
                k(f"s_add_u32 s15, s76, {q*4096 + sl*256}")
                vm.op(f"buffer_load_dwordx4 v{VP+q}, s[{68+4*comp}:{71+4*comp}], s15 offen lds", f"C{half}")
def c_setup(k, wsg):
    srd(k, 68, CRE, 524288); srd(k, 72, CIM, 524288)
    k(f"""s_lshl_b32 s76, {sDT}, 16
    s_lshl_b32 s77, {wsg}, 14
    s_add_u32 s76, s76, s77
    s_lshl_b32 s77, {wsg}, 12""")

def s5(k):
    ra = RA(); vm = VM(k)
    MS = 16
    VP = ra(4); VA = ra(8); VX = ra(8)
    T = ra(8, 4); vPR = ra(); vPW = ra(); vZ = ra(); vTG = ra()
    pLre, pLim, pDt = ra(), ra(), ra()
    va, vth, lr, li, l16r, l16i = [ra() for _ in range(6)]
    GX = ra(8, 4); GWv = ra(8, 4)
    ACR = ra(16, 4); ACI = ra(16, 4)
    FR = ra(36, 4)
    EX = ra(16, 4)
    EG = ra(32, 4)
    RT = ra(32, 4)
    Wt = ra(16)
    Sr, Si, c2r, c2i, lsr, lsi, Hr, Hi, vS, vG = [ra() for _ in range(10)]
    srd(k, 60, X_, 2097152)
    k(f"""s_and_b32 s11, {sW}, 1
    s_cmp_eq_u32 s11, 0
    s_cselect_b32 s64, s22, s24
    s_cselect_b32 s65, s23, s25
    s_and_b32 s65, s65, 0xffff
    s_mov_b32 s66, 524288
    s_mov_b32 s67, 0x20000""")
    c_setup(k, sW)
    dma_patterns(k, VP, T)
    k(f"""v_and_b32 v{T}, 31, v1
    s_lshl_b32 s14, {sJ}, 6
    v_lshl_add_u32 v{T+1}, v{T}, 1, s14
    v_lshrrev_b32 v{T+2}, 5, v1
    s_lshl_b32 s14, {sC}, 7
    s_lshl_b32 s15, {sW}, 5
    s_add_u32 s14, s14, s15
    s_lshl_b32 s36, s14, 10
    s_lshl_b32 s15, {sJ}, 11
    s_add_u32 s15, s15, s36
    v_lshlrev_b32 v{T+3}, 5, v{T}
    v_lshl_add_u32 v{T+4}, v{T+2}, 10, v{T+3}
    v_add_u32 v{T+4}, s15, v{T+4}
    v_mov_b32 v{vZ}, 0""")
    vm.op(f"global_load_ushort v{pDt}, v{T+1}, {ALDT}", "par")
    vm.op(f"global_load_ushort v{pLre}, v{T+1}, {LRE}", "par")
    vm.op(f"global_load_ushort v{pLim}, v{T+1}, {LIM}", "par")
    k(f"""s_add_u32 s11, {sC}, {sJ}
    s_and_b32 s11, s11, 3
    s_lshl_b32 s37, s11, 8
    s_add_u32 s38, s37, 256
    s_and_b32 s38, s38, 1023
    s_add_u32 s39, s37, 512
    s_and_b32 s39, s39, 1023
    s_add_u32 s40, s37, 768
    s_and_b32 s40, s40, 1023
    s_lshr_b32 s11, {sW}, 1
    s_lshl_b32 s41, {sJ}, 15
    s_lshl_b32 s14, s11, 14
    s_add_u32 s41, s41, s14
    s_lshl_b32 s42, s11, 12
    s_and_b32 s11, {sW}, 1
    s_lshl_b32 s11, s11, 13
    s_add_u32 s42, s42, s11
    s_lshl_b32 s43, {sW}, 14
    s_add_u32 s43, s43, {LX}""")
    def dB(slot, qs=range(4)):
        k(f"s_add_u32 s14, s41, s{37+slot}")
        for q in qs:
            k(f"s_add_u32 m0, s42, {LB + slot*16384 + q*1024}")
            k(f"s_add_u32 s15, s14, {q*4096}")
            vm.op(f"buffer_load_dwordx4 v{VP+q}, s[64:67], s15 offen lds", f"B{slot}")
    def dX(slot):
        k(f"s_add_u32 s14, s36, s{37+slot}")
        for n in range(8):
            k(f"s_add_u32 m0, s43, {(slot&1)*8192 + n*1024}")
            k(f"s_add_u32 s15, s14, {(16*(n&1) + 4*(n>>1))*1024}")
            vm.op(f"buffer_load_dwordx4 v{VP+(n&3)}, s[60:63], s15 offen lds", f"X{slot}")
    vm.op(f"global_load_dwordx4 {vr(GX,4)}, v{T+4}, {X_}", "gate")
    vm.op(f"global_load_dwordx4 {vr(GX+4,4)}, v{T+4}, {X_} offset:16", "gate")
    vm.op(f"global_load_dwordx4 {vr(GWv,4)}, v{T+3}, {GW}", "gate")
    vm.op(f"global_load_dwordx4 {vr(GWv+4,4)}, v{T+3}, {GW} offset:16", "gate")
    k('s_barrier')
    dB(0); dX(0); stamp(k, 13); dB(1); dX(1)
    k(f"""v_and_b32 v{T+5}, 15, v1
    v_xor_b32 v{T+5}, v{T+5}, v{T+2}
    v_lshlrev_b32 v{T+5}, 4, v{T+5}
    v_lshl_add_u32 v{VA}, v{T}, 8, v{T+5}""")
    for ks in range(1, 8): k(f"v_xor_b32 v{VA+ks}, {32*ks}, v{VA}")
    for ks in range(8): k(f"v_add_u32 v{VX+ks}, s43, v{VA+ks}")
    k(f"""v_mov_b32 v{vPR}, {LPR}
    s_lshl_b32 s11, {sW}, 2
    v_add_u32 v{vPW}, s11, v{vPR}
    s_lshl_b32 s11, {sW}, 1
    v_add_u32 v{vS}, s11, v{T+2}""")
    stamp(k, 1)
    vm.wait("par")
    k(f"""v_lshlrev_b32 v{pDt}, 16, v{pDt}
    v_lshlrev_b32 v{pLre}, 16, v{pLre}
    v_mul_f32 v{pDt}, {fl(LOG2E)}, v{pDt}
    v_lshlrev_b32 v{pLim}, 16, v{pLim}
    v_exp_f32 v{pDt}, v{pDt}
    v_cvt_pk_bf16_f32 v{pDt}, v{pDt}, v{pDt}
    v_lshlrev_b32 v{pDt}, 16, v{pDt}
    v_mul_f32 v{va}, v{pDt}, v{pLre}
    v_mul_f32 v{vth}, v{pDt}, v{pLim}
    v_mul_f32 v{va}, {fl(LOG2E)}, v{va}
    v_mul_f32 v{vth}, {fl(INV2PI)}, v{vth}""")
    cexp(k, va, vth, "1.0", lr, li, T, T+1)
    cexp(k, va, vth, fl(16.0), l16r, l16i, T, T+1)
    stamp(k, 12)
    def rd(slot, ks):
        f = FR + 12 * (ks % 3)
        k(f"ds_read_b128 {vr(f,4)}, v{VX+ks} offset:{(slot&1)*8192}")
        k(f"ds_read_b128 {vr(f+4,4)}, v{VA+ks} offset:{LB + slot*16384}")
        k(f"ds_read_b128 {vr(f+8,4)}, v{VA+ks} offset:{LB + slot*16384 + 8192}")
    for slot in range(4):
        vm.wait(f"X{slot}")
        prog_set(k, vPW, T, slot + 1)
        prog_wait4(k, vPR, T, 0, slot + 1)
        stamp(k, 2 + slot)
        rd(slot, 0); rd(slot, 1)
        for ks in range(8):
            if ks + 2 < 8:
                rd(slot, ks + 2); k("s_waitcnt lgkmcnt(6)")
            elif ks + 1 < 8: k("s_waitcnt lgkmcnt(3)")
            else:
                k("s_waitcnt lgkmcnt(0)")
            f = FR + 12 * (ks % 3)
            z = slot == 0 and ks == 0
            k(f"v_mfma_f32_32x32x16_bf16 {vr(ACR,16)}, {vr(f,4)}, {vr(f+4,4)}, {'0' if z else vr(ACR,16)}")
            k(f"v_mfma_f32_32x32x16_bf16 {vr(ACI,16)}, {vr(f,4)}, {vr(f+8,4)}, {'0' if z else vr(ACI,16)}")
            if ks < 4 and slot < 2: dB(slot + 2, [ks])
            if ks == 7 and slot < 2: dX(slot + 2)
            if ks == 7 and slot == 1: vm.op(f"global_load_dword v{vTG}, v{vZ}, {DBG} sc1", "tag")
    stamp(k, 6)
    for t in range(1, 16):
        cfma(k, ACR + t, ACI + t, lr, li, ACR + t - 1, ACI + t - 1)
    k(f"""v_mov_b32 v{T}, v{ACR+15}
    v_mov_b32 v{T+1}, v{ACI+15}
    v_lshlrev_b32 v{T+2}, 3, v1
    v_add_u32 v{T+3}, s43, v{T+2}
    ds_write_b64 v{T+3}, {vr(T,2)} offset:4096""")
    prog_set(k, vPW, T + 4, 5)
    k(f"""v_and_b32 v{T+5}, 0xf8, v{T+2}
    v_add_u32 v{T+5}, {LX + 4096}, v{T+5}""")
    get_tag(k, vm, vTG, vZ)
    prog_wait4(k, vPR, T, 0, 5)
    for s in range(8):
        k(f"ds_read_b64 {vr(EX+2*s,2)}, v{T+5} offset:{(s>>1)*16384 + (s&1)*256}")
    k(f"v_mov_b32 v{Sr}, 0\nv_mov_b32 v{Si}, 0")
    for s in range(1, 8):
        k(f"s_waitcnt lgkmcnt({7-s})")
        k(f"v_cmp_eq_u32 vcc, {s}, v{vS}")
        cfma(k, EX + 2*s, EX + 2*s + 1, l16r, l16i, EX + 2*s - 2, EX + 2*s - 1)
        k(f"v_cndmask_b32 v{Sr}, v{Sr}, v{EX+2*s-2}, vcc\nv_cndmask_b32 v{Si}, v{Si}, v{EX+2*s-1}, vcc")
    L = k.lab("NE")
    k(f"""v_mov_b32 v{T}, v{EX+14}
    v_mov_b32 v{T+1}, v{EX+15}
    v_mov_b32 v{T+2}, {sTAG}
    v_mov_b32 v{T+3}, {sTAG}
    s_lshl_b32 s14, {sJ}, 13
    s_add_u32 s14, s14, {E_OFF}
    v_lshl_add_u32 v{T+5}, v1, 4, s14
    s_lshl_b32 s15, {sC}, 9
    v_add_u32 v{T+4}, s15, v{T+5}
    s_cmp_lg_u32 {sW}, 0
    s_cbranch_scc1 {L}
    s_mov_b64 exec, 0xffffffff
    global_store_dwordx4 v{T+4}, {vr(T,4)}, {WS} sc1
    s_mov_b64 exec, -1
    {L}:""")
    prog_set(k, vPW, T + 6, 6)
    vGA = ra(); vGB = ra()
    k(f"v_mov_b32 v{vGA}, v{T+5}\nv_add_u32 v{vGB}, 4096, v{T+5}")
    stamp(k, 7)
    if FUSED: c_dma(k, vm, VP, 0, sW)
    k(f"""v_mul_f32 v{T}, v{pLre}, v{pLre}
    v_fmac_f32 v{T}, v{pLim}, v{pLim}
    v_rcp_f32 v{T}, v{T}
    v_add_f32 v{T+1}, -1.0, v{lr}
    v_mul_f32 v{c2r}, v{T+1}, v{pLre}
    v_fmac_f32 v{c2r}, v{li}, v{pLim}
    v_mul_f32 v{c2i}, v{li}, v{pLre}
    v_fma_f32 v{c2i}, -v{T+1}, v{pLim}, v{c2i}
    v_add_f32 v{T}, v{T}, v{T}
    v_mul_f32 v{c2r}, v{c2r}, v{T}
    v_mul_f32 v{c2i}, v{c2i}, v{T}""")
    cmul(k, RT, RT + 1, c2r, c2i, lr, li)
    for t in range(1, 16): cmul(k, RT + 2*t, RT + 2*t + 1, RT + 2*t - 2, RT + 2*t - 1, lr, li)
    k(f"v_cvt_f32_u32 v{T+2}, v{vS}\nv_mul_f32 v{T+2}, {fl(16.0)}, v{T+2}")
    cexp(k, va, vth, f"v{T+2}", lsr, lsi, T, T + 1)
    k(f"""v_lshrrev_b32 v{T+3}, 5, v1
    s_sub_u32 s14, {sC}, 1
    v_sub_u32 v{T+3}, s14, v{T+3}""")
    for i in range(8):
        k(f"""v_subrev_u32 v{T+4}, {2*i}, v{T+3}
        v_cmp_le_i32 s[{MS+2*i}:{MS+1+2*i}], 0, v{T+4}
        v_max_i32 v{T+4}, 0, v{T+4}
        v_cvt_f32_i32 v{T+2}, v{T+4}
        v_mul_f32 v{T+2}, {fl(128.0)}, v{T+2}""")
        cexp(k, va, vth, f"v{T+2}", Wt + 2*i, Wt + 2*i + 1, T, T + 1)
    vm.wait("gate")
    k(f"v_mov_b32 v{vG}, 0\ns_mov_b32 s14, 0x3f803f80")
    for i in range(8):
        k(f"""v_lshlrev_b32 v{T}, 16, v{GX+i}
        v_and_b32 v{T+1}, 0xffff0000, v{GX+i}
        v_lshlrev_b32 v{T+2}, 16, v{GWv+i}
        v_and_b32 v{T+3}, 0xffff0000, v{GWv+i}
        v_mul_f32 v{T}, v{T}, v{T+2}
        v_mul_f32 v{T+1}, v{T+1}, v{T+3}
        v_cvt_pk_bf16_f32 v{T}, v{T}, v{T+1}
        v_lshlrev_b32 v{T+1}, 16, v{T}
        v_and_b32 v{T}, 0xffff0000, v{T}
        v_add_f32 v{vG}, v{vG}, v{T+1}
        v_add_f32 v{vG}, v{vG}, v{T}""")
    for sh in (1, 2, 4, 8):
        k(f"v_add_f32_dpp v{vG}, v{vG}, v{vG} row_ror:{sh} row_mask:0xf bank_mask:0xf")
    k(f"""v_mov_b32 v{T}, v{vG}
    v_permlane16_swap_b32 v{T}, v{vG}
    v_add_f32 v{vG}, v{vG}, v{T}
    v_cvt_pk_bf16_f32 v{vG}, v{vG}, v{vG}
    v_lshlrev_b32 v{vG}, 16, v{vG}
    v_mul_f32 v{vG}, {fl(-LOG2E)}, v{vG}
    v_exp_f32 v{vG}, v{vG}
    v_add_f32 v{vG}, 1.0, v{vG}
    v_rcp_f32 v{vG}, v{vG}
    v_cvt_pk_bf16_f32 v{vG}, v{vG}, v{vG}
    v_lshlrev_b32 v{vG}, 16, v{vG}""")
    for t in range(16):
        k(f"""v_mul_f32 v{T}, v{c2i}, v{ACI+t}
        v_mul_f32 v{ACI+t}, v{c2r}, v{ACI+t}
        v_fmac_f32 v{ACI+t}, v{c2i}, v{ACR+t}
        v_fma_f32 v{ACR+t}, v{c2r}, v{ACR+t}, -v{T}""")
    stamp(k, 8)
    L, D = k.lab("GE"), k.lab("GD")
    k(f"""v_mov_b32 v{Hr}, 0
    v_mov_b32 v{Hi}, 0
    s_cmp_eq_u32 {sC}, 0
    s_cbranch_scc1 {D}
    s_mov_b32 s11, {SPIN}
    {L}:""")
    for i in range(8):
        k(f"global_load_dwordx4 {vr(EG+4*i,4)}, v{vGA if i < 4 else vGB}, {WS} offset:{(i&3)*1024} sc1")
    k("s_waitcnt vmcnt(0)\ns_mov_b64 s[12:13], 0")
    for i in range(8):
        k(f"""v_cmp_ne_u32 vcc, {sTAG}, v{EG+4*i+2}
        s_and_b64 vcc, vcc, s[{MS+2*i}:{MS+1+2*i}]
        s_or_b64 s[12:13], s[12:13], vcc""")
    L2 = k.lab("GX")
    k(f"""s_sub_u32 s11, s11, 1
    s_cmp_eq_u32 s11, 0
    s_cbranch_scc1 {L2}
    s_cmp_lg_u64 s[12:13], 0
    s_cbranch_scc1 {L}
    {L2}:""")
    for i in range(8):
        k(f"s_mov_b64 exec, s[{MS+2*i}:{MS+1+2*i}]")
        cfma(k, Hr, Hi, Wt + 2*i, Wt + 2*i + 1, EG + 4*i, EG + 4*i + 1)
    k(f"""s_mov_b64 exec, -1
    v_mov_b32 v{T}, v{Hr}
    v_mov_b32 v{T+1}, v{Hi}
    v_permlane32_swap_b32 v{T}, v{Hr}
    v_permlane32_swap_b32 v{T+1}, v{Hi}
    v_add_f32 v{Hr}, v{Hr}, v{T}
    v_add_f32 v{Hi}, v{Hi}, v{T+1}
    {D}:""")
    stamp(k, 9)
    k("s_load_dwordx2 s[16:17], s[0:1], 0")
    cfma(k, Sr, Si, lsr, lsi, Hr, Hi)
    for t in range(16): cfma(k, ACR + t, ACI + t, RT + 2*t, RT + 2*t + 1, Sr, Si)
    HB = EG
    for t in range(8):
        k(f"v_cvt_pk_bf16_f32 v{HB+t}, v{ACR+2*t}, v{ACR+2*t+1}")
        k(f"v_cvt_pk_bf16_f32 v{HB+8+t}, -v{ACI+2*t}, -v{ACI+2*t+1}")
    k(f"""s_lshl_b32 s43, {sW}, 14
    s_add_u32 s43, s43, {LX}
    v_lshl_add_u32 v{T}, v1, 5, s43
    ds_write_b128 v{T}, {vr(HB,4)}
    ds_write_b128 v{T}, {vr(HB+4,4)} offset:16
    ds_write_b128 v{T}, {vr(HB+8,4)} offset:2048
    ds_write_b128 v{T}, {vr(HB+12,4)} offset:2064
    v_lshrrev_b32 v{T+1}, 4, v1
    v_and_b32 v{T+2}, 15, v1
    v_lshlrev_b32 v{T+2}, 3, v{T+2}
    v_lshl_add_u32 v{T+1}, v{T+1}, 8, v{T+2}
    v_add_u32 v{T+1}, s43, v{T+1}
    s_lshl_b32 s14, {sC}, 3
    s_lshl_b32 s15, {sW}, 1
    s_add_u32 s14, s14, s15
    s_lshl_b32 s14, s14, 15
    s_lshl_b32 s15, {sJ}, 11
    s_add_u32 s14, s14, s15
    s_add_u32 s14, s14, {H_OFF}
    v_lshl_add_u32 v{T+2}, v1, 4, s14
    v_add_u32 v{T+3}, 32768, v{T+2}
    s_waitcnt lgkmcnt(0)""")
    HF = EG + 16
    for hh in range(2):
        for comp in range(2):
            f = HF + 4 * (2*hh + comp)
            k(f"ds_read_b64_tr_b16 {vr(f,2)}, v{T+1} offset:{comp*2048 + hh*1024}")
            k(f"ds_read_b64_tr_b16 {vr(f+2,2)}, v{T+1} offset:{comp*2048 + hh*1024 + 128}")
    for hh in range(2):
        for comp in range(2):
            f = HF + 4 * (2*hh + comp)
            k(f"s_waitcnt lgkmcnt({6 - 2*(2*hh+comp)})")
            k(f"global_store_dwordx4 v{T+2+hh}, {vr(f,4)}, {WS} offset:{comp*1024} sc1")
    k(f"""v_mov_b32 v{T+5}, v{vG}
    v_mov_b32 v{T+4}, v{vG}
    v_mov_b32 v{T+6}, {sTAG}
    v_permlane32_swap_b32 v{T+4}, v{T+5}
    v_mov_b32 v{T+7}, {sTAG}
    s_lshl_b32 s14, {sC}, 2
    s_add_u32 s14, s14, {sW}
    s_lshl_b32 s14, s14, 4
    s_add_u32 s14, s14, {sJ}
    s_lshl_b32 s14, s14, 4
    s_add_u32 s14, s14, {F2_OFF}
    v_mov_b32 v{T}, s14
    s_waitcnt vmcnt(0)
    s_mov_b64 exec, 1
    global_store_dwordx4 v{T}, {vr(T+4,4)}, {WS} sc1
    s_mov_b64 exec, -1""")
    stamp(k, 10)
    if FUSED:
        vm.q = []
        prog_set(k, vPW, T + 1, 7)
        prog_wait4(k, vPR, T, 0, 7)
        c_dma(k, vm, VP, 1, sW)
        vm.all()
        prog_set(k, vPW, T + 1, 8)
        stamp(k, 11)
    stamps_out(k, 0)
    k(f"s_branch {k.label}_P2" if FUSED else "s_endpgm")
    return ra.hi

def pcmul(k, d, a, b):
    k(f"v_pk_mul_f32 {vr(d,2)}, {vr(a,2)}, {vr(b,2)} op_sel:[0,0] op_sel_hi:[0,1]")
    k(f"v_pk_fma_f32 {vr(d,2)}, {vr(a,2)}, {vr(b,2)}, {vr(d,2)} op_sel:[1,1,0] op_sel_hi:[1,0,1] neg_lo:[1,0,0]")

def s4(k):
    ra = RA(); vm = VM(k)
    sWp, sCH, sH, sD, sLC, sSC = "s60", "s61", "s62", "s63", "s64", "s65"
    T = ra(8, 4); vZ = ra(); vTG = ra(); vPW = ra(); vPP = ra(); vFA = ra(); va = ra(); vth = ra()
    VF = ra(8); VG = ra(); vYA = ra(); vSC = ra(); vSP = ra()
    ACC = ra(32, 4)
    base = ra.n
    XL = ra(8, 4); XO = ra(8, 4); PA = ra(8)
    IX = ra(20); SW = ra(16); SR = ra(4); DA = ra(3); vXS = ra(2)
    Z = ra(32, 2); TB = ra(18, 2); U = ra(4, 2); z16 = ra(2, 2); PKD = ra(4)
    OPB = ra(16, 4); OPA = ra(32, 4); KD = ra(12, 4)
    k(f"""s_setprio 3
    s_sub_u32 {sWp}, {sW}, 4
    s_lshr_b32 {sCH}, {sWp}, 1
    s_and_b32 {sH}, {sWp}, 1
    s_lshl_b32 {sD}, s2, 1
    s_add_u32 {sD}, {sD}, {sCH}
    s_mul_i32 {sLC}, {sCH}, {CHS}
    s_add_u32 {sLC}, {sLC}, {LS}
    s_xor_b32 {sSC}, {sH}, 1
    s_lshl_b32 {sSC}, {sSC}, 12
    s_add_u32 {sSC}, {sSC}, {sLC}
    s_add_u32 {sSC}, {sSC}, {LP + 64 - LS}
    s_lshl_b32 s14, {sC}, 7
    s_lshl_b32 s15, {sH}, 6
    s_add_u32 s14, s14, s15
    s_lshl_b32 s15, {sJ}, 5
    s_lshl_b32 s11, {sCH}, 4
    s_add_u32 s15, s15, s11
    s_lshl_b32 s12, s14, 10
    s_lshl_b32 s13, s15, 1
    s_add_u32 s12, s12, s13
    v_and_b32 v{T}, 7, v1
    v_lshrrev_b32 v{T+1}, 3, v1
    v_lshlrev_b32 v{T+2}, 13, v{T+1}
    v_lshl_add_u32 v{T+2}, v{T}, 2, v{T+2}
    v_add_u32 v{T+2}, s12, v{T+2}
    v_add_u32 v{T+3}, 4096, v{T+2}""")
    for i in range(8):
        vm.op(f"global_load_dword v{XL+i}, v{T+2+(i>>2)}, {X_} offset:{(i&3)*1024}", "xl")
    k(f"""s_lshl_b32 s12, {sD}, 8
    s_lshl_b32 s13, {sH}, 7
    s_add_u32 s12, s12, s13
    v_lshl_add_u32 v{T+4}, v1, 1, s12
    s_lshl_b32 s12, {sD}, 1
    v_mov_b32 v{T+5}, s12
    v_mov_b32 v{vZ}, 0""")
    vm.op(f"global_load_ushort v{PA+6}, v{T+5}, {BLDT}", "par")
    for i, p in enumerate((SARE, SAIM, SBRE, SBIM, SCRE, SCIM)):
        vm.op(f"global_load_ushort v{PA+i}, v{T+4}, {p}", "par")
    k("s_barrier")
    k(f"""s_lshl_b32 s12, s15, 12
    s_lshl_b32 s13, s14, 1
    s_add_u32 s12, s12, s13
    s_add_u32 s12, s12, {XT_OFF}
    v_lshlrev_b32 v{vXS}, 13, v{T}
    v_lshl_add_u32 v{vXS}, v{T+1}, 4, v{vXS}
    v_add_u32 v{vXS}, s12, v{vXS}
    v_add_u32 v{vXS+1}, 4096, v{vXS}
    s_lshl_b32 s12, {sJ}, 1
    s_add_u32 s12, s12, {sCH}
    s_lshl_b32 s12, s12, 4
    s_add_u32 s12, s12, {sC}
    s_lshl_b32 s12, s12, 1
    s_add_u32 s12, s12, {sH}
    s_lshl_b32 s12, s12, 2
    s_add_u32 s66, s12, {F1_OFF}
    s_lshl_b32 s12, {sW}, 2
    s_add_u32 s12, s12, {LPR}
    v_mov_b32 v{vPW}, s12
    v_xor_b32 v{vPP}, 4, v{vPW}
    v_lshl_add_u32 v{SW}, v1, 2, {sSC}
    v_lshl_add_u32 v{vSC}, v1, 4, {sSC}
    v_and_b32 v{T}, 15, v1
    v_lshrrev_b32 v{T+1}, 4, v1
    v_xor_b32 v{T+2}, v{T}, v{T+1}
    v_lshlrev_b32 v{T+2}, 4, v{T+2}
    v_lshl_add_u32 v{T+2}, v{T}, 8, v{T+2}
    v_add_u32 v{SR}, {sSC}, v{T+2}""")
    for r in range(1, 16): k(f"v_xor_b32 v{SW+r}, {16*r}, v{SW}")
    for s in range(1, 4): k(f"v_xor_b32 v{SR+s}, {64*s}, v{SR}")
    k(f"""s_add_u32 s12, {sLC}, 16
    v_lshlrev_b32 v{T+2}, 4, v{T+1}
    v_lshl_add_u32 v{DA}, v{T}, 6, v{T+2}
    v_add_u32 v{DA}, s12, v{DA}
    v_lshl_add_u32 v{T+3}, v{T}, 5, v{T+2}
    v_lshlrev_b32 v{T+4}, 8, v{T+1}
    v_lshl_add_u32 v{T+5}, v{T}, 4, v{T+4}
    v_cmp_gt_u32 vcc, 2, v{T+1}
    v_cndmask_b32 v{DA+1}, v{T+5}, v{T+3}, vcc
    v_add_u32 v{DA+1}, s12, v{DA+1}
    v_lshl_add_u32 v{DA+2}, v{T}, 3, v{T+4}
    v_add_u32 v{DA+2}, s12, v{DA+2}""")
    k(f"""s_lshl_b32 s12, {sH}, 9
    s_add_u32 s12, s12, {sLC}
    s_add_u32 s12, s12, {LP - LS + 26*4}
    v_lshlrev_b32 v{T+2}, 5, v{T+1}
    v_lshl_add_u32 v{VF}, v{T}, 2, s12
    v_sub_u32 v{VF}, v{VF}, v{T+2}
    s_mul_i32 s12, {sCH}, {XTS}
    s_add_u32 s67, s12, {LXT}
    s_lshl_b32 s13, {sH}, 8
    s_sub_u32 s12, s67, s13
    s_add_u32 s12, s12, {480 - 192}
    v_lshlrev_b32 v{T+2}, 4, v{T+1}
    v_lshl_add_u32 v{VG}, v{T}, 5, v{T+2}
    v_add_u32 v{VG}, s12, v{VG}
    s_lshl_b32 s12, {sD}, 12
    s_lshl_b32 s13, {sH}, 11
    s_add_u32 s68, s12, s13
    s_add_u32 s12, s68, {Y_OFF}
    v_and_b32 v{T+2}, 1, v{T+1}
    v_lshlrev_b32 v{T+2}, 9, v{T+2}
    v_lshl_add_u32 v{T+2}, v{T}, 5, v{T+2}
    v_lshrrev_b32 v{T+3}, 1, v{T+1}
    v_lshl_add_u32 v{T+2}, v{T+3}, 4, v{T+2}
    v_add_u32 v{vYA}, s12, v{T+2}
    s_lshr_b32 s12, s2, 3
    s_lshl_b32 s12, s12, 7
    s_add_u32 s12, s12, {F1_OFF}
    v_and_b32 v{T+2}, 31, v1
    v_lshl_add_u32 v{vFA}, v{T+2}, 2, s12""")
    for m in range(1, 8): k(f"v_add_u32 v{VF+m}, {1024*m}, v{VF}")
    k(f"""s_lshl_b32 s12, {sH}, 10
    s_sub_u32 s12, s12, 1
    v_lshl_add_u32 v{T}, v1, 2, s12
    v_cvt_f32_i32 v{T+1}, v{T}
    s_add_u32 s13, {sLC}, 16
    s_sub_u32 s12, s13, {0x4280*4}
    v_mov_b32 v{T+7}, s12
    v_lshl_add_u32 v{T+6}, v{T}, 2, s13
    s_cmp_eq_u32 {sH}, 0
    s_cselect_b64 vcc, -1, 0""")
    for it in range(4):
        for e in range(5):
            c = 256*it + e
            if c: k(f"v_add_f32 v{PKD+(e&1)}, {fl(float(c))}, v{T+1}")
            else: k(f"v_mov_b32 v{PKD}, v{T+1}")
            if e & 1 or e == 4:
                k(f"v_cvt_pk_bf16_f32 v{T+2}, v{PKD}, v{PKD+1}")
                e0 = e & ~1
                k(f"v_mad_u32_u16 v{IX+5*it+e0}, v{T+2}, 4, v{T+7}")
                if e & 1: k(f"v_mad_u32_u16 v{IX+5*it+e}, v{T+2}, 4, v{T+7} op_sel:[1,0,0,0]")
    for e in range(5):
        k(f"v_add_u32 v{T+2}, {4*e}, v{T+6}\nv_cndmask_b32 v{IX+e}, v{IX+e}, v{T+2}, vcc")
    vm.wait("xl")
    k("s_mov_b32 s12, 0x05040100\ns_mov_b32 s13, 0x07060302")
    for i in range(4):
        k(f"v_perm_b32 v{XO+i}, v{XL+2*i+1}, v{XL+2*i}, s12")
        k(f"v_perm_b32 v{XO+4+i}, v{XL+2*i+1}, v{XL+2*i}, s13")
    vm.op(f"global_store_dwordx4 v{vXS}, {vr(XO,4)}, {WS} sc1", "xs")
    vm.op(f"global_store_dwordx4 v{vXS+1}, {vr(XO+4,4)}, {WS} sc1", "xs")
    vm.op(f"global_load_dword v{vTG}, v{vZ}, {DBG} sc1", "tag")
    stamp(k, 1)
    vm.wait("par")
    for i in range(7): k(f"v_lshlrev_b32 v{PA+i}, 16, v{PA+i}")
    k(f"""v_mul_f32 v{PA+6}, {fl(LOG2E)}, v{PA+6}
    v_exp_f32 v{PA+6}, v{PA+6}
    v_cvt_pk_bf16_f32 v{PA+6}, v{PA+6}, v{PA+6}
    v_lshlrev_b32 v{PA+6}, 16, v{PA+6}
    v_mul_f32 v{va}, v{PA+6}, v{PA}
    v_mul_f32 v{vth}, v{PA+6}, v{PA+1}
    v_mul_f32 v{va}, {fl(LOG2E)}, v{va}
    v_mul_f32 v{vth}, {fl(INV2PI)}, v{vth}
    v_mul_f32 v{PA+2}, v{PA+6}, v{PA+2}
    v_mul_f32 v{PA+3}, v{PA+6}, v{PA+3}""")
    stamp(k, 11)
    cmul(k, U, U + 1, PA + 4, PA + 5, PA + 2, PA + 3)
    cexp(k, va, vth, fl(16.0), z16, z16 + 1, T, T + 1)
    cexp(k, va, vth, "1.0", Z + 2, Z + 3, T + 2, T + 3)
    cexp(k, va, vth, fl(256.0), TB + 2, TB + 3, T + 4, T + 5)
    npk = [0]
    def put(row, src, neg=False):
        p = PKD + (npk[0] & 3); npk[0] += 1
        k(f"v_cvt_pk_bf16_f32 v{p}, v{src}, {'-' if neg else ''}v{src+1}")
        k(f"ds_write_b32 v{SW+row}, v{p} offset:{256*row}")
    def get(dst):
        for s in range(4): k(f"ds_read_b128 {vr(dst+4*s,4)}, v{SR+s}")
    for m in range(16):
        cur = U + 2 * (m & 1)
        if m < 15: pcmul(k, U + 2 * ((m + 1) & 1), cur, z16)
        put(m, cur, True)
        r = m + 2
        if r < 16:
            if r % 2 == 0: pcmul(k, Z + 2*r, Z + r, Z + r)
            else: pcmul(k, Z + 2*r, Z + 2*r - 2, Z + 2)
    get(OPB)
    k(f"v_mov_b32 v{Z}, 1.0\nv_mov_b32 v{Z+1}, 0")
    tb = [(2,1,1),(3,2,1),(4,2,2),(6,3,3),(5,4,1),(8,4,4),(7,6,1)]
    for r in range(16):
        put(r, Z + 2*r)
        if r < 7: pcmul(k, TB + 2*tb[r][0], TB + 2*tb[r][1], TB + 2*tb[r][2])
    get(OPA)
    stamp(k, 12)
    get_tag(k, vm, vTG, vZ)
    k(f"""v_mov_b32 v{T}, s66
    v_mov_b32 v{T+1}, {sTAG}
    s_waitcnt vmcnt(0)
    s_mov_b64 exec, 1
    global_store_dword v{T}, v{T+1}, {WS} sc1
    s_mov_b64 exec, -1""")
    stamp(k, 2)
    rows1 = [(1, 2*i) for i in range(8)] + [(2, 4*i) for i in range(4)] + [(3, 4*i) for i in range(4)]
    rows2 = [(4 + (i >> 1), 8 * (i & 1)) for i in range(9)]
    def vrows(rows):
        for r, (B, f) in enumerate(rows):
            if f == 0: put(r, TB + 2*B)
            else:
                d = U + 2 * (r & 1)
                pcmul(k, d, TB + 2*B, Z + 2*f); put(r, d)
    vrows(rows1)
    get(OPA + 16)
    k("s_waitcnt lgkmcnt(15)")
    for s in range(4):
        k(f"v_mfma_f32_16x16x32_bf16 {vr(KD,4)}, {vr(OPA+4*s,4)}, {vr(OPB+4*s,4)}, {'0' if s == 0 else vr(KD,4)}")
    stamp(k, 9)
    vrows(rows2)
    get(OPA)
    k("s_waitcnt lgkmcnt(13)")
    for s in range(4):
        k(f"v_mfma_f32_16x16x32_bf16 {vr(KD+4,4)}, {vr(OPA+16+4*s,4)}, {vr(OPB+4*s,4)}, {'0' if s == 0 else vr(KD+4,4)}")
    k(f"ds_write_b128 v{vSC}, {vr(KD,4)}")
    k("s_waitcnt lgkmcnt(1)")
    for s in range(4):
        k(f"v_mfma_f32_16x16x32_bf16 {vr(KD+8,4)}, {vr(OPA+4*s,4)}, {vr(OPB+4*s,4)}, {'0' if s == 0 else vr(KD+8,4)}")
    k(f"ds_write_b128 v{vSC}, {vr(KD+4,4)} offset:1024")
    k(f"global_load_dword v{T+6}, v{vFA}, {WS} sc1")
    k(f"s_lshl_b32 s12, {sH}, 12\ns_add_u32 s12, s12, {sLC}\ns_add_u32 s12, s12, {LP+64-LS}\nv_lshl_add_u32 v{vSP}, v1, 4, s12")
    k(f"ds_write_b128 v{vSC}, {vr(KD+8,4)} offset:2048")
    stamp(k, 10)
    prog_set(k, vPW, T, 1)
    prog_wait1(k, vPP, T, 1)
    stamp(k, 3)
    for i in range(3): k(f"ds_read_b128 {vr(OPA+4*i,4)}, v{vSP} offset:{1024*i}")
    for i in range(3):
        k(f"s_waitcnt lgkmcnt(2)")
        for r in range(4): k(f"v_add_f32 v{KD+4*i+r}, v{KD+4*i+r}, v{OPA+4*i+r}")
        if i < 2: k(f"ds_write_b128 v{DA+i}, {vr(KD+4*i,4)} offset:{1024*i}")
    k(f"""s_mov_b32 exec_hi, 1
    ds_write_b64 v{DA+2}, {vr(KD+8,2)} offset:2048
    s_mov_b32 exec_hi, 0
    ds_write_b64 v{DA+2}, {vr(KD+10,2)} offset:{2048+128}
    s_mov_b32 exec_hi, -1""")
    KV = Z; PO = OPB
    for it in range(4):
        for e in range(5): k(f"ds_read_b32 v{KV+5*it+e}, v{IX+5*it+e}")
        if it == 2: k("s_waitcnt lgkmcnt(10)")
    for it in range(4):
        k(f"s_waitcnt lgkmcnt({15 - 4*it})")
        for e in range(4): k(f"v_cvt_pk_bf16_f32 v{PO+4*it+e}, v{KV+5*it+e+1}, v{KV+5*it+e}")
        k(f"ds_write_b128 v{vSP}, {vr(PO+4*it,4)} offset:{1024*it}")
    stamp(k, 4)
    L, D = k.lab("F1"), k.lab("F1D")
    k(f"""s_mov_b32 s11, {SPIN}
    s_waitcnt vmcnt(0)
    v_cmp_ne_u32 vcc, {sTAG}, v{T+6}
    s_cbranch_vccz {D}
    {L}:
    global_load_dword v{T+6}, v{vFA}, {WS} sc1
    s_sub_u32 s11, s11, 1
    s_cmp_eq_u32 s11, 0
    s_cbranch_scc1 {D}
    s_waitcnt vmcnt(0)
    v_cmp_ne_u32 vcc, {sTAG}, v{T+6}
    s_cbranch_vccnz {L}
    {D}:
    v_lshl_add_u32 v{T+1}, v1, 4, s68
    global_load_dwordx4 {vr(XL,4)}, v{T+1}, {WS} sc1
    global_load_dwordx4 {vr(XL+4,4)}, v{T+1}, {WS} offset:1024 sc1
    s_lshl_b32 s12, {sH}, 11
    s_add_u32 s12, s12, s67
    v_lshl_add_u32 v{T+2}, v1, 4, s12""")
    stamp(k, 5)
    k(f"""s_waitcnt vmcnt(1)
    ds_write_b128 v{T+2}, {vr(XL,4)} offset:512
    s_waitcnt vmcnt(0)
    ds_write_b128 v{T+2}, {vr(XL+4,4)} offset:1536
    s_waitcnt lgkmcnt(0)""")
    prog_set(k, vPW, T, 2)
    prog_wait1(k, vPP, T, 2)
    stamp(k, 6)
    k("s_setprio 0")
    ra.n = base
    FB = [ra(32, 4), ra(32, 4)]; GB = [ra(32, 4), ra(32, 4)]
    def reads(kk):
        o = []
        F, G = FB[kk & 1], GB[kk & 1]
        for i in range(8):
            o.append(f"ds_read_b128 {vr(G+4*i,4)}, v{VG} offset:{512*i + 192 - 64*kk}")
            o.append(f"ds_read2_b32 {vr(F+4*i,2)}, v{VF+i} offset0:{32*kk+6} offset1:{32*kk+4}")
            o.append(f"ds_read2_b32 {vr(F+4*i+2,2)}, v{VF+i} offset0:{32*kk+2} offset1:{32*kk}")
        return o
    for l in reads(0): k(l)
    for kk in range(4):
        k("s_waitcnt lgkmcnt(0)")
        nxt = reads(kk + 1) if kk < 3 else []
        F, G = FB[kk & 1], GB[kk & 1]
        for n in range(8):
            for m in range(8 - n):
                a = ACC + 4 * (m + n)
                z = kk == 0 and n == 0
                k(f"v_mfma_f32_16x16x32_bf16 {vr(a,4)}, {vr(F+4*m,4)}, {vr(G+4*n,4)}, {'0' if z else vr(a,4)}")
                if nxt: k(nxt.pop(0))
        if kk == 2: pass
    stamp(k, 7)
    prog_set(k, vPW, T, 3)
    prog_wait1(k, vPP, T, 3)
    RD = FB[0]; YO = FB[0] + 16
    L1, L2 = k.lab("RH"), k.lab("RE")
    k(f"s_cmp_lg_u32 {sH}, 0\ns_cbranch_scc1 {L1}")
    for h in range(2):
        keep, send = ACC + 16*h, ACC + 16*(1-h)
        for q in range(4): k(f"ds_write_b128 v{vSC}, {vr(send+4*q,4)} offset:{1024*q}")
        prog_set(k, vPW, T, 4)
        prog_wait1(k, vPP, T, 4)
        for q in range(4): k(f"ds_read_b128 {vr(RD+4*q,4)}, v{vSP} offset:{1024*q}")
        for q in range(4):
            k(f"s_waitcnt lgkmcnt({3-q})")
            for r in range(4): k(f"v_add_f32 v{RD+4*q+r}, v{RD+4*q+r}, v{keep+4*q+r}")
        if h == 0: k(f"s_branch {L2}\n{L1}:")
    k(f"{L2}:")
    for q in range(4):
        for r in range(2): k(f"v_cvt_pk_bf16_f32 v{YO+2*q+r}, v{RD+4*q+2*r}, v{RD+4*q+2*r+1}")
    for p in range(2):
        for r in range(2): k(f"v_permlane16_swap_b32 v{YO+4*p+r}, v{YO+4*p+2+r}")
    for p in range(2):
        k(f"global_store_dwordx4 v{vYA}, {vr(YO+4*p,4)}, {WS} offset:{1024*p} sc1")
    k(f"""s_lshl_b32 s12, {sH}, 9
    s_add_u32 s12, s12, {sD}
    s_lshl_b32 s12, s12, 2
    s_add_u32 s12, s12, {F3_OFF}
    v_mov_b32 v{T}, s12
    v_mov_b32 v{T+1}, {sTAG}
    s_waitcnt vmcnt(0)
    s_mov_b64 exec, 1
    global_store_dword v{T}, v{T+1}, {WS} sc1
    s_mov_b64 exec, -1""")
    stamp(k, 8)
    stamps_out(k, 0)
    if not FUSED: k("s_endpgm")
    return ra.hi

def spin_until(k, body, check):
    L, D = k.lab("SP"), k.lab("SD")
    k(f"s_mov_b32 s11, {SPIN}\n{L}:")
    k(body)
    k(f"s_sub_u32 s11, s11, 1\ns_cmp_eq_u32 s11, 0\ns_cbranch_scc1 {D}\ns_waitcnt vmcnt(0)")
    k(check)
    k(f"s_cbranch_vccnz {L}\n{D}:\ns_waitcnt vmcnt(0)")

def phase2(k, fused):
    ra = RA(); vm = VM(k)
    sRP, sKQ, sRT, sDP = "s60", "s61", "s62", "s63"
    T = ra(8, 4); VC = ra(4); vH = ra(4); vO = ra(); vRW = ra(); vRR = ra(); vG = ra()
    X2 = ra(4, 2); AD = ra(4, 2); BD = ra(4, 2); Y8 = ra(8); SA = ra(8); GL = ra(4, 4)
    ACC = ra(32, 4); HF = ra(64, 4); CF = ra(96, 4)
    VP = ACC; vF2 = ACC + 4; vF2b = ACC + 5; vF3 = ACC + 6; vYb = ACC + 7; vOdd = ACC + 8; YA = ACC + 16
    k(f"""s_and_b32 {sKQ}, {sW}, 3
    s_lshr_b32 {sRP}, {sW}, 2
    s_and_b32 {sRT}, {sKQ}, 1
    s_lshr_b32 {sDP}, {sKQ}, 1""")
    if not fused:
        k("s_waitcnt lgkmcnt(0)")
        dma_patterns(k, VP, T)
        c_setup(k, sKQ)
        k(f"s_lshl_b32 s11, {sRP}, 16\ns_add_u32 s77, s77, s11\ns_lshl_b32 s11, {sRP}, 9\ns_add_u32 s76, s76, s11")
        c_dma(k, vm, VP, 0, sKQ)
    k(f"""s_lshl_b32 s12, {sR}, 2
    s_lshl_b32 s13, {sRP}, 1
    s_add_u32 s12, s12, s13
    s_lshl_b32 s14, s12, 15
    s_lshl_b32 s13, {sKQ}, 13
    s_add_u32 s14, s14, s13
    s_add_u32 s14, s14, {H_OFF}
    v_lshl_add_u32 v{vH}, v1, 4, s14
    v_add_u32 v{vH+1}, 4096, v{vH}
    v_add_u32 v{vH+2}, 32768, v{vH}
    v_add_u32 v{vH+3}, {32768+4096}, v{vH}
    s_lshl_b32 s14, s12, 7
    s_lshl_b32 s13, {sKQ}, 6
    s_add_u32 s14, s14, s13
    s_add_u32 s14, s14, {F2_OFF + 8}
    v_and_b32 v{vF2b}, 3, v1
    v_lshl_add_u32 v{vF2b}, v{vF2b}, 4, s14""")
    k(f"""s_add_u32 s12, s12, {sRT}
    s_lshl_b32 s12, s12, 4
    s_lshl_b32 s13, {sDT}, 6
    s_lshl_b32 s14, {sDP}, 5
    s_add_u32 s13, s13, s14
    v_and_b32 v{T}, 15, v1
    v_lshrrev_b32 v{T+1}, 4, v1
    v_add_u32 v{T+2}, s12, v{T}
    v_lshl_add_u32 v{T+3}, v{T+1}, 2, s13
    v_lshlrev_b32 v{T+4}, 1, v{T+3}
    v_lshl_add_u32 v{T+5}, v{T+2}, 10, v{T+4}
    v_lshlrev_b32 v{vO}, 1, v{T+5}
    v_lshlrev_b32 v{vYb}, 1, v{T+2}
    v_lshl_add_u32 v{vYb}, v{T+3}, 12, v{vYb}
    v_add_u32 v{vYb}, {Y_OFF}, v{vYb}
    v_lshrrev_b32 v{vF2}, 1, v{T+2}
    v_lshlrev_b32 v{vF2}, 4, v{vF2}
    v_add_u32 v{vF2}, {F2_OFF}, v{vF2}
    v_and_b32 v{vOdd}, 1, v1
    s_lshr_b32 s14, {sR}, 4
    s_lshl_b32 s14, s14, 9
    s_add_u32 s14, s14, s13
    s_lshl_b32 s14, s14, 2
    s_add_u32 s14, s14, {F3_OFF}
    v_and_b32 v{vF3}, 31, v1
    v_lshl_add_u32 v{vF3}, v{vF3}, 2, s14
    s_waitcnt lgkmcnt(0)""")
    for e in range(2):
        vm.op(f"global_load_dwordx2 {vr(X2+2*e,2)}, v{T+5}, {X_} offset:{32*e}", "ep")
        vm.op(f"global_load_dwordx2 {vr(AD+2*e,2)}, v{T+4}, {ADS} offset:{32*e}", "ep")
        vm.op(f"global_load_dwordx2 {vr(BD+2*e,2)}, v{T+4}, {BDS} offset:{32*e}", "ep")
    for i in range(8):
        e, r = i >> 2, i & 3
        k(f"v_mov_b32 v{Y8+i}, 0\nv_add_u32 v{YA+i}, {(16*e+r)*4096}, v{vYb}")
    k(f"""v_xor_b32 v{T+2}, v{T}, v{T+1}
    v_lshlrev_b32 v{T+2}, 4, v{T+2}
    v_lshl_add_u32 v{T+2}, v{T}, 8, v{T+2}
    s_lshl_b32 s12, {sKQ}, 15
    v_add_u32 v{VC}, s12, v{T+2}""")
    for q in range(1, 4): k(f"v_xor_b32 v{VC+q}, {64*q}, v{VC}")
    k(f"""s_lshl_b32 s12, {sRP}, 15
    s_lshl_b32 s13, {sKQ}, 11
    s_add_u32 s13, s13, s12
    v_lshl_add_u32 v{vRW}, v1, 4, s13
    s_lshl_b32 s13, {sKQ}, 13
    s_add_u32 s13, s13, s12
    v_lshl_add_u32 v{vRR}, v1, 4, s13""")
    stamp(k, 1)
    if fused:
        spin_until(k, f"global_load_dword v{T+6}, v{vF3}, {WS} sc1", f"v_cmp_ne_u32 vcc, {sTAG}, v{T+6}")
    for i in range(8): vm.op(f"global_load_short_d16_hi v{Y8+i}, v{YA+i}, {WS} sc1", "ep")
    stamp(k, 2)
    if not fused:
        vm.wait("C0")
        k("s_barrier")
    else:
        k(f"v_mov_b32 v{T+7}, {LPR}\ns_add_u32 s15, {sDP}, 7")
        prog_wait4(k, T + 7, T, 0, "s15")
    stamp(k, 3)
    def cf(ks, dt): return CF + 4 * ((4 * ks + dt) % 24)
    def crd(ks):
        for dt in range(4):
            k(f"ds_read_b128 {vr(cf(ks,dt),4)}, v{VC+(ks>>1)} offset:{(ks&1)*16384 + dt*4096}")
    for ks in range(6): crd(ks)
    gl = f"global_load_dwordx3 {vr(GL,3)}, v{vF2}, {WS} sc1\nglobal_load_dword v{GL+3}, v{vF2b}, {WS} sc1"
    if fused:
        spin_until(k, gl, f"v_cmp_ne_u32 vcc, {sTAG}, v{GL+2}\nv_cmp_ne_u32 s[12:13], {sTAG}, v{GL+3}\ns_or_b64 vcc, vcc, s[12:13]")
    else:
        k(gl + "\ns_waitcnt vmcnt(0)")
    vm.q = []
    for ks in range(8):
        for rt in range(2):
            vm.op(f"global_load_dwordx4 {vr(HF+8*ks+4*rt,4)}, v{vH+2*rt+(ks>>2)}, {WS} offset:{(ks&3)*1024} sc1", f"h{ks}")
    stamp(k, 4)
    k(f"""v_cmp_eq_u32 vcc, 1, v{vOdd}
    v_cndmask_b32 v{vG}, v{GL}, v{GL+1}, vcc
    v_sub_f32 v{T+7}, 1.0, v{vG}
    v_cvt_pk_bf16_f32 v{T+7}, v{T+7}, v{T+7}
    v_and_b32 v{T+7}, 0xffff0000, v{T+7}""")
    for w in range(4):
        k(f"""v_lshlrev_b32 v{T}, 16, v{X2+w}
        v_and_b32 v{T+1}, 0xffff0000, v{X2+w}
        v_lshlrev_b32 v{T+2}, 16, v{AD+w}
        v_and_b32 v{T+3}, 0xffff0000, v{AD+w}
        v_lshlrev_b32 v{T+4}, 16, v{BD+w}
        v_and_b32 v{T+5}, 0xffff0000, v{BD+w}
        v_mul_f32 v{T+2}, v{T}, v{T+2}
        v_mul_f32 v{T+3}, v{T+1}, v{T+3}
        v_mul_f32 v{T+4}, v{T}, v{T+4}
        v_mul_f32 v{T+5}, v{T+1}, v{T+5}
        v_cvt_pk_bf16_f32 v{T+2}, v{T+2}, v{T+3}
        v_cvt_pk_bf16_f32 v{T+4}, v{T+4}, v{T+5}
        v_lshlrev_b32 v{SA+2*w}, 16, v{T+2}
        v_and_b32 v{SA+2*w+1}, 0xffff0000, v{T+2}
        v_lshlrev_b32 v{T}, 16, v{T+4}
        v_and_b32 v{T+1}, 0xffff0000, v{T+4}
        v_add_f32 v{T}, v{T}, v{Y8+2*w}
        v_add_f32 v{T+1}, v{T+1}, v{Y8+2*w+1}
        v_cvt_pk_bf16_f32 v{T}, v{T}, v{T+1}
        v_and_b32 v{T+1}, 0xffff0000, v{T}
        v_lshlrev_b32 v{T}, 16, v{T}
        v_mul_f32 v{T}, v{T+7}, v{T}
        v_mul_f32 v{T+1}, v{T+7}, v{T+1}
        v_cvt_pk_bf16_f32 v{T}, v{T}, v{T+1}
        v_lshlrev_b32 v{Y8+2*w}, 16, v{T}
        v_and_b32 v{Y8+2*w+1}, 0xffff0000, v{T}""")
    for ks in range(8):
        if ks in (0, 6): k("s_waitcnt lgkmcnt(0)")
        vm.wait(f"h{ks}")
        if ks == 0: stamp(k, 5)
        for dt in range(4):
            for rt in range(2):
                a = ACC + 16 * rt + 4 * dt
                k(f"v_mfma_f32_16x16x32_bf16 {vr(a,4)}, {vr(cf(ks,dt),4)}, {vr(HF+8*ks+4*rt,4)}, {'0' if ks == 0 else vr(a,4)}")
        if ks in (1, 2): crd(ks + 5)
    stamp(k, 6)
    U = HF; TBv = HF + 32
    k("s_barrier")
    for dst in range(4):
        for e in range(2):
            a = ACC + 16 * (dst & 1) + 4 * (2 * (dst >> 1) + e)
            k(f"ds_write_b128 v{vRW}, {vr(a,4)} offset:{dst*8192 + e*1024}")
    k("s_waitcnt lgkmcnt(0)\ns_barrier")
    stamp(k, 7)
    for src in range(4):
        for e in range(2):
            k(f"ds_read_b128 {vr(U+8*src+4*e,4)}, v{vRR} offset:{src*2048 + e*1024}")
    for src in range(4):
        k(f"s_waitcnt lgkmcnt({6-2*src})")
        for i in range(8): k(f"v_add_f32 v{SA+i}, v{SA+i}, v{U+8*src+i}")
    for i in range(8): k(f"v_fma_f32 v{TBv+i}, v{vG}, v{SA+i}, v{Y8+i}")
    for e in range(2):
        k(f"global_store_dwordx4 v{vO}, {vr(TBv+4*e,4)}, {OUTP} offset:{64*e}")
    stamp(k, 8)
    stamps_out(k, 1)
    return ra.hi

def finish(k):
    k(f"{k.label}_END:")
    k.L, n = haz.fix(k.L)
    print(k.label, "nops added", n, "vgpr", k.vgpr, "lines", len(k.L))

k1 = K(NAME + "_kernel", 256, 512, LDS_TOTAL)
prologue(k1)
lds_zero_and_nonce(k1)
k1(f"s_cmp_ge_u32 {sW}, 4\ns_cbranch_scc1 {k1.label}_S4")
h5 = s5(k1)
k1(f"{k1.label}_S4:")
h4 = s4(k1)
k1.vgpr = max(h5, h4); print(h5, h4)
if FUSED:
    k1(f"{k1.label}_P2:")
    k1.vgpr = max(k1.vgpr, phase2(k1, True))
finish(k1)
if FUSED:
    emit([k1], OUT, single=True)
else:
    k2 = K("phase2_kernel", 256, 512, 131072)
    prologue(k2)
    if STAMPS: k2("s_waitcnt lgkmcnt(0)\ns_mov_b32 s80, s98")
    k2.vgpr = phase2(k2, False)
    finish(k2)
    emit([k1, k2], OUT)
```

```python
import sys, math
from lib import *
import haz
FUSED = True
def opt(n, d):
    for a in sys.argv:
        if a.startswith(f"--{n}="): return int(a.split("=")[1])
    return d
def opt_s(n, d):
    for a in sys.argv:
        if a.startswith(f"--{n}="): return a.split("=")[1]
    return d
MAP = opt("map", 1); HST = {0: "", 1: " sc1", 2: " nt", 3: " sc0"}[opt("hst", 1)]
LOC = opt("loc", 0); TW = opt("tw", 2); PFS = opt("pfs", 1); HTS = opt("hts", 1); HTG = opt("htg", 128); CST = opt("cst", 3)
SH1 = opt("sh1", 4); SH2 = opt("sh2", 8); SH3 = opt("sh3", 6)
STAMPS = "--stamps" in sys.argv
OUT = [a for a in sys.argv[1:] if a.endswith(".s")][0]

XT_OFF, H_OFF, Y_OFF, E_OFF = 0, 0x200000, 0x600000, 0x800000
F1_OFF, F2_OFF, F3_OFF, ST_OFF = 0x820000, 0x821000, 0x825000, 0x830000
LB, LX, LS = 0, 65536, 131072
LKC, LP, CHS = LS, LS + 2752, 11008
LPR = LS + 22016
LXT, XTS = LS + 22048, 4608
LH = LS + 31264
LDS_TOTAL = LH + 1024
LOG2E = 1.4426950408889634
INV2PI = 0.15915494309189535
import struct
def fl(x): return "0x%08x" % struct.unpack("<I", struct.pack("<f", x))[0]
SPIN = 1 << 20

X_, LRE, LIM, BRE, BIM, CRE, CIM, ALDT = [f"s[{16+2*i}:{17+2*i}]" for i in range(8)]
ADS, _BU, SARE, SAIM, SBRE, SBIM, SCRE, SCIM = [f"s[{32+2*i}:{33+2*i}]" for i in range(8)]
BLDT, BDS, GW, OUTP, DBG, WS = [f"s[{48+2*i}:{49+2*i}]" for i in range(6)]
sW, sXCD, sI, sC, sJ, sR, sDT = "s3", "s4", "s5", "s6", "s7", "s8", "s9"
sTAG = "s10"

class RA:
    def __init__(s, start=2, end=256): s.n = start; s.end = end; s.hi = start
    def __call__(s, n=1, al=1):
        s.n = (s.n + al - 1) // al * al
        r = s.n; s.n += n; s.hi = max(s.hi, s.n); assert s.n <= s.end, "out of vgprs"
        return r
def vr(a, n): return f"v[{a}:{a+n-1}]" if n > 1 else f"v{a}"

class VM:
    def __init__(s, k): s.k = k; s.q = []
    def op(s, line, tag=None): s.k(line); s.q.append(tag)
    def wait(s, tag):
        idx = max(i for i, t in enumerate(s.q) if t == tag)
        n = len(s.q) - 1 - idx
        n = min(n, 63)
        s.k(f"s_waitcnt vmcnt({n})")
    def all(s): s.k("s_waitcnt vmcnt(0)")

def sreg(i): return 98 if i == 0 else (100 if i == 11 else 76 + 2*i)
def stamp(k, i):
    if STAMPS: k(f"s_memrealtime s[{sreg(i)}:{sreg(i)+1}]")
def stamps_out(k):
    if not STAMPS: return
    k(f"""s_lshl_b32 s11, {sW}, 8
    s_add_u32 s11, s11, s2
    s_lshl_b32 s11, s11, 6
    s_add_u32 s11, s11, {ST_OFF}
    v_mov_b32 v8, s11
    s_mov_b64 exec, 1
    s_waitcnt lgkmcnt(0)""")
    for i in range(12):
        k(f"v_mov_b32 v9, s{sreg(i)}\nglobal_store_dword v8, v9, {WS} offset:{4*i}")

def srd(k, s, ptr, size):
    a = int(ptr[2:ptr.index(":")])
    k(f"s_mov_b32 s{s}, s{a}\ns_and_b32 s{s+1}, s{a+1}, 0xffff\ns_mov_b32 s{s+2}, {size}\ns_mov_b32 s{s+3}, 0x20000")

def prologue(k, first=True):
    k(f"""s_cmp_ge_u32 s2, 256
    s_cbranch_scc1 {k.label}_END
    s_load_dwordx16 s[16:31], s[0:1], 0
    s_load_dwordx16 s[32:47], s[0:1], 64
    s_load_dwordx8 s[48:55], s[0:1], 128
    s_load_dwordx4 s[56:59], s[0:1], 160
    s_memrealtime s[98:99]
    s_getpc_b64 s[12:13]
    {k.label}_PC:
    v_lshrrev_b32 v2, 6, v0
    v_and_b32 v1, 63, v0
    v_readfirstlane_b32 {sW}, v2
    s_and_b32 {sXCD}, s2, 7
    s_lshr_b32 {sI}, s2, 3
    """)
    L = k.lab("NPF")
    k(f"""s_cmp_lg_u32 {sW}, {k.block//64-1}
    s_cbranch_scc1 {L}
    s_and_b32 s11, {sI}, 3
    s_lshl_b32 s11, s11, 13
    v_lshlrev_b32 v2, 7, v1
    v_add_u32 v2, s11, v2
    v_min_u32 v2, {k.label}_END-{k.label}_PC, v2
    global_load_dword v3, v2, s[12:13]
    {L}:
    """)
    if MAP == 0: k(f"""s_and_b32 s11, {sXCD}, 3
    s_and_b32 s14, {sI}, 3
    s_lshl_b32 {sC}, s11, 2
    s_add_u32 {sC}, {sC}, s14
    s_lshr_b32 s15, {sXCD}, 2
    s_lshr_b32 {sDT}, {sI}, 2
    s_lshl_b32 {sJ}, s15, 3
    s_add_u32 {sJ}, {sJ}, {sDT}
    s_lshl_b32 {sR}, s11, 3
    s_lshl_b32 s15, s15, 2
    s_add_u32 {sR}, {sR}, s15
    s_add_u32 {sR}, {sR}, s14
    """)
    else: k(f"""s_and_b32 s11, {sI}, 1
    s_lshl_b32 {sC}, {sXCD}, 1
    s_add_u32 {sC}, {sC}, s11
    s_lshr_b32 {sJ}, {sI}, 1
    s_lshr_b32 {sDT}, {sI}, 2
    s_and_b32 s14, {sI}, 3
    s_lshl_b32 {sR}, {sXCD}, 2
    s_add_u32 {sR}, {sR}, s14
    """)

def lds_zero_and_nonce(k):
    L = k.lab("NN")
    k(f"""s_lshl_b32 s11, {sW}, 10
    s_add_u32 s14, s11, {LS}
    s_add_u32 s15, s11, {LS + CHS - 3072}
    s_cmp_lt_u32 {sW}, 3
    s_cselect_b32 s14, s14, s15
    s_cmp_eq_u32 {sW}, 6
    s_cselect_b32 s14, {LPR}, s14
    s_cmp_eq_u32 {sW}, 7
    s_cselect_b32 s14, {LXT + XTS}, s14
    v_lshl_add_u32 v2, v1, 4, s14
    v_mov_b32 v4, 0
    v_mov_b32 v5, 0
    v_mov_b32 v6, 0
    v_mov_b32 v7, 0
    ds_write_b128 v2, v[4:7]
    s_waitcnt lgkmcnt(0)
    s_or_b32 s11, s2, {sW}
    s_cmp_lg_u32 s11, 0
    s_cbranch_scc1 {L}
    s_or_b32 s11, s98, 1
    v_mov_b32 v5, s11
    s_mov_b64 exec, 1
    global_store_dword v4, v5, {DBG} sc1
    s_mov_b64 exec, -1
    {L}:""")
    if LOC:
        L = k.lab("NA")
        k(f"""s_getreg_b32 s0, hwreg(HW_REG_XCC_ID, 0, 4)
        s_mul_i32 s1, s0, s0
        s_lshl_b32 s1, s1, 9
        s_add_u32 s0, s0, s1
        s_lshl_b32 s0, s0, 6
        s_add_u32 s0, s0, 1
        s_lshl_b32 s1, {sXCD}, 4
        s_add_u32 s1, s1, 128
        s_cmp_lg_u32 {sW}, {opt("locw", 5)}
        s_cbranch_scc1 {L}
        v_mov_b32 v5, s0
        v_mov_b32 v6, s1
        s_mov_b64 exec, 1
        global_atomic_add v6, v5, {DBG}{" sc1" if LOC == 2 else ""}
        s_mov_b64 exec, -1
        {L}:
        s_lshl_b32 s0, s0, 5""")

def get_tag(k, vm, vt, vz):
    L, D = k.lab("TG"), k.lab("TD")
    vm.wait("tag")
    k(f"""v_readfirstlane_b32 {sTAG}, v{vt}
    s_cmp_lg_u32 {sTAG}, 0
    s_cbranch_scc1 {D}
    s_mov_b32 s11, {SPIN}
    {L}:
    global_load_dword v{vt}, v{vz}, {DBG} sc1
    s_waitcnt vmcnt(0)
    v_readfirstlane_b32 {sTAG}, v{vt}
    s_sub_u32 s11, s11, 1
    s_cmp_eq_u32 s11, 0
    s_cbranch_scc1 {D}
    s_cmp_eq_u32 {sTAG}, 0
    s_cbranch_scc1 {L}
    {D}:""")

def prog_set(k, vaddr, vtmp, val):
    k(f"v_mov_b32 v{vtmp}, {val}\nds_write_b32 v{vaddr}, v{vtmp}")
def prog_wait4(k, vz, vt4, off, val):
    L, D = k.lab("PW"), k.lab("PD")
    k(f"""s_mov_b32 s11, {SPIN}
    {L}:
    ds_read_b128 {vr(vt4,4)}, v{vz} offset:{off}
    s_waitcnt lgkmcnt(0)
    v_min3_u32 v{vt4}, v{vt4}, v{vt4+1}, v{vt4+2}
    v_min_u32 v{vt4}, v{vt4}, v{vt4+3}
    s_sub_u32 s11, s11, 1
    v_readfirstlane_b32 s14, v{vt4}
    s_cmp_eq_u32 s11, 0
    s_cbranch_scc1 {D}
    s_cmp_lt_u32 s14, {val}
    s_cbranch_scc1 {L}
    {D}:""")
def prog_wait1(k, vaddr, vt, val):
    L, D = k.lab("PW"), k.lab("PD")
    k(f"""s_mov_b32 s11, {SPIN}
    {L}:
    ds_read_b32 v{vt}, v{vaddr}
    s_waitcnt lgkmcnt(0)
    s_sub_u32 s11, s11, 1
    v_readfirstlane_b32 s14, v{vt}
    s_cmp_eq_u32 s11, 0
    s_cbranch_scc1 {D}
    s_cmp_lt_u32 s14, {val}
    s_cbranch_scc1 {L}
    {D}:""")

def cexp(k, va, vth, n, dre, dim, t0, t1):
    k(f"""v_mul_f32 v{t0}, {n}, v{va}
    v_mul_f32 v{t1}, {n}, v{vth}
    v_exp_f32 v{t0}, v{t0}
    v_fract_f32 v{t1}, v{t1}
    v_cos_f32 v{dre}, v{t1}
    v_sin_f32 v{dim}, v{t1}
    v_mul_f32 v{dre}, v{dre}, v{t0}
    v_mul_f32 v{dim}, v{dim}, v{t0}""")
def cmul(k, dr, di, ar, ai, br, bi):
    k(f"""v_mul_f32 v{dr}, v{ar}, v{br}
    v_mul_f32 v{di}, v{ar}, v{bi}
    v_fma_f32 v{dr}, -v{ai}, v{bi}, v{dr}
    v_fmac_f32 v{di}, v{ai}, v{br}""")
def cfma(k, dr, di, ar, ai, br, bi):
    k(f"""v_fmac_f32 v{dr}, v{ar}, v{br}
    v_fmac_f32 v{di}, v{ar}, v{bi}
    v_fma_f32 v{dr}, -v{ai}, v{bi}, v{dr}
    v_fmac_f32 v{di}, v{ai}, v{br}""")

def dma_patterns(k, VP, t):
    k(f"""v_lshrrev_b32 v{t}, 4, v1
    v_and_b32 v{VP}, 15, v1
    v_xor_b32 v{VP}, v{VP}, v{t}
    v_lshlrev_b32 v{VP}, 4, v{VP}
    v_lshl_add_u32 v{VP}, v{t}, 10, v{VP}""")
    for q in range(1, 4): k(f"v_xor_b32 v{VP+q}, {64*q}, v{VP}")

def c_dma(k, vm, VP, half, wsg, cb=None):
    for sl in (2*half, 2*half+1):
        for comp in range(2):
            for q in range(4):
                k(f"s_add_u32 m0, s77, {sl*32768 + comp*16384 + q*1024}")
                k(f"s_add_u32 s15, s76, {q*4096 + sl*256}")
                vm.op(f"buffer_load_dwordx4 v{VP+q}, s[{68+4*comp}:{71+4*comp}], s15 offen lds", f"C{half}")
                if cb: cb()
def c_setup(k, wsg):
    srd(k, 68, CRE, 524288); srd(k, 72, CIM, 524288)
    k(f"""s_lshl_b32 s76, {sDT}, 16
    s_lshl_b32 s77, {wsg}, 14
    s_add_u32 s76, s76, s77
    s_lshl_b32 s77, {wsg}, 12""")

def pcmul(k, d, a, b):
    k(f"v_pk_mul_f32 {vr(d,2)}, {vr(a,2)}, {vr(b,2)} op_sel:[0,0] op_sel_hi:[0,1]")
    k(f"v_pk_fma_f32 {vr(d,2)}, {vr(a,2)}, {vr(b,2)}, {vr(d,2)} op_sel:[1,1,0] op_sel_hi:[1,0,1] neg_lo:[1,0,0]")


def spec_wait4(k, vz, vt4, off, val, reads):
    L, D = k.lab("SW"), k.lab("SD")
    k(f"s_mov_b32 s11, {SPIN}\n{L}:\nds_read_b128 {vr(vt4,4)}, v{vz} offset:{off}")
    for r in reads: k(r)
    k(f"""s_waitcnt lgkmcnt({min(len(reads), 15)})
    v_min3_u32 v{vt4}, v{vt4}, v{vt4+1}, v{vt4+2}
    v_min_u32 v{vt4}, v{vt4}, v{vt4+3}
    s_sub_u32 s11, s11, 1
    v_readfirstlane_b32 s14, v{vt4}
    s_cmp_eq_u32 s11, 0
    s_cbranch_scc1 {D}
    s_cmp_lt_u32 s14, {val}
    s_cbranch_scc1 {L}
    {D}:""")
class Buf:
    def __init__(s): s.L = []
    def __call__(s, t):
        for l in t.strip("\n").split("\n"):
            if l.strip(): s.L.append(l.strip())
    def take(s, k, n):
        for _ in range(min(n, len(s.L))): k(s.L.pop(0))
def pk_cfma_b(k, dR, dI, a, sR, sI):
    k(f"v_pk_fma_f32 {vr(dR,2)}, {vr(a,2)}, {vr(sR,2)}, {vr(dR,2)} op_sel:[0,0,0] op_sel_hi:[0,1,1]")
    k(f"v_pk_fma_f32 {vr(dI,2)}, {vr(a,2)}, {vr(sI,2)}, {vr(dI,2)} op_sel:[0,0,0] op_sel_hi:[0,1,1]")
    k(f"v_pk_fma_f32 {vr(dR,2)}, {vr(a,2)}, {vr(sI,2)}, {vr(dR,2)} op_sel:[1,0,0] op_sel_hi:[1,1,1] neg_lo:[1,0,0] neg_hi:[1,0,0]")
    k(f"v_pk_fma_f32 {vr(dI,2)}, {vr(a,2)}, {vr(sR,2)}, {vr(dI,2)} op_sel:[1,0,0] op_sel_hi:[1,1,1]")
def pcfma(k, d, a, b):
    k(f"v_pk_fma_f32 {vr(d,2)}, {vr(a,2)}, {vr(b,2)}, {vr(d,2)} op_sel:[0,0,0] op_sel_hi:[0,1,1]")
    k(f"v_pk_fma_f32 {vr(d,2)}, {vr(a,2)}, {vr(b,2)}, {vr(d,2)} op_sel:[1,1,0] op_sel_hi:[1,0,1] neg_lo:[1,0,0]")

def s5(k):
    ra = RA(8); vm = VM(k)
    MS = 18
    VP = ra(4); VPX = ra(4); VA = ra(8); VX = ra(8)
    T = ra(8, 4); vPR = ra(); vPW = ra(); vZ = ra(); vTG = ra()
    pLre, pLim, pDt, va, vth, vS, vG, vXR = [ra() for _ in range(8)]
    L1 = ra(2, 2); L8 = ra(2, 2); L16 = ra(2, 2); C2 = ra(2, 2); SR = ra(2, 2); SI = ra(2, 2); LSR = ra(2, 2); LSI = ra(2, 2); H = ra(2, 2)
    Q = ra(6, 2)
    GX = ra(8, 4); GWv = ra(8, 4)
    ACR = ra(16, 4); ACI = ra(16, 4)
    FR = ra(24, 4)
    EX = ra(16, 4)
    EG = ra(32, 4); XR = EG
    RT = ra(16, 4)
    Wt = ra(4, 2)
    vGA = ra(); vEA = ra(); vPF = ra(); vHW = ra(); vHR = ra(); vHT = ra()
    k("; REG A")
    srd(k, 60, X_, 2097152)
    k(f"""s_and_b32 s11, {sW}, 1
    s_cmp_eq_u32 s11, 0
    s_cselect_b32 s64, s22, s24
    s_cselect_b32 s65, s23, s25
    s_cselect_b32 s68, s26, s28
    s_cselect_b32 s69, s27, s29
    s_and_b32 s65, s65, 0xffff
    s_mov_b32 s66, 524288
    s_mov_b32 s67, 0x20000""")
    pfs = f"""s_and_b32 s69, s69, 0xffff
    s_mov_b32 s70, 524288
    s_mov_b32 s71, 0x20000
    s_lshl_b32 s45, {sI}, 1
    s_lshr_b32 s46, {sW}, 1
    s_add_u32 s45, s45, s46
    s_lshl_b32 s45, s45, 13
    v_lshlrev_b32 v{vPF}, 7, v1"""
    if PFS == -2:
        k(pfs); pfs = ""
        vm.op(f"buffer_load_dword v{vPF}, v{vPF}, s[68:71], s45 offen", "pf")
    dma_patterns(k, VP, T)
    k(f"""v_and_b32 v{T}, 31, v1
    s_lshl_b32 s14, {sJ}, 6
    v_lshl_add_u32 v{T+1}, v{T}, 1, s14
    v_lshrrev_b32 v{T+2}, 5, v1
    s_lshl_b32 s14, {sC}, 7
    s_lshl_b32 s15, {sW}, 5
    s_add_u32 s14, s14, s15
    s_lshl_b32 s36, s14, 10
    s_lshl_b32 s15, {sJ}, 11
    s_add_u32 s15, s15, s36
    v_lshlrev_b32 v{T+3}, 5, v{T}
    v_lshl_add_u32 v{T+4}, v{T+2}, 10, v{T+3}
    v_add_u32 v{T+4}, s15, v{T+4}
    v_mov_b32 v{vZ}, 0""")
    if LOC: k(f"v_writelane_b32 v{vZ}, s1, 1")
    vm.op(f"global_load_ushort v{pDt}, v{T+1}, {ALDT}", "par")
    vm.op(f"global_load_ushort v{pLre}, v{T+1}, {LRE}", "par")
    vm.op(f"global_load_ushort v{pLim}, v{T+1}, {LIM}", "par")
    k(f"""s_add_u32 s11, {sC}, {sJ}
    s_and_b32 s11, s11, 3
    s_lshl_b32 s37, s11, 8
    s_add_u32 s38, s37, 256
    s_and_b32 s38, s38, 1023
    s_add_u32 s39, s37, 512
    s_and_b32 s39, s39, 1023
    s_add_u32 s40, s37, 768
    s_and_b32 s40, s40, 1023
    s_lshr_b32 s11, {sW}, 1
    s_lshl_b32 s41, {sJ}, 15
    s_lshl_b32 s14, s11, 14
    s_add_u32 s41, s41, s14
    s_lshl_b32 s42, s11, 12
    s_and_b32 s11, {sW}, 1
    s_lshl_b32 s11, s11, 13
    s_add_u32 s42, s42, s11
    s_lshl_b32 s43, {sW}, 14
    s_add_u32 s43, s43, {LX}
    v_lshrrev_b32 v{T+5}, 4, v1
    v_and_b32 v{T+6}, 1, v{T+5}
    v_lshlrev_b32 v{T+6}, 3, v{T+6}
    v_add_u32 v{T+6}, v{T+6}, v{T+2}
    v_sub_u32 v{T+6}, v{T+6}, v{T+5}
    v_lshlrev_b32 v{T+6}, 10, v{T+6}""")
    for q in range(4): k(f"v_add_u32 v{VPX+q}, v{VP+q}, v{T+6}")
    sh = Buf()
    def dB(slot, qs=range(4), n=0):
        for q in qs:
            k(f"s_add_u32 s14, s41, s{37+slot}")
            k(f"s_add_u32 m0, s42, {LB + slot*16384 + q*1024}")
            k(f"s_add_u32 s15, s14, {q*4096}")
            vm.op(f"buffer_load_dwordx4 v{VP+q}, s[64:67], s15 offen lds", f"B{slot}")
            sh.take(k, n)
    def dX(slot, ring, n=0):
        k(f"s_add_u32 s14, s36, s{37+slot}")
        for i in range(8):
            k(f"s_add_u32 m0, s43, {ring*8192 + i*1024}")
            k(f"s_add_u32 s15, s14, {(16*(i&1) + 2*(i>>1))*1024}")
            vm.op(f"buffer_load_dwordx4 v{VPX+(i&3)}, s[60:63], s15 offen lds", f"X{slot}")
            sh.take(k, n)
    vm.op(f"global_load_dwordx4 {vr(GX,4)}, v{T+4}, {X_}", "gate")
    vm.op(f"global_load_dwordx4 {vr(GX+4,4)}, v{T+4}, {X_} offset:16", "gate")
    vm.op(f"global_load_dwordx4 {vr(GWv,4)}, v{T+3}, {GW}", "gate")
    vm.op(f"global_load_dwordx4 {vr(GWv+4,4)}, v{T+3}, {GW} offset:16", "gate")
    k('s_barrier')
    sh(f"""v_and_b32 v{T+5}, 15, v1
    v_xor_b32 v{T+5}, v{T+5}, v{T+2}
    v_lshlrev_b32 v{T+5}, 4, v{T+5}
    v_lshl_add_u32 v{VA}, v{T}, 8, v{T+5}""")
    for ks in range(1, 8): sh(f"v_xor_b32 v{VA+ks}, {32*ks}, v{VA}")
    for ks in range(8): sh(f"v_add_u32 v{VX+ks}, s43, v{VA+ks}")
    sh(f"""v_mov_b32 v{vPR}, {LPR}
    s_lshl_b32 s11, {sW}, 2
    v_add_u32 v{vPW}, s11, v{vPR}
    s_lshl_b32 s11, {sW}, 1
    v_add_u32 v{vS}, s11, v{T+2}
    {pfs}
    s_lshl_b32 s46, {sJ}, 13
    s_add_u32 s46, s46, {E_OFF}
    v_lshl_add_u32 v{vGA}, v1, 4, s46
    s_lshl_b32 s46, {sC}, 9
    v_add_u32 v{vEA}, s46, v{vGA}
    s_lshl_b32 s46, {sW}, 11
    v_add_u32 v{vGA}, s46, v{vGA}
    v_lshlrev_b32 v{vHR}, 3, v{T}
    v_add_u32 v{vHR}, {LH}, v{vHR}
    s_lshl_b32 s46, {sW}, 8
    v_add_u32 v{vHW}, s46, v{vHR}
    s_lshl_b32 s46, {sC}, 2
    s_add_u32 s46, s46, {sW}
    s_lshl_b32 s46, s46, 4
    s_add_u32 s46, s46, {sJ}
    s_lshl_b32 s46, s46, 4
    s_add_u32 s46, s46, {F2_OFF}
    v_mov_b32 v2, s46""")
    srd(sh, 72, CRE, 524288)
    sh(f"""s_lshl_b32 s46, {sC}, 2
    s_add_u32 s46, s46, {sW}
    s_lshl_b32 s46, s46, 5
    s_add_u32 s46, s46, {sJ}
    s_lshl_b32 s46, s46, 11
    s_add_u32 s34, s46, {H_OFF}
    v_bfe_u32 v{vHT}, v1, 4, 1
    v_lshlrev_b32 v{vHT}, 8, v{vHT}
    v_and_or_b32 v{vHT}, v1, 15, v{vHT}
    v_lshl_add_u32 v{vHT}, v{vHT}, 7, s34""")
    if HTS == -3:
        a = int(WS[2:WS.index(":")])
        sh(f"s_add_u32 s76, s{a}, s34\ns_addc_u32 s77, s{a+1}, 0")
        for hh in range(2):
            for o in range(0, 2048, HTG): sh(f"s_load_dword s35, s[76:77], {hh*32768 + o}")
    if PFS == -3:
        sh(f"s_add_u32 s96, s68, s45\ns_addc_u32 s97, s69, 0")
        for o in range(0, 8192, HTG): sh(f"s_load_dword s35, s[96:97], {o}")
    ht = lambda: vm.op(f"global_load_dword v{vHT}, v{vHT}, {WS}", "ht")
    sh(f"""s_lshl_b32 s25, {sDT}, 16
    s_lshr_b32 s46, {sW}, 1
    s_lshl_b32 s22, s46, 15
    s_add_u32 s22, s22, s25
    s_lshl_b32 s23, s46, 13
    s_lshl_b32 s24, s46, 8
    s_add_u32 s24, s24, s25
    s_and_b32 s46, {sW}, 1
    s_lshl_b32 s46, s46, 14
    s_add_u32 s23, s23, s46
    s_lshl_b32 s46, {sW}, 14
    s_add_u32 s25, s25, s46
    s_lshl_b32 s44, {sW}, 12""")
    def dC(t_, i):
        lb, lo, gb, go, sr = {"CA": ("s23", 0, "s22", 0, 68), "CR": ("s43", 0, "s24", 512, 68), "CB": ("s44", 32768, "s25", 256, 72)}[t_]
        k(f"s_add_u32 m0, {lb}, {lo + i*1024}\ns_add_u32 s15, {gb}, {go + i*4096}")
        vm.op(f"buffer_load_dwordx4 v{VP+(i&3)}, s[{sr}:{sr+3}], s15 offen lds", "C")
    dB(0, n=5); dX(0, 0, n=5); sh.take(k, 999)
    vm.wait("gate")
    sh(f"""v_lshlrev_b32 v{pDt}, 16, v{pDt}
    v_lshlrev_b32 v{pLre}, 16, v{pLre}
    v_mul_f32 v{pDt}, {fl(LOG2E)}, v{pDt}
    v_lshlrev_b32 v{pLim}, 16, v{pLim}
    v_exp_f32 v{pDt}, v{pDt}
    v_cvt_pk_bf16_f32 v{pDt}, v{pDt}, v{pDt}
    v_lshlrev_b32 v{pDt}, 16, v{pDt}
    v_mul_f32 v{va}, v{pDt}, v{pLre}
    v_mul_f32 v{vth}, v{pDt}, v{pLim}
    v_mul_f32 v{va}, {fl(LOG2E)}, v{va}
    v_mul_f32 v{vth}, {fl(INV2PI)}, v{vth}""")
    cexp(sh, va, vth, "1.0", L1, L1 + 1, Q, Q + 1)
    cexp(sh, va, vth, fl(8.0), L8, L8 + 1, Q + 2, Q + 3)
    cexp(sh, va, vth, fl(16.0), L16, L16 + 1, Q, Q + 1)
    sh(f"""v_mul_f32 v{Q}, v{pLre}, v{pLre}
    v_fmac_f32 v{Q}, v{pLim}, v{pLim}
    v_rcp_f32 v{Q}, v{Q}
    v_add_f32 v{Q+1}, -1.0, v{L1}
    v_mul_f32 v{C2}, v{Q+1}, v{pLre}
    v_fmac_f32 v{C2}, v{L1+1}, v{pLim}
    v_mul_f32 v{C2+1}, v{L1+1}, v{pLre}
    v_fma_f32 v{C2+1}, -v{Q+1}, v{pLim}, v{C2+1}
    v_add_f32 v{Q}, v{Q}, v{Q}
    v_mul_f32 v{C2}, v{C2}, v{Q}
    v_mul_f32 v{C2+1}, v{C2+1}, v{Q}""")
    pcmul(sh, RT, C2, L1)
    for t in range(1, 8): pcmul(sh, RT + 2*t, RT + 2*t - 2, L1)
    sh(f"v_cvt_f32_u32 v{Q+2}, v{vS}\nv_mul_f32 v{Q+2}, {fl(16.0)}, v{Q+2}\nv_add_f32 v{Q+3}, {fl(8.0)}, v{Q+2}")
    cexp(sh, va, vth, f"v{Q+2}", LSR, LSI, Q, Q + 1)
    cexp(sh, va, vth, f"v{Q+3}", LSR + 1, LSI + 1, Q + 4, Q + 5)
    sh(f"v_mov_b32 v{vG}, 0")
    for i in range(8):
        sh(f"""v_lshlrev_b32 v{Q}, 16, v{GX+i}
        v_and_b32 v{Q+1}, 0xffff0000, v{GX+i}
        v_lshlrev_b32 v{Q+2}, 16, v{GWv+i}
        v_and_b32 v{Q+3}, 0xffff0000, v{GWv+i}
        v_pk_mul_f32 {vr(Q,2)}, {vr(Q,2)}, {vr(Q+2,2)}
        v_cvt_pk_bf16_f32 v{Q}, v{Q}, v{Q+1}
        v_lshlrev_b32 v{Q+1}, 16, v{Q}
        v_and_b32 v{Q}, 0xffff0000, v{Q}
        v_add_f32 v{vG}, v{vG}, v{Q+1}
        v_add_f32 v{vG}, v{vG}, v{Q}""")
    for s_ in (1, 2, 4, 8):
        sh(f"v_add_f32_dpp v{vG}, v{vG}, v{vG} row_ror:{s_} row_mask:0xf bank_mask:0xf")
    sh(f"""v_mov_b32 v{Q}, v{vG}
    v_permlane16_swap_b32 v{Q}, v{vG}
    v_add_f32 v{vG}, v{vG}, v{Q}
    v_cvt_pk_bf16_f32 v{vG}, v{vG}, v{vG}
    v_lshlrev_b32 v{vG}, 16, v{vG}
    v_mul_f32 v{vG}, {fl(-LOG2E)}, v{vG}
    v_exp_f32 v{vG}, v{vG}
    v_add_f32 v{vG}, 1.0, v{vG}
    v_rcp_f32 v{vG}, v{vG}
    v_cvt_pk_bf16_f32 v{vG}, v{vG}, v{vG}
    v_lshlrev_b32 v5, 16, v{vG}
    v_lshlrev_b32 v4, 16, v{vG}
    v_permlane32_swap_b32 v4, v5""")
    sh(f"""v_lshrrev_b32 v{Q+3}, 5, v1
    s_lshl_b32 s47, {sW}, 2
    s_sub_u32 s46, {sC}, 1
    s_sub_u32 s46, s46, s47
    v_sub_u32 v{Q+3}, s46, v{Q+3}""")
    for i in range(2):
        sh(f"""v_subrev_u32 v{Q+4}, {2*i}, v{Q+3}
        v_cmp_le_i32 s[{MS+2*i}:{MS+1+2*i}], 0, v{Q+4}
        v_max_i32 v{Q+4}, 0, v{Q+4}
        v_cvt_f32_i32 v{Q+2}, v{Q+4}
        v_mul_f32 v{Q+2}, {fl(128.0)}, v{Q+2}""")
        cexp(sh, va, vth, f"v{Q+2}", Wt + 2*i, Wt + 2*i + 1, Q, Q + 1)
    print("shadow instrs", len(sh.L))
    dB(1, n=SH1); dX(1, 1, n=SH1)
    if HTS == -1: ht()
    if PFS == -1: vm.op(f"buffer_load_dword v{vPF}, v{vPF}, s[68:71], s45 offen", "pf")
    k("s_setprio 2")
    def rdB(slot, ks):
        f = FR + 8 * (ks % 3)
        return [f"ds_read_b128 {vr(f,4)}, v{VA+ks} offset:{LB + slot*16384}",
                f"ds_read_b128 {vr(f+4,4)}, v{VA+ks} offset:{LB + slot*16384 + 8192}"]
    def dX1(slot, i):
        k(f"s_add_u32 s14, s36, s{37+slot}")
        k(f"s_add_u32 m0, s43, {(slot&1)*8192 + i*1024}")
        k(f"s_add_u32 s15, s14, {(16*(i&1) + 2*(i>>1))*1024}")
        vm.op(f"buffer_load_dwordx4 v{VPX+(i&3)}, s[60:63], s15 offen lds", f"X{slot}")
    for slot in range(4):
        vm.wait(f"X{slot}")
        prog_set(k, vPW, T, slot + 1)
        for ks in range(8): k(f"ds_read_b128 {vr(XR+4*ks,4)}, v{VX+ks} offset:{(slot&1)*8192}")
        spec_wait4(k, vPR, T, 0, slot + 1, rdB(slot, 0) + rdB(slot, 1))
        if slot in (0, 2): stamp(k, 1 + slot // 2)
        todo = ([("B", q) for q in range(4)] + [("X", i) for i in range(8)]) if slot < 2 else []
        if slot == 2: todo = [("CA", i) for i in range(8)] + [("CR", i) for i in range(8)]
        if slot == 3: todo = [("CB", i) for i in range(4)] + [("CR", i) for i in range(8, 15)]
        for ks in range(8):
            if ks + 2 < 8:
                for r in rdB(slot, ks + 2): k(r)
                k(f"s_waitcnt lgkmcnt(4)")
            elif ks + 1 < 8: k(f"s_waitcnt lgkmcnt(2)")
            else: k("s_waitcnt lgkmcnt(0)")
            f = FR + 8 * (ks % 3)
            fa = XR + 4 * ks
            z = slot == 0 and ks == 0
            k(f"v_mfma_f32_32x32x16_bf16 {vr(ACR,16)}, {vr(fa,4)}, {vr(f,4)}, {'0' if z else vr(ACR,16)}")
            k(f"v_mfma_f32_32x32x16_bf16 {vr(ACI,16)}, {vr(fa,4)}, {vr(f+4,4)}, {'0' if z else vr(ACI,16)}")
            for _ in range(2 if ks < 4 or slot == 2 else 1):
                if todo:
                    t_, i_ = todo.pop(0)
                    if t_ == "B": dB(slot + 2, [i_])
                    elif t_ == "X": dX1(slot + 2, i_)
                    else: dC(t_, i_)
            sh.take(k, SH2 if slot < 2 else SH3)
            if ks == 7 and slot == 1:
                vm.op(f"global_load_dword v{vTG}, v{vZ}, {DBG} sc1", "tag")
            if ks == 7 and slot == HTS: ht()
            if ks == 7 and slot == PFS:
                vm.op(f"buffer_load_dword v{vPF}, v{vPF}, s[68:71], s45 offen", "pf")
    print("shadow left", len(sh.L))
    stamp(k, 3)
    k("; REG B")
    for t in range(1, 8):
        pk_cfma_b(k, ACR + 2*t, ACI + 2*t, L1, ACR + 2*t - 2, ACI + 2*t - 2)
    k(f"""v_mov_b32 v{T}, v{ACR+15}
    v_mov_b32 v{T+1}, v{ACI+15}
    v_lshlrev_b32 v{T+2}, 3, v1
    v_add_u32 v{T+3}, s43, v{T+2}""")
    cfma(k, T, T + 1, L8, L8 + 1, ACR + 14, ACI + 14)
    k(f"ds_write_b64 v{T+3}, {vr(T,2)} offset:15360")
    prog_set(k, vPW, T + 4, 5)
    k(f"""v_and_b32 v{T+5}, 0xf8, v{T+2}
    v_add_u32 v{T+5}, {LX + 15360}, v{T+5}
    v_mov_b32 v{SR+1}, v{ACR+14}
    v_mov_b32 v{SI+1}, v{ACI+14}
    v_mov_b32 v{SR}, 0
    v_mov_b32 v{SI}, 0""")
    get_tag(k, vm, vTG, vZ)
    if LOC: k(f"v_readlane_b32 s1, v{vTG}, 1")
    k(f"v_mov_b32 v6, {sTAG}\nv_mov_b32 v7, {sTAG}\nv_mov_b32 v{EX+16}, {sTAG}\nv_mov_b32 v{EX+17}, {sTAG}")
    assert EG == EX + 16
    spec_wait4(k, vPR, T, 0, 5, [f"ds_read_b64 {vr(EX+2*s,2)}, v{T+5} offset:{(s>>1)*16384 + (s&1)*256}" for s in range(8)])
    for s in range(1, 8):
        k(f"s_waitcnt lgkmcnt({7-s})")
        pcfma(k, EX + 2*s, L16, EX + 2*s - 2)
    L = k.lab("NE")
    k(f"""s_cmp_lg_u32 {sW}, 0
    s_cbranch_scc1 {L}
    s_mov_b64 exec, 0xffffffff
    global_store_dwordx4 v{vEA}, {vr(EX+14,4)}, {WS} sc1
    s_mov_b64 exec, -1
    {L}:""")
    prog_set(k, vPW, T + 4, 6)
    stamp(k, 4)
    k("; REG C")
    sh.take(k, 999)
    for s in range(1, 8):
        k(f"v_cmp_eq_u32 vcc, {s}, v{vS}")
        k(f"v_cndmask_b32 v{SR}, v{SR}, v{EX+2*s-2}, vcc\nv_cndmask_b32 v{SI}, v{SI}, v{EX+2*s-1}, vcc")
    cfma(k, SR + 1, SI + 1, L8, L8 + 1, SR, SI)
    for t in range(8):
        r, i_ = ACR + 2*t, ACI + 2*t
        q = T + 2 * (t & 1)
        k(f"""v_pk_mul_f32 {vr(q,2)}, {vr(C2,2)}, {vr(i_,2)} op_sel:[1,0] op_sel_hi:[1,1]
        v_pk_mul_f32 {vr(i_,2)}, {vr(C2,2)}, {vr(i_,2)} op_sel:[0,0] op_sel_hi:[0,1]
        v_pk_fma_f32 {vr(i_,2)}, {vr(C2,2)}, {vr(r,2)}, {vr(i_,2)} op_sel:[1,0,0] op_sel_hi:[1,1,1]
        v_pk_fma_f32 {vr(r,2)}, {vr(C2,2)}, {vr(r,2)}, {vr(q,2)} op_sel:[0,0,0] op_sel_hi:[0,1,1] neg_lo:[0,0,1] neg_hi:[0,0,1]""")
    vTW, vTR, vHS = VX, VX + 1, VX + 2
    k(f"""s_lshl_b32 s43, {sW}, 12
    s_add_u32 s43, s43, {LS}
    v_lshl_add_u32 v{vTW}, v1, 5, s43
    v_lshrrev_b32 v{T+1}, 4, v1
    v_and_b32 v{T+2}, 15, v1
    v_lshlrev_b32 v{T+2}, 3, v{T+2}
    v_lshl_add_u32 v{vTR}, v{T+1}, 8, v{T+2}
    v_add_u32 v{vTR}, s43, v{vTR}
    v_lshl_add_u32 v{vHS}, v1, 4, s34
    v_add_u32 v{vHS+1}, 32768, v{vHS}""")
    k("; REG D")
    L, D, L2 = k.lab("GE"), k.lab("GD"), k.lab("GX")
    k(f"""v_mov_b32 v{H}, 0
    v_mov_b32 v{H+1}, 0
    s_cmp_eq_u64 s[{MS}:{MS+1}], 0
    s_cbranch_scc1 {D}
    s_mov_b32 s11, {SPIN}
    s_mov_b64 s[12:13], s[{MS}:{MS+1}]
    s_mov_b64 s[14:15], s[{MS+2}:{MS+3}]
    {L}:
    s_mov_b64 exec, s[12:13]
    global_load_dwordx3 {vr(EG+4,3)}, v{vGA}, {WS} sc1
    s_mov_b64 exec, s[14:15]
    global_load_dwordx3 {vr(EG+8,3)}, v{vGA}, {WS} offset:1024 sc1
    s_sub_u32 s11, s11, 1
    s_cmp_eq_u32 s11, 0
    s_waitcnt vmcnt(0)
    s_cbranch_scc1 {L2}
    v_cmp_ne_u32 s[14:15], {sTAG}, v{EG+10}
    s_mov_b64 exec, s[12:13]
    v_cmp_ne_u32 s[12:13], {sTAG}, v{EG+6}
    s_or_b64 vcc, s[12:13], s[14:15]
    s_cbranch_scc1 {L}
    {L2}:""")
    for i in range(2):
        k(f"s_mov_b64 exec, s[{MS+2*i}:{MS+1+2*i}]")
        pcfma(k, H, Wt + 2*i, EG + 4 + 4*i)
    k(f"""s_mov_b64 exec, -1
    v_mov_b32 v{T}, v{H}
    v_mov_b32 v{T+1}, v{H+1}
    v_permlane32_swap_b32 v{T}, v{H}
    v_permlane32_swap_b32 v{T+1}, v{H+1}
    v_pk_add_f32 {vr(H,2)}, {vr(H,2)}, {vr(T,2)}
    {D}:
    s_waitcnt vmcnt(0)
    ds_write_b64 v{vHW}, {vr(H,2)}""")
    prog_set(k, vPW, T + 4, 7)
    spec_wait4(k, vPR, T, 0, 7, [f"ds_read2_b64 {vr(EG,4)}, v{vHR} offset1:32", f"ds_read2_b64 {vr(EG+4,4)}, v{vHR} offset0:64 offset1:96"])
    stamp(k, 5)
    k(f"ds_read_b128 {vr(T+4,4)}, v{vPR} offset:16")
    k(f"""s_waitcnt lgkmcnt(1)
    v_pk_add_f32 {vr(EG,2)}, {vr(EG,2)}, {vr(EG+2,2)}
    v_pk_add_f32 {vr(EG+4,2)}, {vr(EG+4,2)}, {vr(EG+6,2)}
    v_pk_add_f32 {vr(H,2)}, {vr(EG,2)}, {vr(EG+4,2)}""")
    pk_cfma_b(k, SR, SI, H, LSR, LSI)
    HB = EG
    for t in range(8):
        pk_cfma_b(k, ACR + 2*t, ACI + 2*t, RT + 2*t, SR, SI)
        if t:
            k(f"v_cvt_pk_bf16_f32 v{HB+t-1}, v{ACR+2*t-2}, v{ACR+2*t-1}")
            k(f"v_cvt_pk_bf16_f32 v{HB+8+t-1}, -v{ACI+2*t-2}, -v{ACI+2*t-1}")
    D = k.lab("TF")
    k(f"""s_waitcnt lgkmcnt(0)
    v_min3_u32 v{T+4}, v{T+4}, v{T+5}, v{T+6}
    v_min_u32 v{T+4}, v{T+4}, v{T+7}
    v_cvt_pk_bf16_f32 v{HB+7}, v{ACR+14}, v{ACR+15}
    v_readfirstlane_b32 s14, v{T+4}
    v_cvt_pk_bf16_f32 v{HB+15}, -v{ACI+14}, -v{ACI+15}
    s_cmp_ge_u32 s14, 5
    s_cbranch_scc1 {D}""")
    prog_wait4(k, vPR, T + 4, 16, 5)
    k(f"""{D}:
    ds_write_b128 v{vTW}, {vr(HB,4)}
    ds_write_b128 v{vTW}, {vr(HB+4,4)} offset:16
    ds_write_b128 v{vTW}, {vr(HB+8,4)} offset:2048
    ds_write_b128 v{vTW}, {vr(HB+12,4)} offset:2064""")
    HF = EG + 16
    for comp in range(2):
        for hh in range(2):
            f = HF + 4 * (2*comp + hh)
            k(f"ds_read_b64_tr_b16 {vr(f,2)}, v{vTR} offset:{comp*2048 + hh*1024}")
            k(f"ds_read_b64_tr_b16 {vr(f+2,2)}, v{vTR} offset:{comp*2048 + hh*1024 + 128}")
    for comp in range(2):
        for hh in range(2):
            f = HF + 4 * (2*comp + hh)
            if not LOC:
                k(f"s_waitcnt lgkmcnt({6 - 2*(2*comp+hh)})")
                k(f"global_store_dwordx4 v{vHS+hh}, {vr(f,4)}, {WS} offset:{comp*1024}{HST}")
    if LOC:
        LS_ = k.lab("HS")
        k(f"s_cmp_lg_u32 s0, s1\ns_cbranch_scc1 {LS_}")
        for sc in ("", " sc1"):
            for comp in range(2):
                for hh in range(2):
                    f = HF + 4 * (2*comp + hh)
                    k(f"s_waitcnt lgkmcnt({6 - 2*(2*comp+hh)})")
                    k(f"global_store_dwordx4 v{vHS+hh}, {vr(f,4)}, {WS} offset:{comp*1024}{sc}")
            stamp(k, 6)
            k(f"s_branch {k.label}_P2")
            if not sc: k(f"{LS_}:")
        return ra.hi
    stamp(k, 6)
    k(f"s_branch {k.label}_P2")
    return ra.hi

def s4(k):
    ra = RA(); vm = VM(k)
    sWp, sCH, sH, sD, sLC, sSC = "s60", "s61", "s62", "s63", "s64", "s65"
    T = ra(8, 4); vZ = ra(); vTG = ra(); vPW = ra(); vPP = ra(); vFA = ra(); va = ra(); vth = ra()
    VF = ra(8); VG = ra(); vYA = ra(); vSC = ra(); vSP = ra()
    ACC = ra(32, 4)
    base = ra.n
    XL = ra(8, 4); XO = ra(8, 4); PA = ra(8)
    IX = ra(20); SW = ra(16); SR = ra(4); DA = ra(3); vXS = ra(2)
    Z = ra(32, 2); TB = ra(18, 2); U = ra(4, 2); z16 = ra(2, 2); PKD = ra(4)
    OPB = ra(16, 4); OPA = ra(32, 4); KD = ra(12, 4)
    k(f"""s_setprio 3
    s_sub_u32 {sWp}, {sW}, 4
    s_lshr_b32 {sCH}, {sWp}, 1
    s_and_b32 {sH}, {sWp}, 1
    s_lshl_b32 {sD}, s2, 1
    s_add_u32 {sD}, {sD}, {sCH}
    s_mul_i32 {sLC}, {sCH}, {CHS}
    s_add_u32 {sLC}, {sLC}, {LS}
    s_xor_b32 {sSC}, {sH}, 1
    s_lshl_b32 {sSC}, {sSC}, 12
    s_add_u32 {sSC}, {sSC}, {sLC}
    s_add_u32 {sSC}, {sSC}, {LP + 64 - LS}
    s_lshl_b32 s14, {sC}, 7
    s_lshl_b32 s15, {sH}, 6
    s_add_u32 s14, s14, s15
    s_lshl_b32 s15, {sJ}, 5
    s_lshl_b32 s11, {sCH}, 4
    s_add_u32 s15, s15, s11
    s_lshl_b32 s12, s14, 10
    s_lshl_b32 s13, s15, 1
    s_add_u32 s12, s12, s13
    v_and_b32 v{T}, 7, v1
    v_lshrrev_b32 v{T+1}, 3, v1
    v_lshlrev_b32 v{T+2}, 13, v{T+1}
    v_lshl_add_u32 v{T+2}, v{T}, 2, v{T+2}
    v_add_u32 v{T+2}, s12, v{T+2}
    v_add_u32 v{T+3}, 4096, v{T+2}""")
    for i in range(8):
        vm.op(f"global_load_dword v{XL+i}, v{T+2+(i>>2)}, {X_} offset:{(i&3)*1024}", "xl")
    k(f"""s_lshl_b32 s12, {sD}, 8
    s_lshl_b32 s13, {sH}, 7
    s_add_u32 s12, s12, s13
    v_lshl_add_u32 v{T+4}, v1, 1, s12
    s_lshl_b32 s12, {sD}, 1
    v_mov_b32 v{T+5}, s12
    v_mov_b32 v{vZ}, 0""")
    vm.op(f"global_load_ushort v{PA+6}, v{T+5}, {BLDT}", "par")
    for i, p in enumerate((SARE, SAIM, SBRE, SBIM, SCRE, SCIM)):
        vm.op(f"global_load_ushort v{PA+i}, v{T+4}, {p}", "par")
    def touch(d):
        k(f"""s_mov_b64 exec, 15
        s_lshl_b32 s12, {sR}, 17
        v_mov_b32 v{d}, s12
        s_lshl_b32 s12, {sDT}, 16
        v_mov_b32 v{d+1}, s12
        v_lshlrev_b32 v{d+2}, 21, v1
        v_add_u32 v{d+2}, {H_OFF}, v{d+2}""")
        k(f"v_lshrrev_b32 v{d+4}, 9, v{d+1}")
        vm.op(f"global_load_dword v{d+3}, v{d+4}, {ADS}", "tw")
        vm.op(f"global_load_dword v{d+4}, v{d+4}, {BDS}", "tw")
        vm.op(f"global_load_dword v{d+2}, v{d+2}, {WS} sc1", "tw")
        vm.op(f"global_load_dword v{d}, v{d}, {OUTP}", "tw")
        vm.op(f"global_load_dword v{d+5}, v{d+1}, {CRE}", "tw")
        vm.op(f"global_load_dword v{d+1}, v{d+1}, {CIM}", "tw")
        k("s_mov_b64 exec, -1")
    if TW == 1: touch(ACC)
    k("s_barrier")
    k(f"""s_lshl_b32 s12, s15, 12
    s_lshl_b32 s13, s14, 1
    s_add_u32 s12, s12, s13
    s_add_u32 s12, s12, {XT_OFF}
    v_lshlrev_b32 v{vXS}, 13, v{T}
    v_lshl_add_u32 v{vXS}, v{T+1}, 4, v{vXS}
    v_add_u32 v{vXS}, s12, v{vXS}
    v_add_u32 v{vXS+1}, 4096, v{vXS}
    s_lshl_b32 s12, {sJ}, 1
    s_add_u32 s12, s12, {sCH}
    s_lshl_b32 s12, s12, 4
    s_add_u32 s12, s12, {sC}
    s_lshl_b32 s12, s12, 1
    s_add_u32 s12, s12, {sH}
    s_lshl_b32 s12, s12, 2
    s_add_u32 s66, s12, {F1_OFF}
    s_lshl_b32 s12, {sW}, 2
    s_add_u32 s12, s12, {LPR}
    v_mov_b32 v{vPW}, s12
    v_xor_b32 v{vPP}, 4, v{vPW}
    v_lshl_add_u32 v{SW}, v1, 2, {sSC}
    v_lshl_add_u32 v{vSC}, v1, 4, {sSC}
    v_and_b32 v{T}, 15, v1
    v_lshrrev_b32 v{T+1}, 4, v1
    v_xor_b32 v{T+2}, v{T}, v{T+1}
    v_lshlrev_b32 v{T+2}, 4, v{T+2}
    v_lshl_add_u32 v{T+2}, v{T}, 8, v{T+2}
    v_add_u32 v{SR}, {sSC}, v{T+2}""")
    for r in range(1, 16): k(f"v_xor_b32 v{SW+r}, {16*r}, v{SW}")
    for s in range(1, 4): k(f"v_xor_b32 v{SR+s}, {64*s}, v{SR}")
    k(f"""s_add_u32 s12, {sLC}, 16
    v_lshlrev_b32 v{T+2}, 4, v{T+1}
    v_lshl_add_u32 v{DA}, v{T}, 6, v{T+2}
    v_add_u32 v{DA}, s12, v{DA}
    v_lshl_add_u32 v{T+3}, v{T}, 5, v{T+2}
    v_lshlrev_b32 v{T+4}, 8, v{T+1}
    v_lshl_add_u32 v{T+5}, v{T}, 4, v{T+4}
    v_cmp_gt_u32 vcc, 2, v{T+1}
    v_cndmask_b32 v{DA+1}, v{T+5}, v{T+3}, vcc
    v_add_u32 v{DA+1}, s12, v{DA+1}
    v_lshl_add_u32 v{DA+2}, v{T}, 3, v{T+4}
    v_add_u32 v{DA+2}, s12, v{DA+2}""")
    k(f"""s_lshl_b32 s12, {sH}, 9
    s_add_u32 s12, s12, {sLC}
    s_add_u32 s12, s12, {LP - LS + 26*4}
    v_lshlrev_b32 v{T+2}, 5, v{T+1}
    v_lshl_add_u32 v{VF}, v{T}, 2, s12
    v_sub_u32 v{VF}, v{VF}, v{T+2}
    s_mul_i32 s12, {sCH}, {XTS}
    s_add_u32 s67, s12, {LXT}
    s_lshl_b32 s13, {sH}, 8
    s_sub_u32 s12, s67, s13
    s_add_u32 s12, s12, {480 - 192}
    v_lshlrev_b32 v{T+2}, 4, v{T+1}
    v_lshl_add_u32 v{VG}, v{T}, 5, v{T+2}
    v_add_u32 v{VG}, s12, v{VG}
    s_lshl_b32 s12, {sD}, 12
    s_lshl_b32 s13, {sH}, 11
    s_add_u32 s68, s12, s13
    s_add_u32 s12, s68, {Y_OFF}
    v_and_b32 v{T+2}, 1, v{T+1}
    v_lshlrev_b32 v{T+2}, 9, v{T+2}
    v_lshl_add_u32 v{T+2}, v{T}, 5, v{T+2}
    v_lshrrev_b32 v{T+3}, 1, v{T+1}
    v_lshl_add_u32 v{T+2}, v{T+3}, 4, v{T+2}
    v_add_u32 v{vYA}, s12, v{T+2}
    s_lshr_b32 s12, s2, 3
    s_lshl_b32 s12, s12, 7
    s_add_u32 s12, s12, {F1_OFF}
    v_and_b32 v{T+2}, 31, v1
    v_lshl_add_u32 v{vFA}, v{T+2}, 2, s12""")
    for m in range(1, 8): k(f"v_add_u32 v{VF+m}, {1024*m}, v{VF}")
    k(f"""s_lshl_b32 s12, {sH}, 10
    s_sub_u32 s12, s12, 1
    v_lshl_add_u32 v{T}, v1, 2, s12
    v_cvt_f32_i32 v{T+1}, v{T}
    s_add_u32 s13, {sLC}, 16
    s_sub_u32 s12, s13, {0x4280*4}
    v_mov_b32 v{T+7}, s12
    v_lshl_add_u32 v{T+6}, v{T}, 2, s13
    s_cmp_eq_u32 {sH}, 0
    s_cselect_b64 vcc, -1, 0""")
    for it in range(4):
        for e in range(5):
            c = 256*it + e
            if c: k(f"v_add_f32 v{PKD+(e&1)}, {fl(float(c))}, v{T+1}")
            else: k(f"v_mov_b32 v{PKD}, v{T+1}")
            if e & 1 or e == 4:
                k(f"v_cvt_pk_bf16_f32 v{T+2}, v{PKD}, v{PKD+1}")
                e0 = e & ~1
                k(f"v_mad_u32_u16 v{IX+5*it+e0}, v{T+2}, 4, v{T+7}")
                if e & 1: k(f"v_mad_u32_u16 v{IX+5*it+e}, v{T+2}, 4, v{T+7} op_sel:[1,0,0,0]")
    for e in range(5):
        k(f"v_add_u32 v{T+2}, {4*e}, v{T+6}\nv_cndmask_b32 v{IX+e}, v{IX+e}, v{T+2}, vcc")
    vm.wait("xl")
    k("s_mov_b32 s12, 0x05040100\ns_mov_b32 s13, 0x07060302")
    for i in range(4):
        k(f"v_perm_b32 v{XO+i}, v{XL+2*i+1}, v{XL+2*i}, s12")
        k(f"v_perm_b32 v{XO+4+i}, v{XL+2*i+1}, v{XL+2*i}, s13")
    vm.op(f"global_store_dwordx4 v{vXS}, {vr(XO,4)}, {WS} sc1", "xs")
    vm.op(f"global_store_dwordx4 v{vXS+1}, {vr(XO+4,4)}, {WS} sc1", "xs")
    vm.op(f"global_load_dword v{vTG}, v{vZ}, {DBG} sc1", "tag")
    vm.wait("par")
    for i in range(7): k(f"v_lshlrev_b32 v{PA+i}, 16, v{PA+i}")
    k(f"""v_mul_f32 v{PA+6}, {fl(LOG2E)}, v{PA+6}
    v_exp_f32 v{PA+6}, v{PA+6}
    v_cvt_pk_bf16_f32 v{PA+6}, v{PA+6}, v{PA+6}
    v_lshlrev_b32 v{PA+6}, 16, v{PA+6}
    v_mul_f32 v{va}, v{PA+6}, v{PA}
    v_mul_f32 v{vth}, v{PA+6}, v{PA+1}
    v_mul_f32 v{va}, {fl(LOG2E)}, v{va}
    v_mul_f32 v{vth}, {fl(INV2PI)}, v{vth}
    v_mul_f32 v{PA+2}, v{PA+6}, v{PA+2}
    v_mul_f32 v{PA+3}, v{PA+6}, v{PA+3}""")
    cmul(k, U, U + 1, PA + 4, PA + 5, PA + 2, PA + 3)
    cexp(k, va, vth, fl(16.0), z16, z16 + 1, T, T + 1)
    cexp(k, va, vth, "1.0", Z + 2, Z + 3, T + 2, T + 3)
    cexp(k, va, vth, fl(256.0), TB + 2, TB + 3, T + 4, T + 5)
    npk = [0]
    def put(row, src, neg=False):
        p = PKD + (npk[0] & 3); npk[0] += 1
        k(f"v_cvt_pk_bf16_f32 v{p}, v{src}, {'-' if neg else ''}v{src+1}")
        k(f"ds_write_b32 v{SW+row}, v{p} offset:{256*row}")
    def get(dst):
        for s in range(4): k(f"ds_read_b128 {vr(dst+4*s,4)}, v{SR+s}")
    for m in range(16):
        cur = U + 2 * (m & 1)
        if m < 15: pcmul(k, U + 2 * ((m + 1) & 1), cur, z16)
        put(m, cur, True)
        r = m + 2
        if r < 16:
            if r % 2 == 0: pcmul(k, Z + 2*r, Z + r, Z + r)
            else: pcmul(k, Z + 2*r, Z + 2*r - 2, Z + 2)
    get(OPB)
    k(f"v_mov_b32 v{Z}, 1.0\nv_mov_b32 v{Z+1}, 0")
    tb = [(2,1,1),(3,2,1),(4,2,2),(6,3,3),(5,4,1),(8,4,4),(7,6,1)]
    for r in range(16):
        put(r, Z + 2*r)
        if r < 7: pcmul(k, TB + 2*tb[r][0], TB + 2*tb[r][1], TB + 2*tb[r][2])
    get(OPA)
    get_tag(k, vm, vTG, vZ)
    k(f"""v_mov_b32 v{T}, s66
    v_mov_b32 v{T+1}, {sTAG}
    s_waitcnt vmcnt(0)
    s_mov_b64 exec, 1
    global_store_dword v{T}, v{T+1}, {WS} sc1
    s_mov_b64 exec, -1""")
    if TW == 2: touch(ACC)
    stamp(k, 1)
    rows1 = [(1, 2*i) for i in range(8)] + [(2, 4*i) for i in range(4)] + [(3, 4*i) for i in range(4)]
    rows2 = [(4 + (i >> 1), 8 * (i & 1)) for i in range(9)]
    def vrows(rows):
        for r, (B, f) in enumerate(rows):
            if f == 0: put(r, TB + 2*B)
            else:
                d = U + 2 * (r & 1)
                pcmul(k, d, TB + 2*B, Z + 2*f); put(r, d)
    vrows(rows1)
    get(OPA + 16)
    k("s_waitcnt lgkmcnt(15)")
    for s in range(4):
        k(f"v_mfma_f32_16x16x32_bf16 {vr(KD,4)}, {vr(OPA+4*s,4)}, {vr(OPB+4*s,4)}, {'0' if s == 0 else vr(KD,4)}")
    vrows(rows2)
    get(OPA)
    k("s_waitcnt lgkmcnt(13)")
    for s in range(4):
        k(f"v_mfma_f32_16x16x32_bf16 {vr(KD+4,4)}, {vr(OPA+16+4*s,4)}, {vr(OPB+4*s,4)}, {'0' if s == 0 else vr(KD+4,4)}")
    k(f"ds_write_b128 v{vSC}, {vr(KD,4)}")
    k("s_waitcnt lgkmcnt(1)")
    for s in range(4):
        k(f"v_mfma_f32_16x16x32_bf16 {vr(KD+8,4)}, {vr(OPA+4*s,4)}, {vr(OPB+4*s,4)}, {'0' if s == 0 else vr(KD+8,4)}")
    k(f"ds_write_b128 v{vSC}, {vr(KD+4,4)} offset:1024")
    k(f"global_load_dword v{T+6}, v{vFA}, {WS} sc1")
    k(f"s_lshl_b32 s12, {sH}, 12\ns_add_u32 s12, s12, {sLC}\ns_add_u32 s12, s12, {LP+64-LS}\nv_lshl_add_u32 v{vSP}, v1, 4, s12")
    k(f"ds_write_b128 v{vSC}, {vr(KD+8,4)} offset:2048")
    prog_set(k, vPW, T, 1)
    prog_wait1(k, vPP, T, 1)
    stamp(k, 2)
    LA, LB_ = k.lab("FA"), k.lab("FB")
    k(f"""v_lshl_add_u32 v{T+4}, v1, 4, s68
    s_lshl_b32 s12, {sH}, 11
    s_add_u32 s12, s12, s67
    v_lshl_add_u32 v{T+5}, v1, 4, s12
    s_waitcnt vmcnt(0)
    v_cmp_ne_u32 s[70:71], {sTAG}, v{T+6}
    s_cmp_lg_u64 s[70:71], 0
    s_cbranch_scc1 {LA}
    global_load_dwordx4 {vr(XL,4)}, v{T+4}, {WS} sc1
    global_load_dwordx4 {vr(XL+4,4)}, v{T+4}, {WS} offset:1024 sc1
    s_branch {LB_}
    {LA}:
    global_load_dword v{T+6}, v{vFA}, {WS} sc1
    {LB_}:""")
    for i in range(3): k(f"ds_read_b128 {vr(OPA+4*i,4)}, v{vSP} offset:{1024*i}")
    for i in range(3):
        k(f"s_waitcnt lgkmcnt(2)")
        for r in range(4): k(f"v_add_f32 v{KD+4*i+r}, v{KD+4*i+r}, v{OPA+4*i+r}")
        if i < 2: k(f"ds_write_b128 v{DA+i}, {vr(KD+4*i,4)} offset:{1024*i}")
    k(f"""s_mov_b32 exec_hi, 1
    ds_write_b64 v{DA+2}, {vr(KD+8,2)} offset:2048
    s_mov_b32 exec_hi, 0
    ds_write_b64 v{DA+2}, {vr(KD+10,2)} offset:{2048+128}
    s_mov_b32 exec_hi, -1""")
    KV = Z; PO = OPB
    for it in range(4):
        for e in range(5): k(f"ds_read_b32 v{KV+5*it+e}, v{IX+5*it+e}")
        if it == 2: k("s_waitcnt lgkmcnt(10)")
    for it in range(4):
        k(f"s_waitcnt lgkmcnt({15 - 4*it})")
        for e in range(4): k(f"v_cvt_pk_bf16_f32 v{PO+4*it+e}, v{KV+5*it+e+1}, v{KV+5*it+e}")
        k(f"ds_write_b128 v{vSP}, {vr(PO+4*it,4)} offset:{1024*it}")
    L, D, E_ = k.lab("F1"), k.lab("F1D"), k.lab("F1E")
    k(f"""s_cmp_eq_u64 s[70:71], 0
    s_cbranch_scc1 {E_}
    s_mov_b32 s11, {SPIN}
    {L}:
    s_waitcnt vmcnt(0)
    v_cmp_ne_u32 vcc, {sTAG}, v{T+6}
    s_cbranch_vccz {D}
    s_sub_u32 s11, s11, 1
    s_cmp_eq_u32 s11, 0
    s_cbranch_scc1 {D}
    global_load_dword v{T+6}, v{vFA}, {WS} sc1
    s_branch {L}
    {D}:
    global_load_dwordx4 {vr(XL,4)}, v{T+4}, {WS} sc1
    global_load_dwordx4 {vr(XL+4,4)}, v{T+4}, {WS} offset:1024 sc1
    {E_}:""")
    k(f"""s_waitcnt vmcnt(1)
    ds_write_b128 v{T+5}, {vr(XL,4)} offset:512
    s_waitcnt vmcnt(0)
    ds_write_b128 v{T+5}, {vr(XL+4,4)} offset:1536
    s_waitcnt lgkmcnt(0)""")
    prog_set(k, vPW, T, 2)
    prog_wait1(k, vPP, T, 2)
    stamp(k, 3)
    k("s_setprio 0")
    ra.n = base
    FB = [ra(32, 4), ra(32, 4)]; GB = [ra(32, 4), ra(32, 4)]
    if TW == 3: touch(ra(8))
    def reads(kk):
        o = []
        F, G = FB[kk & 1], GB[kk & 1]
        for i in range(8):
            o.append(f"ds_read_b128 {vr(G+4*i,4)}, v{VG} offset:{512*i + 192 - 64*kk}")
            o.append(f"ds_read2_b32 {vr(F+4*i,2)}, v{VF+i} offset0:{32*kk+6} offset1:{32*kk+4}")
            o.append(f"ds_read2_b32 {vr(F+4*i+2,2)}, v{VF+i} offset0:{32*kk+2} offset1:{32*kk}")
        return o
    for l in reads(0): k(l)
    su = Buf()
    VP = ra(4); vLP = ra()
    dma_patterns(su, VP, T)
    c_setup(su, sWp)
    su(f"""v_mov_b32 v{vLP}, {LPR}
    s_cmp_eq_u32 {sH}, 0
    s_cselect_b32 s36, s68, s72
    s_cselect_b32 s37, s69, s73
    s_mov_b32 s38, 524288
    s_mov_b32 s39, 0x20000
    s_lshl_b32 s40, {sDT}, 16
    s_lshl_b32 s41, {sCH}, 8
    s_add_u32 s40, s40, s41
    s_lshl_b32 s41, {sWp}, 14""")
    def cA(sl, comp, q):
        return [f"s_add_u32 m0, s77, {sl*32768 + comp*16384 + q*1024}", f"s_add_u32 s15, s76, {q*4096 + sl*256}",
                f"buffer_load_dwordx4 v{VP+q}, s[{68+4*comp}:{71+4*comp}], s15 offen lds"]
    def cB(i):
        return [f"s_add_u32 m0, s41, {65536 + i*1024}", f"s_add_u32 s15, s40, {i*4096 + 512}",
                f"buffer_load_dwordx4 v{VP+(i&3)}, s[36:39], s15 offen lds"]
    for kk in range(4):
        k("s_waitcnt lgkmcnt(0)")
        nxt = reads(kk + 1) if kk < 3 else []
        F, G = FB[kk & 1], GB[kk & 1]
        c_ = 0
        for n in range(8):
            for m in range(8 - n):
                a = ACC + 4 * (m + n)
                z = kk == 0 and n == 0
                k(f"v_mfma_f32_16x16x32_bf16 {vr(a,4)}, {vr(F+4*m,4)}, {vr(G+4*n,4)}, {'0' if z else vr(a,4)}")
                if nxt: k(nxt.pop(0))
                su.take(k, 1)
                c_ += 1
    stamp(k, 4)
    prog_set(k, vPW, T, 3)
    prog_wait1(k, vPP, T, 3)
    RD = FB[0]; YO = FB[0] + 16
    L1, L2 = k.lab("RH"), k.lab("RE")
    k(f"s_cmp_lg_u32 {sH}, 0\ns_cbranch_scc1 {L1}")
    for h in range(2):
        keep, send = ACC + 16*h, ACC + 16*(1-h)
        for q in range(4): k(f"ds_write_b128 v{vSC}, {vr(send+4*q,4)} offset:{1024*q}")
        prog_set(k, vPW, T, 4)
        prog_wait1(k, vPP, T, 4)
        for q in range(4): k(f"ds_read_b128 {vr(RD+4*q,4)}, v{vSP} offset:{1024*q}")
        for q in range(4):
            k(f"s_waitcnt lgkmcnt({3-q})")
            for r in range(4): k(f"v_add_f32 v{RD+4*q+r}, v{RD+4*q+r}, v{keep+4*q+r}")
        if h == 0: k(f"s_branch {L2}\n{L1}:")
    k(f"{L2}:")
    for q in range(4):
        for r in range(2): k(f"v_cvt_pk_bf16_f32 v{YO+2*q+r}, v{RD+4*q+2*r}, v{RD+4*q+2*r+1}")
    for p in range(2):
        for r in range(2): k(f"v_permlane16_swap_b32 v{YO+4*p+r}, v{YO+4*p+2+r}")
    vm.q = []
    prog_set(k, vPW, T, 5)
    for p in range(2):
        vm.op(f"global_store_dwordx4 v{vYA}, {vr(YO+4*p,4)}, {WS} offset:{1024*p} sc1", "y")
    k(f"""s_lshl_b32 s12, {sH}, 9
    s_add_u32 s12, s12, {sD}
    s_lshl_b32 s12, s12, 2
    s_add_u32 s12, s12, {F3_OFF}
    v_mov_b32 v4, s12
    v_mov_b32 v5, {sTAG}""")
    prog_wait4(k, vLP, T + 4, 0, 6)
    stamp(k, 5)
    for q in range(4):
        for l in cA(1, 1, q): k(l)
    for l in cB(15): k(l)
    k(f"""s_waitcnt vmcnt(5)
    s_mov_b64 exec, 1
    global_store_dword v4, v5, {WS} sc1
    s_mov_b64 exec, -1""")
    k(f"v_mov_b32 v2, v{vPW}")
    stamp(k, 6)
    return ra.hi

def phase2(k):
    vm = VM(k)
    sRP, sKQ, sRT, sDP = "s60", "s61", "s62", "s63"
    vG, GL, vO, vRW, vRR, vYF, Y8, SA, XB, ACC, HF, CF = 3, 4, 8, 9, 10, 11, 12, 20, 28, 32, 64, 128
    T = ACC; X2 = ACC + 8; AD = ACC + 12; BD = ACC + 16; VC = ACC + 20; vH = ACC + 24
    vF2, vF2b, vF3, vYb = ACC + 28, ACC + 29, ACC + 30, ACC + 31
    k(f"""s_and_b32 {sKQ}, {sW}, 3
    s_lshr_b32 {sRP}, {sW}, 2
    s_and_b32 {sRT}, {sKQ}, 1
    s_lshr_b32 {sDP}, {sKQ}, 1""")
    k(f"""s_lshl_b32 s12, {sR}, 2
    s_lshl_b32 s13, {sRP}, 1
    s_add_u32 s64, s12, s13
    s_add_u32 s12, s64, {sRT}
    s_lshl_b32 s12, s12, 4
    s_lshl_b32 s13, {sDT}, 6
    s_lshl_b32 s14, {sDP}, 5
    s_add_u32 s13, s13, s14
    v_and_b32 v{T}, 15, v1
    v_lshrrev_b32 v{T+1}, 4, v1
    v_and_b32 v{T+2}, 1, v1
    v_bfe_u32 v{T+3}, v1, 1, 3
    v_lshl_add_u32 v{T+2}, v{T+2}, 3, v{T+3}
    v_add_u32 v{T+2}, s12, v{T+2}
    v_lshl_add_u32 v{T+3}, v{T+1}, 2, s13
    v_lshlrev_b32 v{T+4}, 1, v{T+3}
    v_lshl_add_u32 v{T+5}, v{T+2}, 10, v{T+4}
    v_lshlrev_b32 v{vO}, 1, v{T+5}""")
    for e in range(2):
        vm.op(f"global_load_dwordx2 {vr(X2+2*e,2)}, v{T+5}, {X_} offset:{32*e}", "ep")
        vm.op(f"global_load_dwordx2 {vr(AD+2*e,2)}, v{T+4}, {ADS} offset:{32*e}", "ep")
        vm.op(f"global_load_dwordx2 {vr(BD+2*e,2)}, v{T+4}, {BDS} offset:{32*e}", "ep")
    k(f"""v_and_b32 v{vYF}, 63, v{T+2}
    v_lshlrev_b32 v{vYF}, 1, v{vYF}
    v_lshlrev_b32 v{vYb}, 5, v{T+1}
    v_xor_b32 v{vYF}, v{vYF}, v{vYb}
    v_and_b32 v{vYb}, 63, v{T+3}
    v_lshl_add_u32 v{vYF}, v{vYb}, 7, v{vYF}
    v_add_u32 v{vYF}, {LXT}, v{vYF}
    v_lshrrev_b32 v{vF2}, 1, v{T+2}
    v_lshlrev_b32 v{vF2}, 4, v{vF2}
    v_add_u32 v{vF2}, {F2_OFF}, v{vF2}
    s_lshr_b32 s14, {sR}, 4
    s_lshl_b32 s14, s14, 11
    s_lshl_b32 s15, {sDT}, 8
    s_add_u32 s14, s14, s15
    s_add_u32 s14, s14, {F3_OFF}
    v_lshl_add_u32 v{vF3}, v1, 2, s14
    s_lshl_b32 s14, {sR}, 9
    s_add_u32 s14, s14, {F2_OFF + 8}
    v_and_b32 v{vF2b}, 31, v1
    v_lshl_add_u32 v{vF2b}, v{vF2b}, 4, s14
    s_cmp_eq_u32 {sW}, {PW}
    s_cselect_b64 vcc, -1, 0
    v_cndmask_b32 v{vF3}, v{vF3}, v{vF2b}, vcc
    v_lshrrev_b32 v{vYb}, 5, v1
    v_lshlrev_b32 v{vYb}, 1, v{vYb}
    v_xor_b32 v{vYb}, v1, v{vYb}
    v_and_b32 v{vYb}, 7, v{vYb}
    v_lshlrev_b32 v{vYb}, 4, v{vYb}
    v_lshrrev_b32 v{vF2b}, 3, v1
    v_lshl_add_u32 v{vYb}, v{vF2b}, 12, v{vYb}
    v_xor_b32 v{vF2b}, 64, v{vYb}
    s_lshl_b32 s68, {sDT}, 18
    s_lshl_b32 s14, {sR}, 7
    s_add_u32 s68, s68, s14
    s_lshl_b32 s14, s64, 15
    {"s_and_b32 s14, s14, 0xfffeffff" if opt("hack", 0) == 1 else ""}
    {"s_sub_u32 s14, s14, 0x200000" if opt("hack", 0) == 2 else ""}
    {"s_and_b32 s14, s14, 0x70000" if opt("hack", 0) == 3 else ""}
    {"s_sub_u32 s14, s14, 0x200000" if opt("hack", 0) == 3 else ""}
    s_lshl_b32 s13, {sKQ}, 13
    s_add_u32 s14, s14, s13
    s_add_u32 s14, s14, {H_OFF}
    v_lshl_add_u32 v{vH}, v1, 4, s14
    s_and_b32 s13, {ROT}, 3
    s_lshl_b32 s14, s13, 11
    v_xor_b32 v{vH}, s14, v{vH}
    s_lshl_b32 s13, s13, 6
    v_xor_b32 v{T+2}, v{T}, v{T+1}
    v_lshlrev_b32 v{T+2}, 4, v{T+2}
    v_lshl_add_u32 v{T+2}, v{T}, 8, v{T+2}
    s_lshl_b32 s12, {sKQ}, 15
    v_add_u32 v{VC}, s12, v{T+2}
    v_xor_b32 v{VC}, s13, v{VC}""")
    for q in range(1, 4): k(f"v_xor_b32 v{VC+q}, {64*q}, v{VC}")
    srd(k, 64, WS, 0x900000)
    for i in range(8): k(f"v_mov_b32 v{Y8+i}, 0")
    k(f"""s_lshl_b32 s12, {sRP}, 15
    s_lshl_b32 s13, {sKQ}, 11
    s_add_u32 s13, s13, s12
    v_lshl_add_u32 v{vRW}, v1, 4, s13
    s_lshl_b32 s13, {sKQ}, 13
    s_add_u32 s13, s13, s12
    v_lshl_add_u32 v{vRR}, v1, 4, s13
    v_mov_b32 v{T+7}, {LPR}""")
    L1, L2 = k.lab("RL"), k.lab("RL")
    FLS = f"s_mov_b64 exec, 1\nglobal_store_dwordx4 v2, v[4:7], {WS}{HST}"
    if LOC:
        L3 = k.lab("RL")
        FLS = f"""s_mov_b64 exec, 1
        s_cmp_lg_u32 s0, s1
        s_cbranch_scc1 {L3}
        global_store_dwordx4 v2, v[4:7], {WS}
        s_mov_b64 exec, -1
        s_branch {L2}
        {L3}:
        global_store_dwordx4 v2, v[4:7], {WS} sc1"""
    k(f"""s_cmp_lg_u32 {sRP}, 0
    s_cbranch_scc1 {L1}
    s_waitcnt vmcnt(6)
    {FLS}
    s_mov_b64 exec, -1
    s_branch {L2}
    {L1}:
    v_mov_b32 v{T+6}, 6
    s_waitcnt vmcnt(7)
    ds_write_b32 v2, v{T+6}""")
    prog_wait4(k, T + 7, T, 0, 7)
    k(f"{L2}:")
    stamp(k, 7)
    prog_wait4(k, T + 7, T, 16, 6)
    stamp(k, 8)
    def cf(ks, dt): return CF + 4 * (4 * ks + dt)
    gl = f"global_load_dword v{GL}, v{vF3}, {WS} sc1"
    L = k.lab("NP")
    k(f"s_cmp_lt_u32 {sW}, 6\ns_cbranch_scc1 {L}\n{gl}\n{L}:")
    for ks in range(8):
        for dt in range(4):
            k(f"ds_read_b128 {vr(cf(ks,dt),4)}, v{VC+(ks>>1)} offset:{(ks&1)*16384 + dt*4096}")
    k("s_waitcnt vmcnt(0)")
    for w in range(4):
        k(f"""v_lshlrev_b32 v{T}, 16, v{X2+w}
        v_and_b32 v{T+1}, 0xffff0000, v{X2+w}
        v_lshlrev_b32 v{T+2}, 16, v{AD+w}
        v_and_b32 v{T+3}, 0xffff0000, v{AD+w}
        v_lshlrev_b32 v{T+4}, 16, v{BD+w}
        v_and_b32 v{T+5}, 0xffff0000, v{BD+w}
        v_pk_mul_f32 {vr(T+2,2)}, {vr(T,2)}, {vr(T+2,2)}
        v_pk_mul_f32 {vr(T+4,2)}, {vr(T,2)}, {vr(T+4,2)}
        v_cvt_pk_bf16_f32 v{T+2}, v{T+2}, v{T+3}
        v_cvt_pk_bf16_f32 v{XB+w}, v{T+4}, v{T+5}
        v_lshlrev_b32 v{SA+2*w}, 16, v{T+2}
        v_and_b32 v{SA+2*w+1}, 0xffff0000, v{T+2}""")
    for q in range(4): k(f"v_xor_b32 v{X2+2*q}, {2048*q}, v{vH}\nv_xor_b32 v{X2+2*q+1}, {2048*q+32768}, v{vH}")
    L, D, D2 = k.lab("SP"), k.lab("SD"), k.lab("SD")
    k(f"""s_cmp_lt_u32 {sW}, 6
    s_cbranch_scc1 {D2}
    s_mov_b32 s11, {SPIN}
    {L}:
    s_waitcnt vmcnt(0)
    v_cmp_ne_u32 vcc, {sTAG}, v{GL}
    s_and_b64 exec, exec, vcc
    s_cbranch_scc0 {D}
    s_sub_u32 s11, s11, 1
    s_cmp_eq_u32 s11, 0
    s_cbranch_scc1 {D}
    {"s_sleep %d" % PSL if PSL else ""}
    {gl}
    s_branch {L}
    {D}:
    s_mov_b64 exec, -1
    s_cmp_eq_u32 {sW}, {PW}
    s_cbranch_scc1 {D2}""")
    for i in range(8):
        k(f"""s_mov_b32 m0, {LXT + i*1024}
        s_add_u32 s15, s68, {Y_OFF + i*32768}
        buffer_load_dwordx4 v{vF2b if i & 1 else vYb}, s[64:67], s15 offen sc1 lds""")
    k(f"""s_waitcnt vmcnt(0)
    {D2}:
    s_waitcnt lgkmcnt(0)
    s_setprio 0
    s_barrier""")
    vm.q = []
    def hl(ks):
        for rt in range(2):
            vm.op(f"global_load_dwordx4 {vr(HF+8*ks+4*rt,4)}, v{X2+2*(ks>>1)+rt}, {CRE if opt('hack', 0) == 3 else WS} offset:{(ks&1)*1024}{HSC}", f"h{ks}")
    hl(0)
    vm.op(f"global_load_dwordx2 {vr(GL,2)}, v{vF2}, {WS} sc1", "g")
    hl(1)
    for ks in range(2, 8): hl(ks)
    stamp(k, 9)
    for i in range(8): k(f"ds_read_u16_d16_hi v{Y8+i}, v{vYF} offset:{(16*(i>>2) + (i&3))*128}")
    def prepG():
        k(f"""v_and_b32 v2, 2, v1
        s_waitcnt lgkmcnt(0)
        v_cmp_eq_u32 vcc, 0, v2
        v_cndmask_b32 v{vG}, v{GL+1}, v{GL}, vcc
        v_sub_f32 v2, 1.0, v{vG}
        v_cvt_pk_bf16_f32 v2, v2, v2
        v_and_b32 v2, 0xffff0000, v2""")
    def prepB(w):
        k(f"""v_lshlrev_b32 v4, 16, v{XB+w}
        v_and_b32 v5, 0xffff0000, v{XB+w}
        v_pk_add_f32 v[4:5], v[4:5], {vr(Y8+2*w,2)}
        v_cvt_pk_bf16_f32 v4, v4, v5
        v_and_b32 v5, 0xffff0000, v4
        v_lshlrev_b32 v4, 16, v4
        v_mul_f32 v4, v2, v4
        v_mul_f32 v5, v2, v5
        v_cvt_pk_bf16_f32 v4, v4, v5
        v_lshlrev_b32 v{Y8+2*w}, 16, v4
        v_and_b32 v{Y8+2*w+1}, 0xffff0000, v4""")
    for ks in range(8):
        vm.wait(f"h{ks}")
        for dt in range(4):
            for rt in range(2):
                a = ACC + 16 * rt + 4 * dt
                k(f"v_mfma_f32_16x16x32_bf16 {vr(a,4)}, {vr(cf(ks,dt),4)}, {vr(HF+8*ks+4*rt,4)}, {'0' if ks == 0 else vr(a,4)}")
        if ks == 1: prepG()
        if 2 <= ks < 6: prepB(ks - 2)
    stamp(k, 10)
    U = HF; TBv = HF + 32
    for dst in range(4):
        for e in range(2):
            a = ACC + 16 * (dst & 1) + 4 * (2 * (dst >> 1) + e)
            k(f"ds_write_b128 v{vRW}, {vr(a,4)} offset:{dst*8192 + e*1024}")
    k("s_waitcnt lgkmcnt(0)\ns_barrier")
    for src in range(4):
        for e in range(2):
            k(f"ds_read_b128 {vr(U+8*src+4*e,4)}, v{vRR} offset:{src*2048 + e*1024}")
    for src in range(4):
        k(f"s_waitcnt lgkmcnt({6-2*src})")
        for i in range(4): k(f"v_pk_add_f32 {vr(SA+2*i,2)}, {vr(SA+2*i,2)}, {vr(U+8*src+2*i,2)}")
    for e in range(2):
        for i in range(4*e, 4*e + 4): k(f"v_fma_f32 v{TBv+i}, v{vG}, v{SA+i}, v{Y8+i}")
        k(f"global_store_dwordx4 v{vO}, {vr(TBv+4*e,4)}, {OUTP} offset:{64*e}")
    stamp(k, 11)
    stamps_out(k)

import re
def unpk(L):
    o = []; on = False
    for l in L:
        t = l.strip()
        if t.startswith("; REG"):
            on = t.split()[2] in UNPK; continue
        m = re.match(r"v_pk_(fma|mul|add)_f32 (.*)", t)
        if not (m and on): o.append(l); continue
        op = m.group(1); rest = m.group(2)
        regs = [int(x) for x in re.findall(r"v\[(\d+):\d+\]", rest)]
        n = len(regs) - 1
        assert n == (3 if op == "fma" else 2), t
        def mod(name, dflt):
            mm = re.search(name + r":\[([\d,]+)\]", rest)
            return [int(x) for x in mm.group(1).split(",")] if mm else [dflt] * n
        sl, shi, nl, nh = mod("op_sel", 0), mod("op_sel_hi", 1), mod("neg_lo", 0), mod("neg_hi", 0)
        d = regs[0]; two = []
        for dd, se, ng in ((d, sl, nl), (d + 1, shi, nh)):
            src = [regs[1 + i] + se[i] for i in range(n)]
            if op == "fma" and src[2] == dd and not any(ng): ins = f"v_fmac_f32 v{dd}, v{src[0]}, v{src[1]}"
            else: ins = f"v_{op}_f32 v{dd}, " + ", ".join(("-" if ng[i] else "") + f"v{src[i]}" for i in range(n))
            two.append((ins, src))
        if d in two[1][1]:
            assert d + 1 not in two[0][1], t
            two.reverse()
        o += ["    " + x[0] for x in two]
    return o
UNPK = opt_s("unpk", "")
def finish(k):
    k(f"{k.label}_END:")
    k.L = unpk(k.L)
    k.L, n = haz.fix(k.L)
    print(k.label, "nops added", n, "vgpr", k.vgpr, "lines", len(k.L))

YF = opt("yf", 12)
HSC = " sc1" if opt("hsc", 0) else ""
PSL = opt("psl", 0)
PW = opt("pw", 7)
ROT = {0: "0", 1: sDT, 2: sW}[opt("rot", 1)]
k1 = K(NAME + "_kernel", 256, 512, LDS_TOTAL)
prologue(k1)
lds_zero_and_nonce(k1)
k1(f"s_cmp_ge_u32 {sW}, 4\ns_cbranch_scc1 {k1.label}_S4")
h5 = s5(k1)
k1(f"{k1.label}_S4:\n; REG E")
h4 = s4(k1)
print(h5, h4)
k1(f"{k1.label}_P2:\n; REG F")
phase2(k1)
finish(k1)
emit([k1], OUT, single=True)
```

```python
import sys, math
from lib import *
import haz
FUSED = True
def opt(n, d):
    for a in sys.argv:
        if a.startswith(f"--{n}="): return int(a.split("=")[1])
    return d
def opt_s(n, d):
    for a in sys.argv:
        if a.startswith(f"--{n}="): return a.split("=")[1]
    return d
MAP = opt("map", 1); HST = {0: "", 1: " sc1", 2: " nt", 3: " sc0"}[opt("hst", 1)]
LOCP = opt("locp", 0); HFS = {0: "", 2: " nt"}[opt("hfs", 0)]; OST = {0: "", 1: " sc1", 2: " nt", 3: " sc0 sc1", 4: " sc1 nt", 5: " sc0 sc1 nt"}[opt("ost", 0)]
LOC = opt("loc", 0); TW = opt("tw", 2); PFS = opt("pfs", 1); HTS = opt("hts", 1); HTG = opt("htg", 128); CST = opt("cst", 3)
SH1 = opt("sh1", 4); SH2 = opt("sh2", 8); SH3 = opt("sh3", 6)
STAMPS = "--stamps" in sys.argv
OUT = [a for a in sys.argv[1:] if a.endswith(".s")][0]

XT_OFF, H_OFF, Y_OFF, E_OFF = 0, 0x200000, 0x600000, 0x800000
F1_OFF, F2_OFF, F3_OFF, ST_OFF = 0x820000, 0x821000, 0x825000, 0x830000
LB, LX, LS = 0, 65536, 131072
LKC, LP, CHS = LS, LS + 2752, 11008
LPR = LS + 22016
LXT, XTS = LS + 22048, 4608
LH = LS + 31264
LDS_TOTAL = LH + 1024
LOG2E = 1.4426950408889634
INV2PI = 0.15915494309189535
import struct
def fl(x): return "0x%08x" % struct.unpack("<I", struct.pack("<f", x))[0]
SPIN = 1 << 20

X_, LRE, LIM, BRE, BIM, CRE, CIM, ALDT = [f"s[{16+2*i}:{17+2*i}]" for i in range(8)]
ADS, _BU, SARE, SAIM, SBRE, SBIM, SCRE, SCIM = [f"s[{32+2*i}:{33+2*i}]" for i in range(8)]
BLDT, BDS, GW, OUTP, DBG, WS = [f"s[{48+2*i}:{49+2*i}]" for i in range(6)]
sW, sXCD, sI, sC, sJ, sR, sDT = "s3", "s4", "s5", "s6", "s7", "s8", "s9"
sTAG = "s10"

class RA:
    def __init__(s, start=2, end=256): s.n = start; s.end = end; s.hi = start
    def __call__(s, n=1, al=1):
        s.n = (s.n + al - 1) // al * al
        r = s.n; s.n += n; s.hi = max(s.hi, s.n); assert s.n <= s.end, "out of vgprs"
        return r
def vr(a, n): return f"v[{a}:{a+n-1}]" if n > 1 else f"v{a}"

class VM:
    def __init__(s, k): s.k = k; s.q = []
    def op(s, line, tag=None): s.k(line); s.q.append(tag)
    def wait(s, tag):
        idx = max(i for i, t in enumerate(s.q) if t == tag)
        n = len(s.q) - 1 - idx
        n = min(n, 63)
        s.k(f"s_waitcnt vmcnt({n})")
    def all(s): s.k("s_waitcnt vmcnt(0)")

def sreg(i): return 98 if i == 0 else (100 if i == 11 else 76 + 2*i)
def stamp(k, i):
    if STAMPS: k(f"s_memrealtime s[{sreg(i)}:{sreg(i)+1}]")
def stamps_out(k):
    if not STAMPS: return
    k(f"""s_lshl_b32 s11, {sW}, 8
    s_add_u32 s11, s11, s2
    s_lshl_b32 s11, s11, 6
    s_add_u32 s11, s11, {ST_OFF}
    v_mov_b32 v8, s11
    s_mov_b64 exec, 1
    s_waitcnt lgkmcnt(0)""")
    for i in range(12):
        k(f"v_mov_b32 v9, s{sreg(i)}\nglobal_store_dword v8, v9, {WS} offset:{4*i}")

def srd(k, s, ptr, size):
    a = int(ptr[2:ptr.index(":")])
    k(f"s_mov_b32 s{s}, s{a}\ns_and_b32 s{s+1}, s{a+1}, 0xffff\ns_mov_b32 s{s+2}, {size}\ns_mov_b32 s{s+3}, 0x20000")

def prologue(k, first=True):
    k(f"""s_cmp_ge_u32 s2, 256
    s_cbranch_scc1 {k.label}_END
    s_load_dwordx16 s[16:31], s[0:1], 0
    s_load_dwordx16 s[32:47], s[0:1], 64
    s_load_dwordx8 s[48:55], s[0:1], 128
    s_load_dwordx4 s[56:59], s[0:1], 160
    s_memrealtime s[98:99]
    s_getpc_b64 s[12:13]
    {k.label}_PC:
    v_lshrrev_b32 v2, 6, v0
    v_and_b32 v1, 63, v0
    v_readfirstlane_b32 {sW}, v2
    s_and_b32 {sXCD}, s2, 7
    s_lshr_b32 {sI}, s2, 3
    """)
    L = k.lab("NPF")
    k(f"""s_cmp_lg_u32 {sW}, {k.block//64-1}
    s_cbranch_scc1 {L}
    s_and_b32 s11, {sI}, 3
    s_lshl_b32 s11, s11, 13
    v_lshlrev_b32 v2, 7, v1
    v_add_u32 v2, s11, v2
    v_min_u32 v2, {k.label}_END-{k.label}_PC, v2
    global_load_dword v3, v2, s[12:13]
    {L}:
    """)
    if MAP == 0: k(f"""s_and_b32 s11, {sXCD}, 3
    s_and_b32 s14, {sI}, 3
    s_lshl_b32 {sC}, s11, 2
    s_add_u32 {sC}, {sC}, s14
    s_lshr_b32 s15, {sXCD}, 2
    s_lshr_b32 {sDT}, {sI}, 2
    s_lshl_b32 {sJ}, s15, 3
    s_add_u32 {sJ}, {sJ}, {sDT}
    s_lshl_b32 {sR}, s11, 3
    s_lshl_b32 s15, s15, 2
    s_add_u32 {sR}, {sR}, s15
    s_add_u32 {sR}, {sR}, s14
    """)
    else: k(f"""s_and_b32 s11, {sI}, 1
    s_lshl_b32 {sC}, {sXCD}, 1
    s_add_u32 {sC}, {sC}, s11
    s_lshr_b32 {sJ}, {sI}, 1
    s_lshr_b32 {sDT}, {sI}, 2
    s_and_b32 s14, {sI}, 3
    s_lshl_b32 {sR}, {sXCD}, 2
    s_add_u32 {sR}, {sR}, s14
    """)

def census(k, a, b, sh=0):
    L = k.lab("NA")
    k(f"""s_cmp_lg_u32 {sW}, {opt("locw", 5)}
    s_cbranch_scc1 {L}
    v_mov_b32 v{a}, s0
    v_mov_b32 v{b}, s1
    {f"v_lshrrev_b32 v{a}, 5, v{a}" if sh else ""}
    s_mov_b64 exec, 1
    global_atomic_add v{b}, v{a}, {DBG}{" sc1" if LOC == 2 else ""}
    s_mov_b64 exec, -1
    {L}:""")

def lds_zero_and_nonce(k):
    L = k.lab("NN")
    k(f"""s_lshl_b32 s11, {sW}, 10
    s_add_u32 s14, s11, {LS}
    s_add_u32 s15, s11, {LS + CHS - 3072}
    s_cmp_lt_u32 {sW}, 3
    s_cselect_b32 s14, s14, s15
    s_cmp_eq_u32 {sW}, 6
    s_cselect_b32 s14, {LPR}, s14
    s_cmp_eq_u32 {sW}, 7
    s_cselect_b32 s14, {LXT + XTS}, s14
    v_lshl_add_u32 v2, v1, 4, s14
    v_mov_b32 v4, 0
    v_mov_b32 v5, 0
    v_mov_b32 v6, 0
    v_mov_b32 v7, 0
    ds_write_b128 v2, v[4:7]
    s_waitcnt lgkmcnt(0)
    s_or_b32 s11, s2, {sW}
    s_cmp_lg_u32 s11, 0
    s_cbranch_scc1 {L}
    s_or_b32 s11, s98, 1
    v_mov_b32 v5, s11
    s_mov_b64 exec, 1
    global_store_dword v4, v5, {DBG} sc1
    s_mov_b64 exec, -1
    {L}:""")
    if LOC:
        L = k.lab("NA")
        k(f"""s_getreg_b32 s0, hwreg(HW_REG_XCC_ID, 0, 4)
        s_mul_i32 s1, s0, s0
        s_lshl_b32 s1, s1, 9
        s_add_u32 s0, s0, s1
        s_lshl_b32 s0, s0, 6
        s_add_u32 s0, s0, 1
        s_lshl_b32 s1, {sXCD}, 4
        s_add_u32 s1, s1, 128
        """)
        if LOCP == 0: census(k, 5, 6)
        k(f"""        s_lshl_b32 s0, s0, 5""")

def get_tag(k, vm, vt, vz):
    L, D = k.lab("TG"), k.lab("TD")
    vm.wait("tag")
    k(f"""v_readfirstlane_b32 {sTAG}, v{vt}
    s_cmp_lg_u32 {sTAG}, 0
    s_cbranch_scc1 {D}
    s_mov_b32 s11, {SPIN}
    {L}:
    global_load_dword v{vt}, v{vz}, {DBG} sc1
    s_waitcnt vmcnt(0)
    v_readfirstlane_b32 {sTAG}, v{vt}
    s_sub_u32 s11, s11, 1
    s_cmp_eq_u32 s11, 0
    s_cbranch_scc1 {D}
    s_cmp_eq_u32 {sTAG}, 0
    s_cbranch_scc1 {L}
    {D}:""")

def prog_set(k, vaddr, vtmp, val):
    k(f"v_mov_b32 v{vtmp}, {val}\nds_write_b32 v{vaddr}, v{vtmp}")
def prog_wait4(k, vz, vt4, off, val):
    L, D = k.lab("PW"), k.lab("PD")
    k(f"""s_mov_b32 s11, {SPIN}
    {L}:
    ds_read_b128 {vr(vt4,4)}, v{vz} offset:{off}
    s_waitcnt lgkmcnt(0)
    v_min3_u32 v{vt4}, v{vt4}, v{vt4+1}, v{vt4+2}
    v_min_u32 v{vt4}, v{vt4}, v{vt4+3}
    s_sub_u32 s11, s11, 1
    v_readfirstlane_b32 s14, v{vt4}
    s_cmp_eq_u32 s11, 0
    s_cbranch_scc1 {D}
    s_cmp_lt_u32 s14, {val}
    s_cbranch_scc1 {L}
    {D}:""")
def prog_wait1(k, vaddr, vt, val):
    L, D = k.lab("PW"), k.lab("PD")
    k(f"""s_mov_b32 s11, {SPIN}
    {L}:
    ds_read_b32 v{vt}, v{vaddr}
    s_waitcnt lgkmcnt(0)
    s_sub_u32 s11, s11, 1
    v_readfirstlane_b32 s14, v{vt}
    s_cmp_eq_u32 s11, 0
    s_cbranch_scc1 {D}
    s_cmp_lt_u32 s14, {val}
    s_cbranch_scc1 {L}
    {D}:""")

def cexp(k, va, vth, n, dre, dim, t0, t1):
    k(f"""v_mul_f32 v{t0}, {n}, v{va}
    v_mul_f32 v{t1}, {n}, v{vth}
    v_exp_f32 v{t0}, v{t0}
    v_fract_f32 v{t1}, v{t1}
    v_cos_f32 v{dre}, v{t1}
    v_sin_f32 v{dim}, v{t1}
    v_mul_f32 v{dre}, v{dre}, v{t0}
    v_mul_f32 v{dim}, v{dim}, v{t0}""")
def cmul(k, dr, di, ar, ai, br, bi):
    k(f"""v_mul_f32 v{dr}, v{ar}, v{br}
    v_mul_f32 v{di}, v{ar}, v{bi}
    v_fma_f32 v{dr}, -v{ai}, v{bi}, v{dr}
    v_fmac_f32 v{di}, v{ai}, v{br}""")
def cfma(k, dr, di, ar, ai, br, bi):
    k(f"""v_fmac_f32 v{dr}, v{ar}, v{br}
    v_fmac_f32 v{di}, v{ar}, v{bi}
    v_fma_f32 v{dr}, -v{ai}, v{bi}, v{dr}
    v_fmac_f32 v{di}, v{ai}, v{br}""")

def dma_patterns(k, VP, t):
    k(f"""v_lshrrev_b32 v{t}, 4, v1
    v_and_b32 v{VP}, 15, v1
    v_xor_b32 v{VP}, v{VP}, v{t}
    v_lshlrev_b32 v{VP}, 4, v{VP}
    v_lshl_add_u32 v{VP}, v{t}, 10, v{VP}""")
    for q in range(1, 4): k(f"v_xor_b32 v{VP+q}, {64*q}, v{VP}")

def c_dma(k, vm, VP, half, wsg, cb=None):
    for sl in (2*half, 2*half+1):
        for comp in range(2):
            for q in range(4):
                k(f"s_add_u32 m0, s77, {sl*32768 + comp*16384 + q*1024}")
                k(f"s_add_u32 s15, s76, {q*4096 + sl*256}")
                vm.op(f"buffer_load_dwordx4 v{VP+q}, s[{68+4*comp}:{71+4*comp}], s15 offen lds", f"C{half}")
                if cb: cb()
def c_setup(k, wsg):
    srd(k, 68, CRE, 524288); srd(k, 72, CIM, 524288)
    k(f"""s_lshl_b32 s76, {sDT}, 16
    s_lshl_b32 s77, {wsg}, 14
    s_add_u32 s76, s76, s77
    s_lshl_b32 s77, {wsg}, 12""")

def pcmul(k, d, a, b):
    k(f"v_pk_mul_f32 {vr(d,2)}, {vr(a,2)}, {vr(b,2)} op_sel:[0,0] op_sel_hi:[0,1]")
    k(f"v_pk_fma_f32 {vr(d,2)}, {vr(a,2)}, {vr(b,2)}, {vr(d,2)} op_sel:[1,1,0] op_sel_hi:[1,0,1] neg_lo:[1,0,0]")


def spec_wait4(k, vz, vt4, off, val, reads):
    L, D = k.lab("SW"), k.lab("SD")
    k(f"s_mov_b32 s11, {SPIN}\n{L}:\nds_read_b128 {vr(vt4,4)}, v{vz} offset:{off}")
    for r in reads: k(r)
    k(f"""s_waitcnt lgkmcnt({min(len(reads), 15)})
    v_min3_u32 v{vt4}, v{vt4}, v{vt4+1}, v{vt4+2}
    v_min_u32 v{vt4}, v{vt4}, v{vt4+3}
    s_sub_u32 s11, s11, 1
    v_readfirstlane_b32 s14, v{vt4}
    s_cmp_eq_u32 s11, 0
    s_cbranch_scc1 {D}
    s_cmp_lt_u32 s14, {val}
    s_cbranch_scc1 {L}
    {D}:""")
class Buf:
    def __init__(s): s.L = []
    def __call__(s, t):
        for l in t.strip("\n").split("\n"):
            if l.strip(): s.L.append(l.strip())
    def take(s, k, n):
        for _ in range(min(n, len(s.L))): k(s.L.pop(0))
def pk_cfma_b(k, dR, dI, a, sR, sI):
    k(f"v_pk_fma_f32 {vr(dR,2)}, {vr(a,2)}, {vr(sR,2)}, {vr(dR,2)} op_sel:[0,0,0] op_sel_hi:[0,1,1]")
    k(f"v_pk_fma_f32 {vr(dI,2)}, {vr(a,2)}, {vr(sI,2)}, {vr(dI,2)} op_sel:[0,0,0] op_sel_hi:[0,1,1]")
    k(f"v_pk_fma_f32 {vr(dR,2)}, {vr(a,2)}, {vr(sI,2)}, {vr(dR,2)} op_sel:[1,0,0] op_sel_hi:[1,1,1] neg_lo:[1,0,0] neg_hi:[1,0,0]")
    k(f"v_pk_fma_f32 {vr(dI,2)}, {vr(a,2)}, {vr(sR,2)}, {vr(dI,2)} op_sel:[1,0,0] op_sel_hi:[1,1,1]")
def pcfma(k, d, a, b):
    k(f"v_pk_fma_f32 {vr(d,2)}, {vr(a,2)}, {vr(b,2)}, {vr(d,2)} op_sel:[0,0,0] op_sel_hi:[0,1,1]")
    k(f"v_pk_fma_f32 {vr(d,2)}, {vr(a,2)}, {vr(b,2)}, {vr(d,2)} op_sel:[1,1,0] op_sel_hi:[1,0,1] neg_lo:[1,0,0]")

def s5(k):
    ra = RA(8); vm = VM(k)
    MS = 18
    VP = ra(4); VPX = ra(4); VA = ra(8); VX = ra(8)
    T = ra(8, 4); vPR = ra(); vPW = ra(); vZ = ra(); vTG = ra()
    pLre, pLim, pDt, va, vth, vS, vG, vXR = [ra() for _ in range(8)]
    L1 = ra(2, 2); L8 = ra(2, 2); L16 = ra(2, 2); C2 = ra(2, 2); SR = ra(2, 2); SI = ra(2, 2); LSR = ra(2, 2); LSI = ra(2, 2); H = ra(2, 2)
    Q = ra(6, 2)
    GX = ra(8, 4); GWv = ra(8, 4)
    ACR = ra(16, 4); ACI = ra(16, 4)
    FR = ra(24, 4)
    EX = ra(16, 4)
    EG = ra(32, 4); XR = EG
    RT = ra(16, 4)
    Wt = ra(4, 2)
    vGA = ra(); vEA = ra(); vPF = ra(); vHW = ra(); vHR = ra(); vHT = ra()
    k("; REG A")
    srd(k, 60, X_, 2097152)
    k(f"""s_and_b32 s11, {sW}, 1
    s_cmp_eq_u32 s11, 0
    s_cselect_b32 s64, s22, s24
    s_cselect_b32 s65, s23, s25
    s_cselect_b32 s68, s26, s28
    s_cselect_b32 s69, s27, s29
    s_and_b32 s65, s65, 0xffff
    s_mov_b32 s66, 524288
    s_mov_b32 s67, 0x20000""")
    pfs = f"""s_and_b32 s69, s69, 0xffff
    s_mov_b32 s70, 524288
    s_mov_b32 s71, 0x20000
    s_lshl_b32 s45, {sI}, 1
    s_lshr_b32 s46, {sW}, 1
    s_add_u32 s45, s45, s46
    s_lshl_b32 s45, s45, 13
    v_lshlrev_b32 v{vPF}, 7, v1"""
    if PFS == -2:
        k(pfs); pfs = ""
        vm.op(f"buffer_load_dword v{vPF}, v{vPF}, s[68:71], s45 offen", "pf")
    dma_patterns(k, VP, T)
    k(f"""v_and_b32 v{T}, 31, v1
    s_lshl_b32 s14, {sJ}, 6
    v_lshl_add_u32 v{T+1}, v{T}, 1, s14
    v_lshrrev_b32 v{T+2}, 5, v1
    s_lshl_b32 s14, {sC}, 7
    s_lshl_b32 s15, {sW}, 5
    s_add_u32 s14, s14, s15
    s_lshl_b32 s36, s14, 10
    s_lshl_b32 s15, {sJ}, 11
    s_add_u32 s15, s15, s36
    v_lshlrev_b32 v{T+3}, 5, v{T}
    v_lshl_add_u32 v{T+4}, v{T+2}, 10, v{T+3}
    v_add_u32 v{T+4}, s15, v{T+4}
    v_mov_b32 v{vZ}, 0""")
    if LOC: k(f"v_writelane_b32 v{vZ}, s1, 1")
    vm.op(f"global_load_ushort v{pDt}, v{T+1}, {ALDT}", "par")
    vm.op(f"global_load_ushort v{pLre}, v{T+1}, {LRE}", "par")
    vm.op(f"global_load_ushort v{pLim}, v{T+1}, {LIM}", "par")
    k(f"""s_add_u32 s11, {sC}, {sJ}
    s_and_b32 s11, s11, 3
    s_lshl_b32 s37, s11, 8
    s_add_u32 s38, s37, 256
    s_and_b32 s38, s38, 1023
    s_add_u32 s39, s37, 512
    s_and_b32 s39, s39, 1023
    s_add_u32 s40, s37, 768
    s_and_b32 s40, s40, 1023
    s_lshr_b32 s11, {sW}, 1
    s_lshl_b32 s41, {sJ}, 15
    s_lshl_b32 s14, s11, 14
    s_add_u32 s41, s41, s14
    s_lshl_b32 s42, s11, 12
    s_and_b32 s11, {sW}, 1
    s_lshl_b32 s11, s11, 13
    s_add_u32 s42, s42, s11
    s_lshl_b32 s43, {sW}, 14
    s_add_u32 s43, s43, {LX}
    v_lshrrev_b32 v{T+5}, 4, v1
    v_and_b32 v{T+6}, 1, v{T+5}
    v_lshlrev_b32 v{T+6}, 3, v{T+6}
    v_add_u32 v{T+6}, v{T+6}, v{T+2}
    v_sub_u32 v{T+6}, v{T+6}, v{T+5}
    v_lshlrev_b32 v{T+6}, 10, v{T+6}""")
    for q in range(4): k(f"v_add_u32 v{VPX+q}, v{VP+q}, v{T+6}")
    sh = Buf()
    def dB(slot, qs=range(4), n=0):
        for q in qs:
            k(f"s_add_u32 s14, s41, s{37+slot}")
            k(f"s_add_u32 m0, s42, {LB + slot*16384 + q*1024}")
            k(f"s_add_u32 s15, s14, {q*4096}")
            vm.op(f"buffer_load_dwordx4 v{VP+q}, s[64:67], s15 offen lds", f"B{slot}")
            sh.take(k, n)
    def dX(slot, ring, n=0):
        k(f"s_add_u32 s14, s36, s{37+slot}")
        for i in range(8):
            k(f"s_add_u32 m0, s43, {ring*8192 + i*1024}")
            k(f"s_add_u32 s15, s14, {(16*(i&1) + 2*(i>>1))*1024}")
            vm.op(f"buffer_load_dwordx4 v{VPX+(i&3)}, s[60:63], s15 offen lds", f"X{slot}")
            sh.take(k, n)
    vm.op(f"global_load_dwordx4 {vr(GX,4)}, v{T+4}, {X_}", "gate")
    vm.op(f"global_load_dwordx4 {vr(GX+4,4)}, v{T+4}, {X_} offset:16", "gate")
    vm.op(f"global_load_dwordx4 {vr(GWv,4)}, v{T+3}, {GW}", "gate")
    vm.op(f"global_load_dwordx4 {vr(GWv+4,4)}, v{T+3}, {GW} offset:16", "gate")
    k('s_barrier')
    sh(f"""v_and_b32 v{T+5}, 15, v1
    v_xor_b32 v{T+5}, v{T+5}, v{T+2}
    v_lshlrev_b32 v{T+5}, 4, v{T+5}
    v_lshl_add_u32 v{VA}, v{T}, 8, v{T+5}""")
    for ks in range(1, 8): sh(f"v_xor_b32 v{VA+ks}, {32*ks}, v{VA}")
    for ks in range(8): sh(f"v_add_u32 v{VX+ks}, s43, v{VA+ks}")
    sh(f"""v_mov_b32 v{vPR}, {LPR}
    s_lshl_b32 s11, {sW}, 2
    v_add_u32 v{vPW}, s11, v{vPR}
    s_lshl_b32 s11, {sW}, 1
    v_add_u32 v{vS}, s11, v{T+2}
    {pfs}
    s_lshl_b32 s46, {sJ}, 13
    s_add_u32 s46, s46, {E_OFF}
    v_lshl_add_u32 v{vGA}, v1, 4, s46
    s_lshl_b32 s46, {sC}, 9
    v_add_u32 v{vEA}, s46, v{vGA}
    s_lshl_b32 s46, {sW}, 11
    v_add_u32 v{vGA}, s46, v{vGA}
    v_lshlrev_b32 v{vHR}, 3, v{T}
    v_add_u32 v{vHR}, {LH}, v{vHR}
    s_lshl_b32 s46, {sW}, 8
    v_add_u32 v{vHW}, s46, v{vHR}
    s_lshl_b32 s46, {sC}, 2
    s_add_u32 s46, s46, {sW}
    s_lshl_b32 s46, s46, 4
    s_add_u32 s46, s46, {sJ}
    s_lshl_b32 s46, s46, 4
    s_add_u32 s46, s46, {F2_OFF}
    v_mov_b32 v2, s46""")
    srd(sh, 72, CRE, 524288)
    sh(f"""s_lshl_b32 s46, {sC}, 2
    s_add_u32 s46, s46, {sW}
    s_lshl_b32 s46, s46, 5
    s_add_u32 s46, s46, {sJ}
    s_lshl_b32 s46, s46, 11
    s_add_u32 s34, s46, {H_OFF}
    v_bfe_u32 v{vHT}, v1, 4, 1
    v_lshlrev_b32 v{vHT}, 8, v{vHT}
    v_and_or_b32 v{vHT}, v1, 15, v{vHT}
    v_lshl_add_u32 v{vHT}, v{vHT}, 7, s34""")
    if HTS == -3:
        a = int(WS[2:WS.index(":")])
        sh(f"s_add_u32 s76, s{a}, s34\ns_addc_u32 s77, s{a+1}, 0")
        for hh in range(2):
            for o in range(0, 2048, HTG): sh(f"s_load_dword s35, s[76:77], {hh*32768 + o}")
    if PFS == -3:
        sh(f"s_add_u32 s96, s68, s45\ns_addc_u32 s97, s69, 0")
        for o in range(0, 8192, HTG): sh(f"s_load_dword s35, s[96:97], {o}")
    ht = lambda: vm.op(f"global_load_dword v{vHT}, v{vHT}, {WS}", "ht")
    sh(f"""s_lshl_b32 s25, {sDT}, 16
    s_lshr_b32 s46, {sW}, 1
    s_lshl_b32 s22, s46, 15
    s_add_u32 s22, s22, s25
    s_lshl_b32 s23, s46, 13
    s_lshl_b32 s24, s46, 8
    s_add_u32 s24, s24, s25
    s_and_b32 s46, {sW}, 1
    s_lshl_b32 s46, s46, 14
    s_add_u32 s23, s23, s46
    s_lshl_b32 s46, {sW}, 14
    s_add_u32 s25, s25, s46
    s_lshl_b32 s44, {sW}, 12""")
    def dC(t_, i):
        lb, lo, gb, go, sr = {"CA": ("s23", 0, "s22", 0, 68), "CR": ("s43", 0, "s24", 512, 68), "CB": ("s44", 32768, "s25", 256, 72)}[t_]
        k(f"s_add_u32 m0, {lb}, {lo + i*1024}\ns_add_u32 s15, {gb}, {go + i*4096}")
        vm.op(f"buffer_load_dwordx4 v{VP+(i&3)}, s[{sr}:{sr+3}], s15 offen lds", "C")
    dB(0, n=5); dX(0, 0, n=5); sh.take(k, 999)
    vm.wait("gate")
    sh(f"""v_lshlrev_b32 v{pDt}, 16, v{pDt}
    v_lshlrev_b32 v{pLre}, 16, v{pLre}
    v_mul_f32 v{pDt}, {fl(LOG2E)}, v{pDt}
    v_lshlrev_b32 v{pLim}, 16, v{pLim}
    v_exp_f32 v{pDt}, v{pDt}
    v_cvt_pk_bf16_f32 v{pDt}, v{pDt}, v{pDt}
    v_lshlrev_b32 v{pDt}, 16, v{pDt}
    v_mul_f32 v{va}, v{pDt}, v{pLre}
    v_mul_f32 v{vth}, v{pDt}, v{pLim}
    v_mul_f32 v{va}, {fl(LOG2E)}, v{va}
    v_mul_f32 v{vth}, {fl(INV2PI)}, v{vth}""")
    cexp(sh, va, vth, "1.0", L1, L1 + 1, Q, Q + 1)
    cexp(sh, va, vth, fl(8.0), L8, L8 + 1, Q + 2, Q + 3)
    cexp(sh, va, vth, fl(16.0), L16, L16 + 1, Q, Q + 1)
    sh(f"""v_mul_f32 v{Q}, v{pLre}, v{pLre}
    v_fmac_f32 v{Q}, v{pLim}, v{pLim}
    v_rcp_f32 v{Q}, v{Q}
    v_add_f32 v{Q+1}, -1.0, v{L1}
    v_mul_f32 v{C2}, v{Q+1}, v{pLre}
    v_fmac_f32 v{C2}, v{L1+1}, v{pLim}
    v_mul_f32 v{C2+1}, v{L1+1}, v{pLre}
    v_fma_f32 v{C2+1}, -v{Q+1}, v{pLim}, v{C2+1}
    v_add_f32 v{Q}, v{Q}, v{Q}
    v_mul_f32 v{C2}, v{C2}, v{Q}
    v_mul_f32 v{C2+1}, v{C2+1}, v{Q}""")
    pcmul(sh, RT, C2, L1)
    for t in range(1, 8): pcmul(sh, RT + 2*t, RT + 2*t - 2, L1)
    sh(f"v_cvt_f32_u32 v{Q+2}, v{vS}\nv_mul_f32 v{Q+2}, {fl(16.0)}, v{Q+2}\nv_add_f32 v{Q+3}, {fl(8.0)}, v{Q+2}")
    cexp(sh, va, vth, f"v{Q+2}", LSR, LSI, Q, Q + 1)
    cexp(sh, va, vth, f"v{Q+3}", LSR + 1, LSI + 1, Q + 4, Q + 5)
    sh(f"v_mov_b32 v{vG}, 0")
    for i in range(8):
        sh(f"""v_lshlrev_b32 v{Q}, 16, v{GX+i}
        v_and_b32 v{Q+1}, 0xffff0000, v{GX+i}
        v_lshlrev_b32 v{Q+2}, 16, v{GWv+i}
        v_and_b32 v{Q+3}, 0xffff0000, v{GWv+i}
        v_pk_mul_f32 {vr(Q,2)}, {vr(Q,2)}, {vr(Q+2,2)}
        v_cvt_pk_bf16_f32 v{Q}, v{Q}, v{Q+1}
        v_lshlrev_b32 v{Q+1}, 16, v{Q}
        v_and_b32 v{Q}, 0xffff0000, v{Q}
        v_add_f32 v{vG}, v{vG}, v{Q+1}
        v_add_f32 v{vG}, v{vG}, v{Q}""")
    for s_ in (1, 2, 4, 8):
        sh(f"v_add_f32_dpp v{vG}, v{vG}, v{vG} row_ror:{s_} row_mask:0xf bank_mask:0xf")
    sh(f"""v_mov_b32 v{Q}, v{vG}
    v_permlane16_swap_b32 v{Q}, v{vG}
    v_add_f32 v{vG}, v{vG}, v{Q}
    v_cvt_pk_bf16_f32 v{vG}, v{vG}, v{vG}
    v_lshlrev_b32 v{vG}, 16, v{vG}
    v_mul_f32 v{vG}, {fl(-LOG2E)}, v{vG}
    v_exp_f32 v{vG}, v{vG}
    v_add_f32 v{vG}, 1.0, v{vG}
    v_rcp_f32 v{vG}, v{vG}
    v_cvt_pk_bf16_f32 v{vG}, v{vG}, v{vG}
    v_lshlrev_b32 v5, 16, v{vG}
    v_lshlrev_b32 v4, 16, v{vG}
    v_permlane32_swap_b32 v4, v5""")
    sh(f"""v_lshrrev_b32 v{Q+3}, 5, v1
    s_lshl_b32 s47, {sW}, 2
    s_sub_u32 s46, {sC}, 1
    s_sub_u32 s46, s46, s47
    v_sub_u32 v{Q+3}, s46, v{Q+3}""")
    for i in range(2):
        sh(f"""v_subrev_u32 v{Q+4}, {2*i}, v{Q+3}
        v_cmp_le_i32 s[{MS+2*i}:{MS+1+2*i}], 0, v{Q+4}
        v_max_i32 v{Q+4}, 0, v{Q+4}
        v_cvt_f32_i32 v{Q+2}, v{Q+4}
        v_mul_f32 v{Q+2}, {fl(128.0)}, v{Q+2}""")
        cexp(sh, va, vth, f"v{Q+2}", Wt + 2*i, Wt + 2*i + 1, Q, Q + 1)
    print("shadow instrs", len(sh.L))
    dB(1, n=SH1); dX(1, 1, n=SH1)
    if HTS == -1: ht()
    if PFS == -1: vm.op(f"buffer_load_dword v{vPF}, v{vPF}, s[68:71], s45 offen", "pf")
    k("s_setprio 2")
    def rdB(slot, ks):
        f = FR + 8 * (ks % 3)
        return [f"ds_read_b128 {vr(f,4)}, v{VA+ks} offset:{LB + slot*16384}",
                f"ds_read_b128 {vr(f+4,4)}, v{VA+ks} offset:{LB + slot*16384 + 8192}"]
    def dX1(slot, i):
        k(f"s_add_u32 s14, s36, s{37+slot}")
        k(f"s_add_u32 m0, s43, {(slot&1)*8192 + i*1024}")
        k(f"s_add_u32 s15, s14, {(16*(i&1) + 2*(i>>1))*1024}")
        vm.op(f"buffer_load_dwordx4 v{VPX+(i&3)}, s[60:63], s15 offen lds", f"X{slot}")
    for slot in range(4):
        vm.wait(f"X{slot}")
        prog_set(k, vPW, T, slot + 1)
        for ks in range(8): k(f"ds_read_b128 {vr(XR+4*ks,4)}, v{VX+ks} offset:{(slot&1)*8192}")
        spec_wait4(k, vPR, T, 0, slot + 1, rdB(slot, 0) + rdB(slot, 1))
        if slot in (0, 2): stamp(k, 1 + slot // 2)
        todo = ([("B", q) for q in range(4)] + [("X", i) for i in range(8)]) if slot < 2 else []
        if slot == 2: todo = [("CA", i) for i in range(8)] + [("CR", i) for i in range(8)]
        if slot == 3: todo = [("CB", i) for i in range(4)] + [("CR", i) for i in range(8, 15)]
        for ks in range(8):
            if ks + 2 < 8:
                for r in rdB(slot, ks + 2): k(r)
                k(f"s_waitcnt lgkmcnt(4)")
            elif ks + 1 < 8: k(f"s_waitcnt lgkmcnt(2)")
            else: k("s_waitcnt lgkmcnt(0)")
            f = FR + 8 * (ks % 3)
            fa = XR + 4 * ks
            z = slot == 0 and ks == 0
            k(f"v_mfma_f32_32x32x16_bf16 {vr(ACR,16)}, {vr(fa,4)}, {vr(f,4)}, {'0' if z else vr(ACR,16)}")
            k(f"v_mfma_f32_32x32x16_bf16 {vr(ACI,16)}, {vr(fa,4)}, {vr(f+4,4)}, {'0' if z else vr(ACI,16)}")
            for _ in range(2 if ks < 4 or slot == 2 else 1):
                if todo:
                    t_, i_ = todo.pop(0)
                    if t_ == "B": dB(slot + 2, [i_])
                    elif t_ == "X": dX1(slot + 2, i_)
                    else: dC(t_, i_)
            sh.take(k, SH2 if slot < 2 else SH3)
            if ks == 7 and slot == 1:
                vm.op(f"global_load_dword v{vTG}, v{vZ}, {DBG} sc1", "tag")
            if ks == 7 and slot == HTS: ht()
            if ks == 7 and slot == PFS:
                vm.op(f"buffer_load_dword v{vPF}, v{vPF}, s[68:71], s45 offen", "pf")
    print("shadow left", len(sh.L))
    stamp(k, 3)
    k("; REG B")
    for t in range(1, 8):
        pk_cfma_b(k, ACR + 2*t, ACI + 2*t, L1, ACR + 2*t - 2, ACI + 2*t - 2)
    k(f"""v_mov_b32 v{T}, v{ACR+15}
    v_mov_b32 v{T+1}, v{ACI+15}
    v_lshlrev_b32 v{T+2}, 3, v1
    v_add_u32 v{T+3}, s43, v{T+2}""")
    cfma(k, T, T + 1, L8, L8 + 1, ACR + 14, ACI + 14)
    k(f"ds_write_b64 v{T+3}, {vr(T,2)} offset:15360")
    prog_set(k, vPW, T + 4, 5)
    k(f"""v_and_b32 v{T+5}, 0xf8, v{T+2}
    v_add_u32 v{T+5}, {LX + 15360}, v{T+5}
    v_mov_b32 v{SR+1}, v{ACR+14}
    v_mov_b32 v{SI+1}, v{ACI+14}
    v_mov_b32 v{SR}, 0
    v_mov_b32 v{SI}, 0""")
    get_tag(k, vm, vTG, vZ)
    if LOC: k(f"v_readlane_b32 s1, v{vTG}, 1")
    k(f"v_mov_b32 v6, {sTAG}\nv_mov_b32 v7, {sTAG}\nv_mov_b32 v{EX+16}, {sTAG}\nv_mov_b32 v{EX+17}, {sTAG}")
    assert EG == EX + 16
    spec_wait4(k, vPR, T, 0, 5, [f"ds_read_b64 {vr(EX+2*s,2)}, v{T+5} offset:{(s>>1)*16384 + (s&1)*256}" for s in range(8)])
    for s in range(1, 8):
        k(f"s_waitcnt lgkmcnt({7-s})")
        pcfma(k, EX + 2*s, L16, EX + 2*s - 2)
    L = k.lab("NE")
    k(f"""s_cmp_lg_u32 {sW}, 0
    s_cbranch_scc1 {L}
    s_mov_b64 exec, 0xffffffff
    global_store_dwordx4 v{vEA}, {vr(EX+14,4)}, {WS} sc1
    s_mov_b64 exec, -1
    {L}:""")
    prog_set(k, vPW, T + 4, 6)
    stamp(k, 4)
    k("; REG C")
    sh.take(k, 999)
    for s in range(1, 8):
        k(f"v_cmp_eq_u32 vcc, {s}, v{vS}")
        k(f"v_cndmask_b32 v{SR}, v{SR}, v{EX+2*s-2}, vcc\nv_cndmask_b32 v{SI}, v{SI}, v{EX+2*s-1}, vcc")
    cfma(k, SR + 1, SI + 1, L8, L8 + 1, SR, SI)
    for t in range(8):
        r, i_ = ACR + 2*t, ACI + 2*t
        q = T + 2 * (t & 1)
        k(f"""v_pk_mul_f32 {vr(q,2)}, {vr(C2,2)}, {vr(i_,2)} op_sel:[1,0] op_sel_hi:[1,1]
        v_pk_mul_f32 {vr(i_,2)}, {vr(C2,2)}, {vr(i_,2)} op_sel:[0,0] op_sel_hi:[0,1]
        v_pk_fma_f32 {vr(i_,2)}, {vr(C2,2)}, {vr(r,2)}, {vr(i_,2)} op_sel:[1,0,0] op_sel_hi:[1,1,1]
        v_pk_fma_f32 {vr(r,2)}, {vr(C2,2)}, {vr(r,2)}, {vr(q,2)} op_sel:[0,0,0] op_sel_hi:[0,1,1] neg_lo:[0,0,1] neg_hi:[0,0,1]""")
    vTW, vTR, vHS = VX, VX + 1, VX + 2
    k(f"""s_lshl_b32 s43, {sW}, 12
    s_add_u32 s43, s43, {LS}
    v_lshl_add_u32 v{vTW}, v1, 5, s43
    v_lshrrev_b32 v{T+1}, 4, v1
    v_and_b32 v{T+2}, 15, v1
    v_lshlrev_b32 v{T+2}, 3, v{T+2}
    v_lshl_add_u32 v{vTR}, v{T+1}, 8, v{T+2}
    v_add_u32 v{vTR}, s43, v{vTR}
    v_lshl_add_u32 v{vHS}, v1, 4, s34
    v_add_u32 v{vHS+1}, 32768, v{vHS}""")
    k("; REG D")
    L, D, L2 = k.lab("GE"), k.lab("GD"), k.lab("GX")
    k(f"""v_mov_b32 v{H}, 0
    v_mov_b32 v{H+1}, 0
    s_cmp_eq_u64 s[{MS}:{MS+1}], 0
    s_cbranch_scc1 {D}
    s_mov_b32 s11, {SPIN}
    s_mov_b64 s[12:13], s[{MS}:{MS+1}]
    s_mov_b64 s[14:15], s[{MS+2}:{MS+3}]
    {L}:
    s_mov_b64 exec, s[12:13]
    global_load_dwordx3 {vr(EG+4,3)}, v{vGA}, {WS} sc1
    s_mov_b64 exec, s[14:15]
    global_load_dwordx3 {vr(EG+8,3)}, v{vGA}, {WS} offset:1024 sc1
    s_sub_u32 s11, s11, 1
    s_cmp_eq_u32 s11, 0
    s_waitcnt vmcnt(0)
    s_cbranch_scc1 {L2}
    v_cmp_ne_u32 s[14:15], {sTAG}, v{EG+10}
    s_mov_b64 exec, s[12:13]
    v_cmp_ne_u32 s[12:13], {sTAG}, v{EG+6}
    s_or_b64 vcc, s[12:13], s[14:15]
    s_cbranch_scc1 {L}
    {L2}:""")
    for i in range(2):
        k(f"s_mov_b64 exec, s[{MS+2*i}:{MS+1+2*i}]")
        pcfma(k, H, Wt + 2*i, EG + 4 + 4*i)
    k(f"""s_mov_b64 exec, -1
    v_mov_b32 v{T}, v{H}
    v_mov_b32 v{T+1}, v{H+1}
    v_permlane32_swap_b32 v{T}, v{H}
    v_permlane32_swap_b32 v{T+1}, v{H+1}
    v_pk_add_f32 {vr(H,2)}, {vr(H,2)}, {vr(T,2)}
    {D}:
    s_waitcnt vmcnt(0)
    ds_write_b64 v{vHW}, {vr(H,2)}""")
    prog_set(k, vPW, T + 4, 7)
    spec_wait4(k, vPR, T, 0, 7, [f"ds_read2_b64 {vr(EG,4)}, v{vHR} offset1:32", f"ds_read2_b64 {vr(EG+4,4)}, v{vHR} offset0:64 offset1:96"])
    stamp(k, 5)
    k(f"ds_read_b128 {vr(T+4,4)}, v{vPR} offset:16")
    k(f"""s_waitcnt lgkmcnt(1)
    v_pk_add_f32 {vr(EG,2)}, {vr(EG,2)}, {vr(EG+2,2)}
    v_pk_add_f32 {vr(EG+4,2)}, {vr(EG+4,2)}, {vr(EG+6,2)}
    v_pk_add_f32 {vr(H,2)}, {vr(EG,2)}, {vr(EG+4,2)}""")
    pk_cfma_b(k, SR, SI, H, LSR, LSI)
    HB = EG
    for t in range(8):
        pk_cfma_b(k, ACR + 2*t, ACI + 2*t, RT + 2*t, SR, SI)
        if t:
            k(f"v_cvt_pk_bf16_f32 v{HB+t-1}, v{ACR+2*t-2}, v{ACR+2*t-1}")
            k(f"v_cvt_pk_bf16_f32 v{HB+8+t-1}, -v{ACI+2*t-2}, -v{ACI+2*t-1}")
    D = k.lab("TF")
    k(f"""s_waitcnt lgkmcnt(0)
    v_min3_u32 v{T+4}, v{T+4}, v{T+5}, v{T+6}
    v_min_u32 v{T+4}, v{T+4}, v{T+7}
    v_cvt_pk_bf16_f32 v{HB+7}, v{ACR+14}, v{ACR+15}
    v_readfirstlane_b32 s14, v{T+4}
    v_cvt_pk_bf16_f32 v{HB+15}, -v{ACI+14}, -v{ACI+15}
    s_cmp_ge_u32 s14, 5
    s_cbranch_scc1 {D}""")
    prog_wait4(k, vPR, T + 4, 16, 5)
    k(f"""{D}:
    ds_write_b128 v{vTW}, {vr(HB,4)}
    ds_write_b128 v{vTW}, {vr(HB+4,4)} offset:16
    ds_write_b128 v{vTW}, {vr(HB+8,4)} offset:2048
    ds_write_b128 v{vTW}, {vr(HB+12,4)} offset:2064""")
    HF = EG + 16
    for comp in range(2):
        for hh in range(2):
            f = HF + 4 * (2*comp + hh)
            k(f"ds_read_b64_tr_b16 {vr(f,2)}, v{vTR} offset:{comp*2048 + hh*1024}")
            k(f"ds_read_b64_tr_b16 {vr(f+2,2)}, v{vTR} offset:{comp*2048 + hh*1024 + 128}")
    for comp in range(2):
        for hh in range(2):
            f = HF + 4 * (2*comp + hh)
            if not LOC:
                k(f"s_waitcnt lgkmcnt({6 - 2*(2*comp+hh)})")
                k(f"global_store_dwordx4 v{vHS+hh}, {vr(f,4)}, {WS} offset:{comp*1024}{HST}")
    if LOC:
        LS_ = k.lab("HS")
        k(f"s_cmp_lg_u32 s0, s1\ns_cbranch_scc1 {LS_}")
        for sc in (HFS, " sc1"):
            for comp in range(2):
                for hh in range(2):
                    f = HF + 4 * (2*comp + hh)
                    k(f"s_waitcnt lgkmcnt({6 - 2*(2*comp+hh)})")
                    k(f"global_store_dwordx4 v{vHS+hh}, {vr(f,4)}, {WS} offset:{comp*1024}{sc}")
            stamp(k, 6)
            k(f"s_branch {k.label}_P2")
            if sc == HFS: k(f"{LS_}:")
        return ra.hi
    stamp(k, 6)
    k(f"s_branch {k.label}_P2")
    return ra.hi

def s4(k):
    ra = RA(); vm = VM(k)
    sWp, sCH, sH, sD, sLC, sSC = "s60", "s61", "s62", "s63", "s64", "s65"
    T = ra(8, 4); vZ = ra(); vTG = ra(); vPW = ra(); vPP = ra(); vFA = ra(); va = ra(); vth = ra()
    VF = ra(8); VG = ra(); vYA = ra(); vSC = ra(); vSP = ra()
    ACC = ra(32, 4)
    base = ra.n
    XL = ra(8, 4); XO = ra(8, 4); PA = ra(8)
    IX = ra(20); SW = ra(16); SR = ra(4); DA = ra(3); vXS = ra(2)
    Z = ra(32, 2); TB = ra(18, 2); U = ra(4, 2); z16 = ra(2, 2); PKD = ra(4)
    OPB = ra(16, 4); OPA = ra(32, 4); KD = ra(12, 4)
    k(f"""s_setprio 3
    s_sub_u32 {sWp}, {sW}, 4
    s_lshr_b32 {sCH}, {sWp}, 1
    s_and_b32 {sH}, {sWp}, 1
    s_lshl_b32 {sD}, s2, 1
    s_add_u32 {sD}, {sD}, {sCH}
    s_mul_i32 {sLC}, {sCH}, {CHS}
    s_add_u32 {sLC}, {sLC}, {LS}
    s_xor_b32 {sSC}, {sH}, 1
    s_lshl_b32 {sSC}, {sSC}, 12
    s_add_u32 {sSC}, {sSC}, {sLC}
    s_add_u32 {sSC}, {sSC}, {LP + 64 - LS}
    s_lshl_b32 s14, {sC}, 7
    s_lshl_b32 s15, {sH}, 6
    s_add_u32 s14, s14, s15
    s_lshl_b32 s15, {sJ}, 5
    s_lshl_b32 s11, {sCH}, 4
    s_add_u32 s15, s15, s11
    s_lshl_b32 s12, s14, 10
    s_lshl_b32 s13, s15, 1
    s_add_u32 s12, s12, s13
    v_and_b32 v{T}, 7, v1
    v_lshrrev_b32 v{T+1}, 3, v1
    v_lshlrev_b32 v{T+2}, 13, v{T+1}
    v_lshl_add_u32 v{T+2}, v{T}, 2, v{T+2}
    v_add_u32 v{T+2}, s12, v{T+2}
    v_add_u32 v{T+3}, 4096, v{T+2}""")
    for i in range(8):
        vm.op(f"global_load_dword v{XL+i}, v{T+2+(i>>2)}, {X_} offset:{(i&3)*1024}", "xl")
    k(f"""s_lshl_b32 s12, {sD}, 8
    s_lshl_b32 s13, {sH}, 7
    s_add_u32 s12, s12, s13
    v_lshl_add_u32 v{T+4}, v1, 1, s12
    s_lshl_b32 s12, {sD}, 1
    v_mov_b32 v{T+5}, s12
    v_mov_b32 v{vZ}, 0""")
    vm.op(f"global_load_ushort v{PA+6}, v{T+5}, {BLDT}", "par")
    for i, p in enumerate((SARE, SAIM, SBRE, SBIM, SCRE, SCIM)):
        vm.op(f"global_load_ushort v{PA+i}, v{T+4}, {p}", "par")
    def touch(d):
        k(f"""s_mov_b64 exec, 15
        s_lshl_b32 s12, {sR}, 17
        v_mov_b32 v{d}, s12
        s_lshl_b32 s12, {sDT}, 16
        v_mov_b32 v{d+1}, s12
        v_lshlrev_b32 v{d+2}, 21, v1
        v_add_u32 v{d+2}, {H_OFF}, v{d+2}""")
        k(f"v_lshrrev_b32 v{d+4}, 9, v{d+1}")
        vm.op(f"global_load_dword v{d+3}, v{d+4}, {ADS}", "tw")
        vm.op(f"global_load_dword v{d+4}, v{d+4}, {BDS}", "tw")
        vm.op(f"global_load_dword v{d+2}, v{d+2}, {WS} sc1", "tw")
        vm.op(f"global_load_dword v{d}, v{d}, {OUTP}", "tw")
        vm.op(f"global_load_dword v{d+5}, v{d+1}, {CRE}", "tw")
        vm.op(f"global_load_dword v{d+1}, v{d+1}, {CIM}", "tw")
        k("s_mov_b64 exec, -1")
    if TW == 1: touch(ACC)
    k("s_barrier")
    k(f"""s_lshl_b32 s12, s15, 12
    s_lshl_b32 s13, s14, 1
    s_add_u32 s12, s12, s13
    s_add_u32 s12, s12, {XT_OFF}
    v_lshlrev_b32 v{vXS}, 13, v{T}
    v_lshl_add_u32 v{vXS}, v{T+1}, 4, v{vXS}
    v_add_u32 v{vXS}, s12, v{vXS}
    v_add_u32 v{vXS+1}, 4096, v{vXS}
    s_lshl_b32 s12, {sJ}, 1
    s_add_u32 s12, s12, {sCH}
    s_lshl_b32 s12, s12, 4
    s_add_u32 s12, s12, {sC}
    s_lshl_b32 s12, s12, 1
    s_add_u32 s12, s12, {sH}
    s_lshl_b32 s12, s12, 2
    s_add_u32 s66, s12, {F1_OFF}
    s_lshl_b32 s12, {sW}, 2
    s_add_u32 s12, s12, {LPR}
    v_mov_b32 v{vPW}, s12
    v_xor_b32 v{vPP}, 4, v{vPW}
    v_lshl_add_u32 v{SW}, v1, 2, {sSC}
    v_lshl_add_u32 v{vSC}, v1, 4, {sSC}
    v_and_b32 v{T}, 15, v1
    v_lshrrev_b32 v{T+1}, 4, v1
    v_xor_b32 v{T+2}, v{T}, v{T+1}
    v_lshlrev_b32 v{T+2}, 4, v{T+2}
    v_lshl_add_u32 v{T+2}, v{T}, 8, v{T+2}
    v_add_u32 v{SR}, {sSC}, v{T+2}""")
    for r in range(1, 16): k(f"v_xor_b32 v{SW+r}, {16*r}, v{SW}")
    for s in range(1, 4): k(f"v_xor_b32 v{SR+s}, {64*s}, v{SR}")
    k(f"""s_add_u32 s12, {sLC}, 16
    v_lshlrev_b32 v{T+2}, 4, v{T+1}
    v_lshl_add_u32 v{DA}, v{T}, 6, v{T+2}
    v_add_u32 v{DA}, s12, v{DA}
    v_lshl_add_u32 v{T+3}, v{T}, 5, v{T+2}
    v_lshlrev_b32 v{T+4}, 8, v{T+1}
    v_lshl_add_u32 v{T+5}, v{T}, 4, v{T+4}
    v_cmp_gt_u32 vcc, 2, v{T+1}
    v_cndmask_b32 v{DA+1}, v{T+5}, v{T+3}, vcc
    v_add_u32 v{DA+1}, s12, v{DA+1}
    v_lshl_add_u32 v{DA+2}, v{T}, 3, v{T+4}
    v_add_u32 v{DA+2}, s12, v{DA+2}""")
    k(f"""s_lshl_b32 s12, {sH}, 9
    s_add_u32 s12, s12, {sLC}
    s_add_u32 s12, s12, {LP - LS + 26*4}
    v_lshlrev_b32 v{T+2}, 5, v{T+1}
    v_lshl_add_u32 v{VF}, v{T}, 2, s12
    v_sub_u32 v{VF}, v{VF}, v{T+2}
    s_mul_i32 s12, {sCH}, {XTS}
    s_add_u32 s67, s12, {LXT}
    s_lshl_b32 s13, {sH}, 8
    s_sub_u32 s12, s67, s13
    s_add_u32 s12, s12, {480 - 192}
    v_lshlrev_b32 v{T+2}, 4, v{T+1}
    v_lshl_add_u32 v{VG}, v{T}, 5, v{T+2}
    v_add_u32 v{VG}, s12, v{VG}
    s_lshl_b32 s12, {sD}, 12
    s_lshl_b32 s13, {sH}, 11
    s_add_u32 s68, s12, s13
    s_add_u32 s12, s68, {Y_OFF}
    v_and_b32 v{T+2}, 1, v{T+1}
    v_lshlrev_b32 v{T+2}, 9, v{T+2}
    v_lshl_add_u32 v{T+2}, v{T}, 5, v{T+2}
    v_lshrrev_b32 v{T+3}, 1, v{T+1}
    v_lshl_add_u32 v{T+2}, v{T+3}, 4, v{T+2}
    v_add_u32 v{vYA}, s12, v{T+2}
    s_lshr_b32 s12, s2, 3
    s_lshl_b32 s12, s12, 7
    s_add_u32 s12, s12, {F1_OFF}
    v_and_b32 v{T+2}, 31, v1
    v_lshl_add_u32 v{vFA}, v{T+2}, 2, s12""")
    for m in range(1, 8): k(f"v_add_u32 v{VF+m}, {1024*m}, v{VF}")
    k(f"""s_lshl_b32 s12, {sH}, 10
    s_sub_u32 s12, s12, 1
    v_lshl_add_u32 v{T}, v1, 2, s12
    v_cvt_f32_i32 v{T+1}, v{T}
    s_add_u32 s13, {sLC}, 16
    s_sub_u32 s12, s13, {0x4280*4}
    v_mov_b32 v{T+7}, s12
    v_lshl_add_u32 v{T+6}, v{T}, 2, s13
    s_cmp_eq_u32 {sH}, 0
    s_cselect_b64 vcc, -1, 0""")
    for it in range(4):
        for e in range(5):
            c = 256*it + e
            if c: k(f"v_add_f32 v{PKD+(e&1)}, {fl(float(c))}, v{T+1}")
            else: k(f"v_mov_b32 v{PKD}, v{T+1}")
            if e & 1 or e == 4:
                k(f"v_cvt_pk_bf16_f32 v{T+2}, v{PKD}, v{PKD+1}")
                e0 = e & ~1
                k(f"v_mad_u32_u16 v{IX+5*it+e0}, v{T+2}, 4, v{T+7}")
                if e & 1: k(f"v_mad_u32_u16 v{IX+5*it+e}, v{T+2}, 4, v{T+7} op_sel:[1,0,0,0]")
    for e in range(5):
        k(f"v_add_u32 v{T+2}, {4*e}, v{T+6}\nv_cndmask_b32 v{IX+e}, v{IX+e}, v{T+2}, vcc")
    vm.wait("xl")
    k("s_mov_b32 s12, 0x05040100\ns_mov_b32 s13, 0x07060302")
    for i in range(4):
        k(f"v_perm_b32 v{XO+i}, v{XL+2*i+1}, v{XL+2*i}, s12")
        k(f"v_perm_b32 v{XO+4+i}, v{XL+2*i+1}, v{XL+2*i}, s13")
    vm.op(f"global_store_dwordx4 v{vXS}, {vr(XO,4)}, {WS} sc1", "xs")
    vm.op(f"global_store_dwordx4 v{vXS+1}, {vr(XO+4,4)}, {WS} sc1", "xs")
    vm.op(f"global_load_dword v{vTG}, v{vZ}, {DBG} sc1", "tag")
    if LOC and LOCP == 2: census(k, T + 2, T + 3, 1)
    vm.wait("par")
    for i in range(7): k(f"v_lshlrev_b32 v{PA+i}, 16, v{PA+i}")
    k(f"""v_mul_f32 v{PA+6}, {fl(LOG2E)}, v{PA+6}
    v_exp_f32 v{PA+6}, v{PA+6}
    v_cvt_pk_bf16_f32 v{PA+6}, v{PA+6}, v{PA+6}
    v_lshlrev_b32 v{PA+6}, 16, v{PA+6}
    v_mul_f32 v{va}, v{PA+6}, v{PA}
    v_mul_f32 v{vth}, v{PA+6}, v{PA+1}
    v_mul_f32 v{va}, {fl(LOG2E)}, v{va}
    v_mul_f32 v{vth}, {fl(INV2PI)}, v{vth}
    v_mul_f32 v{PA+2}, v{PA+6}, v{PA+2}
    v_mul_f32 v{PA+3}, v{PA+6}, v{PA+3}""")
    cmul(k, U, U + 1, PA + 4, PA + 5, PA + 2, PA + 3)
    cexp(k, va, vth, fl(16.0), z16, z16 + 1, T, T + 1)
    cexp(k, va, vth, "1.0", Z + 2, Z + 3, T + 2, T + 3)
    cexp(k, va, vth, fl(256.0), TB + 2, TB + 3, T + 4, T + 5)
    npk = [0]
    def put(row, src, neg=False):
        p = PKD + (npk[0] & 3); npk[0] += 1
        k(f"v_cvt_pk_bf16_f32 v{p}, v{src}, {'-' if neg else ''}v{src+1}")
        k(f"ds_write_b32 v{SW+row}, v{p} offset:{256*row}")
    def get(dst):
        for s in range(4): k(f"ds_read_b128 {vr(dst+4*s,4)}, v{SR+s}")
    for m in range(16):
        cur = U + 2 * (m & 1)
        if m < 15: pcmul(k, U + 2 * ((m + 1) & 1), cur, z16)
        put(m, cur, True)
        r = m + 2
        if r < 16:
            if r % 2 == 0: pcmul(k, Z + 2*r, Z + r, Z + r)
            else: pcmul(k, Z + 2*r, Z + 2*r - 2, Z + 2)
    get(OPB)
    k(f"v_mov_b32 v{Z}, 1.0\nv_mov_b32 v{Z+1}, 0")
    tb = [(2,1,1),(3,2,1),(4,2,2),(6,3,3),(5,4,1),(8,4,4),(7,6,1)]
    for r in range(16):
        put(r, Z + 2*r)
        if r < 7: pcmul(k, TB + 2*tb[r][0], TB + 2*tb[r][1], TB + 2*tb[r][2])
    get(OPA)
    get_tag(k, vm, vTG, vZ)
    k(f"""v_mov_b32 v{T}, s66
    v_mov_b32 v{T+1}, {sTAG}
    s_waitcnt vmcnt(0)
    s_mov_b64 exec, 1
    global_store_dword v{T}, v{T+1}, {WS} sc1
    s_mov_b64 exec, -1""")
    if LOC and LOCP == 1: census(k, T + 2, T + 3, 1)
    if TW == 2: touch(ACC)
    stamp(k, 1)
    rows1 = [(1, 2*i) for i in range(8)] + [(2, 4*i) for i in range(4)] + [(3, 4*i) for i in range(4)]
    rows2 = [(4 + (i >> 1), 8 * (i & 1)) for i in range(9)]
    def vrows(rows):
        for r, (B, f) in enumerate(rows):
            if f == 0: put(r, TB + 2*B)
            else:
                d = U + 2 * (r & 1)
                pcmul(k, d, TB + 2*B, Z + 2*f); put(r, d)
    vrows(rows1)
    get(OPA + 16)
    k("s_waitcnt lgkmcnt(15)")
    for s in range(4):
        k(f"v_mfma_f32_16x16x32_bf16 {vr(KD,4)}, {vr(OPA+4*s,4)}, {vr(OPB+4*s,4)}, {'0' if s == 0 else vr(KD,4)}")
    vrows(rows2)
    get(OPA)
    k("s_waitcnt lgkmcnt(13)")
    for s in range(4):
        k(f"v_mfma_f32_16x16x32_bf16 {vr(KD+4,4)}, {vr(OPA+16+4*s,4)}, {vr(OPB+4*s,4)}, {'0' if s == 0 else vr(KD+4,4)}")
    k(f"ds_write_b128 v{vSC}, {vr(KD,4)}")
    k("s_waitcnt lgkmcnt(1)")
    for s in range(4):
        k(f"v_mfma_f32_16x16x32_bf16 {vr(KD+8,4)}, {vr(OPA+4*s,4)}, {vr(OPB+4*s,4)}, {'0' if s == 0 else vr(KD+8,4)}")
    k(f"ds_write_b128 v{vSC}, {vr(KD+4,4)} offset:1024")
    k(f"global_load_dword v{T+6}, v{vFA}, {WS} sc1")
    k(f"s_lshl_b32 s12, {sH}, 12\ns_add_u32 s12, s12, {sLC}\ns_add_u32 s12, s12, {LP+64-LS}\nv_lshl_add_u32 v{vSP}, v1, 4, s12")
    k(f"ds_write_b128 v{vSC}, {vr(KD+8,4)} offset:2048")
    prog_set(k, vPW, T, 1)
    prog_wait1(k, vPP, T, 1)
    stamp(k, 2)
    LA, LB_ = k.lab("FA"), k.lab("FB")
    k(f"""v_lshl_add_u32 v{T+4}, v1, 4, s68
    s_lshl_b32 s12, {sH}, 11
    s_add_u32 s12, s12, s67
    v_lshl_add_u32 v{T+5}, v1, 4, s12
    s_waitcnt vmcnt(0)
    v_cmp_ne_u32 s[70:71], {sTAG}, v{T+6}
    s_cmp_lg_u64 s[70:71], 0
    s_cbranch_scc1 {LA}
    global_load_dwordx4 {vr(XL,4)}, v{T+4}, {WS} sc1
    global_load_dwordx4 {vr(XL+4,4)}, v{T+4}, {WS} offset:1024 sc1
    s_branch {LB_}
    {LA}:
    global_load_dword v{T+6}, v{vFA}, {WS} sc1
    {LB_}:""")
    for i in range(3): k(f"ds_read_b128 {vr(OPA+4*i,4)}, v{vSP} offset:{1024*i}")
    for i in range(3):
        k(f"s_waitcnt lgkmcnt(2)")
        for r in range(4): k(f"v_add_f32 v{KD+4*i+r}, v{KD+4*i+r}, v{OPA+4*i+r}")
        if i < 2: k(f"ds_write_b128 v{DA+i}, {vr(KD+4*i,4)} offset:{1024*i}")
    k(f"""s_mov_b32 exec_hi, 1
    ds_write_b64 v{DA+2}, {vr(KD+8,2)} offset:2048
    s_mov_b32 exec_hi, 0
    ds_write_b64 v{DA+2}, {vr(KD+10,2)} offset:{2048+128}
    s_mov_b32 exec_hi, -1""")
    KV = Z; PO = OPB
    for it in range(4):
        for e in range(5): k(f"ds_read_b32 v{KV+5*it+e}, v{IX+5*it+e}")
        if it == 2: k("s_waitcnt lgkmcnt(10)")
    for it in range(4):
        k(f"s_waitcnt lgkmcnt({15 - 4*it})")
        for e in range(4): k(f"v_cvt_pk_bf16_f32 v{PO+4*it+e}, v{KV+5*it+e+1}, v{KV+5*it+e}")
        k(f"ds_write_b128 v{vSP}, {vr(PO+4*it,4)} offset:{1024*it}")
    L, D, E_ = k.lab("F1"), k.lab("F1D"), k.lab("F1E")
    k(f"""s_cmp_eq_u64 s[70:71], 0
    s_cbranch_scc1 {E_}
    s_mov_b32 s11, {SPIN}
    {L}:
    s_waitcnt vmcnt(0)
    v_cmp_ne_u32 vcc, {sTAG}, v{T+6}
    s_cbranch_vccz {D}
    s_sub_u32 s11, s11, 1
    s_cmp_eq_u32 s11, 0
    s_cbranch_scc1 {D}
    global_load_dword v{T+6}, v{vFA}, {WS} sc1
    s_branch {L}
    {D}:
    global_load_dwordx4 {vr(XL,4)}, v{T+4}, {WS} sc1
    global_load_dwordx4 {vr(XL+4,4)}, v{T+4}, {WS} offset:1024 sc1
    {E_}:""")
    k(f"""s_waitcnt vmcnt(1)
    ds_write_b128 v{T+5}, {vr(XL,4)} offset:512
    s_waitcnt vmcnt(0)
    ds_write_b128 v{T+5}, {vr(XL+4,4)} offset:1536
    s_waitcnt lgkmcnt(0)""")
    prog_set(k, vPW, T, 2)
    prog_wait1(k, vPP, T, 2)
    stamp(k, 3)
    k("s_setprio 0")
    ra.n = base
    FB = [ra(32, 4), ra(32, 4)]; GB = [ra(32, 4), ra(32, 4)]
    if TW == 3: touch(ra(8))
    def reads(kk):
        o = []
        F, G = FB[kk & 1], GB[kk & 1]
        for i in range(8):
            o.append(f"ds_read_b128 {vr(G+4*i,4)}, v{VG} offset:{512*i + 192 - 64*kk}")
            o.append(f"ds_read2_b32 {vr(F+4*i,2)}, v{VF+i} offset0:{32*kk+6} offset1:{32*kk+4}")
            o.append(f"ds_read2_b32 {vr(F+4*i+2,2)}, v{VF+i} offset0:{32*kk+2} offset1:{32*kk}")
        return o
    for l in reads(0): k(l)
    su = Buf()
    VP = ra(4); vLP = ra()
    dma_patterns(su, VP, T)
    c_setup(su, sWp)
    su(f"""v_mov_b32 v{vLP}, {LPR}
    s_cmp_eq_u32 {sH}, 0
    s_cselect_b32 s36, s68, s72
    s_cselect_b32 s37, s69, s73
    s_mov_b32 s38, 524288
    s_mov_b32 s39, 0x20000
    s_lshl_b32 s40, {sDT}, 16
    s_lshl_b32 s41, {sCH}, 8
    s_add_u32 s40, s40, s41
    s_lshl_b32 s41, {sWp}, 14""")
    def cA(sl, comp, q):
        return [f"s_add_u32 m0, s77, {sl*32768 + comp*16384 + q*1024}", f"s_add_u32 s15, s76, {q*4096 + sl*256}",
                f"buffer_load_dwordx4 v{VP+q}, s[{68+4*comp}:{71+4*comp}], s15 offen lds"]
    def cB(i):
        return [f"s_add_u32 m0, s41, {65536 + i*1024}", f"s_add_u32 s15, s40, {i*4096 + 512}",
                f"buffer_load_dwordx4 v{VP+(i&3)}, s[36:39], s15 offen lds"]
    for kk in range(4):
        k("s_waitcnt lgkmcnt(0)")
        nxt = reads(kk + 1) if kk < 3 else []
        F, G = FB[kk & 1], GB[kk & 1]
        c_ = 0
        for n in range(8):
            for m in range(8 - n):
                a = ACC + 4 * (m + n)
                z = kk == 0 and n == 0
                k(f"v_mfma_f32_16x16x32_bf16 {vr(a,4)}, {vr(F+4*m,4)}, {vr(G+4*n,4)}, {'0' if z else vr(a,4)}")
                if nxt: k(nxt.pop(0))
                su.take(k, 1)
                c_ += 1
    stamp(k, 4)
    prog_set(k, vPW, T, 3)
    prog_wait1(k, vPP, T, 3)
    RD = FB[0]; YO = FB[0] + 16
    L1, L2 = k.lab("RH"), k.lab("RE")
    k(f"s_cmp_lg_u32 {sH}, 0\ns_cbranch_scc1 {L1}")
    for h in range(2):
        keep, send = ACC + 16*h, ACC + 16*(1-h)
        for q in range(4): k(f"ds_write_b128 v{vSC}, {vr(send+4*q,4)} offset:{1024*q}")
        prog_set(k, vPW, T, 4)
        prog_wait1(k, vPP, T, 4)
        for q in range(4): k(f"ds_read_b128 {vr(RD+4*q,4)}, v{vSP} offset:{1024*q}")
        for q in range(4):
            k(f"s_waitcnt lgkmcnt({3-q})")
            for r in range(4): k(f"v_add_f32 v{RD+4*q+r}, v{RD+4*q+r}, v{keep+4*q+r}")
        if h == 0: k(f"s_branch {L2}\n{L1}:")
    k(f"{L2}:")
    for q in range(4):
        for r in range(2): k(f"v_cvt_pk_bf16_f32 v{YO+2*q+r}, v{RD+4*q+2*r}, v{RD+4*q+2*r+1}")
    for p in range(2):
        for r in range(2): k(f"v_permlane16_swap_b32 v{YO+4*p+r}, v{YO+4*p+2+r}")
    vm.q = []
    prog_set(k, vPW, T, 5)
    for p in range(2):
        vm.op(f"global_store_dwordx4 v{vYA}, {vr(YO+4*p,4)}, {WS} offset:{1024*p} sc1", "y")
    k(f"""s_lshl_b32 s12, {sH}, 9
    s_add_u32 s12, s12, {sD}
    s_lshl_b32 s12, s12, 2
    s_add_u32 s12, s12, {F3_OFF}
    v_mov_b32 v4, s12
    v_mov_b32 v5, {sTAG}""")
    prog_wait4(k, vLP, T + 4, 0, 6)
    stamp(k, 5)
    for q in range(4):
        for l in cA(1, 1, q): k(l)
    for l in cB(15): k(l)
    k(f"""s_waitcnt vmcnt(5)
    s_mov_b64 exec, 1
    global_store_dword v4, v5, {WS} sc1
    s_mov_b64 exec, -1""")
    k(f"v_mov_b32 v2, v{vPW}")
    stamp(k, 6)
    return ra.hi

def phase2(k):
    vm = VM(k)
    sRP, sKQ, sRT, sDP = "s60", "s61", "s62", "s63"
    vG, GL, vO, vRW, vRR, vYF, Y8, SA, XB, ACC, HF, CF = 3, 4, 8, 9, 10, 11, 12, 20, 28, 32, 64, 128
    T = ACC; X2 = ACC + 8; AD = ACC + 12; BD = ACC + 16; VC = ACC + 20; vH = ACC + 24
    vF2, vF2b, vF3, vYb = ACC + 28, ACC + 29, ACC + 30, ACC + 31
    k(f"""s_and_b32 {sKQ}, {sW}, 3
    s_lshr_b32 {sRP}, {sW}, 2
    s_and_b32 {sRT}, {sKQ}, 1
    s_lshr_b32 {sDP}, {sKQ}, 1""")
    k(f"""s_lshl_b32 s12, {sR}, 2
    s_lshl_b32 s13, {sRP}, 1
    s_add_u32 s64, s12, s13
    s_add_u32 s12, s64, {sRT}
    s_lshl_b32 s12, s12, 4
    s_lshl_b32 s13, {sDT}, 6
    s_lshl_b32 s14, {sDP}, 5
    s_add_u32 s13, s13, s14
    v_and_b32 v{T}, 15, v1
    v_lshrrev_b32 v{T+1}, 4, v1
    v_and_b32 v{T+2}, 1, v1
    v_bfe_u32 v{T+3}, v1, 1, 3
    v_lshl_add_u32 v{T+2}, v{T+2}, 3, v{T+3}
    v_add_u32 v{T+2}, s12, v{T+2}
    v_lshl_add_u32 v{T+3}, v{T+1}, 2, s13
    v_lshlrev_b32 v{T+4}, 1, v{T+3}
    v_lshl_add_u32 v{T+5}, v{T+2}, 10, v{T+4}
    v_lshlrev_b32 v{vO}, 1, v{T+5}""")
    for e in range(2):
        vm.op(f"global_load_dwordx2 {vr(X2+2*e,2)}, v{T+5}, {X_} offset:{32*e}", "ep")
        vm.op(f"global_load_dwordx2 {vr(AD+2*e,2)}, v{T+4}, {ADS} offset:{32*e}", "ep")
        vm.op(f"global_load_dwordx2 {vr(BD+2*e,2)}, v{T+4}, {BDS} offset:{32*e}", "ep")
    k(f"""v_and_b32 v{vYF}, 63, v{T+2}
    v_lshlrev_b32 v{vYF}, 1, v{vYF}
    v_lshlrev_b32 v{vYb}, 5, v{T+1}
    v_xor_b32 v{vYF}, v{vYF}, v{vYb}
    v_and_b32 v{vYb}, 63, v{T+3}
    v_lshl_add_u32 v{vYF}, v{vYb}, 7, v{vYF}
    v_add_u32 v{vYF}, {LXT}, v{vYF}
    v_lshrrev_b32 v{vF2}, 1, v{T+2}
    v_lshlrev_b32 v{vF2}, 4, v{vF2}
    v_add_u32 v{vF2}, {F2_OFF}, v{vF2}
    s_lshr_b32 s14, {sR}, 4
    s_lshl_b32 s14, s14, 11
    s_lshl_b32 s15, {sDT}, 8
    s_add_u32 s14, s14, s15
    s_add_u32 s14, s14, {F3_OFF}
    v_lshl_add_u32 v{vF3}, v1, 2, s14
    s_lshl_b32 s14, {sR}, 9
    s_add_u32 s14, s14, {F2_OFF + 8}
    v_and_b32 v{vF2b}, 31, v1
    v_lshl_add_u32 v{vF2b}, v{vF2b}, 4, s14
    s_cmp_eq_u32 {sW}, {PW}
    s_cselect_b64 vcc, -1, 0
    v_cndmask_b32 v{vF3}, v{vF3}, v{vF2b}, vcc
    v_lshrrev_b32 v{vYb}, 5, v1
    v_lshlrev_b32 v{vYb}, 1, v{vYb}
    v_xor_b32 v{vYb}, v1, v{vYb}
    v_and_b32 v{vYb}, 7, v{vYb}
    v_lshlrev_b32 v{vYb}, 4, v{vYb}
    v_lshrrev_b32 v{vF2b}, 3, v1
    v_lshl_add_u32 v{vYb}, v{vF2b}, 12, v{vYb}
    v_xor_b32 v{vF2b}, 64, v{vYb}
    s_lshl_b32 s68, {sDT}, 18
    s_lshl_b32 s14, {sR}, 7
    s_add_u32 s68, s68, s14
    s_lshl_b32 s14, s64, 15
    {"s_and_b32 s14, s14, 0xfffeffff" if opt("hack", 0) == 1 else ""}
    {"s_sub_u32 s14, s14, 0x200000" if opt("hack", 0) == 2 else ""}
    {"s_and_b32 s14, s14, 0x70000" if opt("hack", 0) == 3 else ""}
    {"s_sub_u32 s14, s14, 0x200000" if opt("hack", 0) == 3 else ""}
    s_lshl_b32 s13, {sKQ}, 13
    s_add_u32 s14, s14, s13
    s_add_u32 s14, s14, {H_OFF}
    v_lshl_add_u32 v{vH}, v1, 4, s14
    s_and_b32 s13, {ROT}, 3
    s_lshl_b32 s14, s13, 11
    v_xor_b32 v{vH}, s14, v{vH}
    s_lshl_b32 s13, s13, 6
    v_xor_b32 v{T+2}, v{T}, v{T+1}
    v_lshlrev_b32 v{T+2}, 4, v{T+2}
    v_lshl_add_u32 v{T+2}, v{T}, 8, v{T+2}
    s_lshl_b32 s12, {sKQ}, 15
    v_add_u32 v{VC}, s12, v{T+2}
    v_xor_b32 v{VC}, s13, v{VC}""")
    for q in range(1, 4): k(f"v_xor_b32 v{VC+q}, {64*q}, v{VC}")
    srd(k, 64, WS, 0x900000)
    for i in range(8): k(f"v_mov_b32 v{Y8+i}, 0")
    k(f"""s_lshl_b32 s12, {sRP}, 15
    s_lshl_b32 s13, {sKQ}, 11
    s_add_u32 s13, s13, s12
    v_lshl_add_u32 v{vRW}, v1, 4, s13
    s_lshl_b32 s13, {sKQ}, 13
    s_add_u32 s13, s13, s12
    v_lshl_add_u32 v{vRR}, v1, 4, s13
    v_mov_b32 v{T+7}, {LPR}""")
    L1, L2 = k.lab("RL"), k.lab("RL")
    FLS = f"s_mov_b64 exec, 1\nglobal_store_dwordx4 v2, v[4:7], {WS}{HST}"
    if LOC:
        L3 = k.lab("RL")
        FLS = f"""s_mov_b64 exec, 1
        s_cmp_lg_u32 s0, s1
        s_cbranch_scc1 {L3}
        global_store_dwordx4 v2, v[4:7], {WS}
        s_mov_b64 exec, -1
        s_branch {L2}
        {L3}:
        global_store_dwordx4 v2, v[4:7], {WS} sc1"""
    k(f"""s_cmp_lg_u32 {sRP}, 0
    s_cbranch_scc1 {L1}
    s_waitcnt vmcnt(6)
    {FLS}
    s_mov_b64 exec, -1
    s_branch {L2}
    {L1}:
    v_mov_b32 v{T+6}, 6
    s_waitcnt vmcnt(7)
    ds_write_b32 v2, v{T+6}""")
    prog_wait4(k, T + 7, T, 0, 7)
    k(f"{L2}:")
    stamp(k, 7)
    prog_wait4(k, T + 7, T, 16, 6)
    stamp(k, 8)
    def cf(ks, dt): return CF + 4 * (4 * ks + dt)
    gl = f"global_load_dword v{GL}, v{vF3}, {WS} sc1"
    L = k.lab("NP")
    k(f"s_cmp_lt_u32 {sW}, 6\ns_cbranch_scc1 {L}\n{gl}\n{L}:")
    for ks in range(8):
        for dt in range(4):
            k(f"ds_read_b128 {vr(cf(ks,dt),4)}, v{VC+(ks>>1)} offset:{(ks&1)*16384 + dt*4096}")
    k("s_waitcnt vmcnt(0)")
    for w in range(4):
        k(f"""v_lshlrev_b32 v{T}, 16, v{X2+w}
        v_and_b32 v{T+1}, 0xffff0000, v{X2+w}
        v_lshlrev_b32 v{T+2}, 16, v{AD+w}
        v_and_b32 v{T+3}, 0xffff0000, v{AD+w}
        v_lshlrev_b32 v{T+4}, 16, v{BD+w}
        v_and_b32 v{T+5}, 0xffff0000, v{BD+w}
        v_pk_mul_f32 {vr(T+2,2)}, {vr(T,2)}, {vr(T+2,2)}
        v_pk_mul_f32 {vr(T+4,2)}, {vr(T,2)}, {vr(T+4,2)}
        v_cvt_pk_bf16_f32 v{T+2}, v{T+2}, v{T+3}
        v_cvt_pk_bf16_f32 v{XB+w}, v{T+4}, v{T+5}
        v_lshlrev_b32 v{SA+2*w}, 16, v{T+2}
        v_and_b32 v{SA+2*w+1}, 0xffff0000, v{T+2}""")
    for q in range(4): k(f"v_xor_b32 v{X2+2*q}, {2048*q}, v{vH}\nv_xor_b32 v{X2+2*q+1}, {2048*q+32768}, v{vH}")
    L, D, D2 = k.lab("SP"), k.lab("SD"), k.lab("SD")
    k(f"""s_cmp_lt_u32 {sW}, 6
    s_cbranch_scc1 {D2}
    s_mov_b32 s11, {SPIN}
    {L}:
    s_waitcnt vmcnt(0)
    v_cmp_ne_u32 vcc, {sTAG}, v{GL}
    s_and_b64 exec, exec, vcc
    s_cbranch_scc0 {D}
    s_sub_u32 s11, s11, 1
    s_cmp_eq_u32 s11, 0
    s_cbranch_scc1 {D}
    {"s_sleep %d" % PSL if PSL else ""}
    {gl}
    s_branch {L}
    {D}:
    s_mov_b64 exec, -1
    s_cmp_eq_u32 {sW}, {PW}
    s_cbranch_scc1 {D2}""")
    for i in range(8):
        k(f"""s_mov_b32 m0, {LXT + i*1024}
        s_add_u32 s15, s68, {Y_OFF + i*32768}
        buffer_load_dwordx4 v{vF2b if i & 1 else vYb}, s[64:67], s15 offen sc1 lds""")
    k(f"""s_waitcnt vmcnt(0)
    {D2}:
    s_waitcnt lgkmcnt(0)
    s_setprio 0
    s_barrier""")
    vm.q = []
    def hl(ks):
        for rt in range(2):
            vm.op(f"global_load_dwordx4 {vr(HF+8*ks+4*rt,4)}, v{X2+2*(ks>>1)+rt}, {CRE if opt('hack', 0) == 3 else WS} offset:{(ks&1)*1024}{HSC}", f"h{ks}")
    hl(0)
    vm.op(f"global_load_dwordx2 {vr(GL,2)}, v{vF2}, {WS} sc1", "g")
    hl(1)
    for ks in range(2, 8): hl(ks)
    stamp(k, 9)
    for i in range(8): k(f"ds_read_u16_d16_hi v{Y8+i}, v{vYF} offset:{(16*(i>>2) + (i&3))*128}")
    def prepG():
        k(f"""v_and_b32 v2, 2, v1
        s_waitcnt lgkmcnt(0)
        v_cmp_eq_u32 vcc, 0, v2
        v_cndmask_b32 v{vG}, v{GL+1}, v{GL}, vcc
        v_sub_f32 v2, 1.0, v{vG}
        v_cvt_pk_bf16_f32 v2, v2, v2
        v_and_b32 v2, 0xffff0000, v2""")
    def prepB(w):
        k(f"""v_lshlrev_b32 v4, 16, v{XB+w}
        v_and_b32 v5, 0xffff0000, v{XB+w}
        v_pk_add_f32 v[4:5], v[4:5], {vr(Y8+2*w,2)}
        v_cvt_pk_bf16_f32 v4, v4, v5
        v_and_b32 v5, 0xffff0000, v4
        v_lshlrev_b32 v4, 16, v4
        v_mul_f32 v4, v2, v4
        v_mul_f32 v5, v2, v5
        v_cvt_pk_bf16_f32 v4, v4, v5
        v_lshlrev_b32 v{Y8+2*w}, 16, v4
        v_and_b32 v{Y8+2*w+1}, 0xffff0000, v4""")
    for ks in range(8):
        vm.wait(f"h{ks}")
        for dt in range(4):
            for rt in range(2):
                a = ACC + 16 * rt + 4 * dt
                k(f"v_mfma_f32_16x16x32_bf16 {vr(a,4)}, {vr(cf(ks,dt),4)}, {vr(HF+8*ks+4*rt,4)}, {'0' if ks == 0 else vr(a,4)}")
        if ks == 1: prepG()
        if 2 <= ks < 6: prepB(ks - 2)
    stamp(k, 10)
    U = HF; TBv = HF + 32
    for dst in range(4):
        for e in range(2):
            a = ACC + 16 * (dst & 1) + 4 * (2 * (dst >> 1) + e)
            k(f"ds_write_b128 v{vRW}, {vr(a,4)} offset:{dst*8192 + e*1024}")
    k("s_waitcnt lgkmcnt(0)\ns_barrier")
    for src in range(4):
        for e in range(2):
            k(f"ds_read_b128 {vr(U+8*src+4*e,4)}, v{vRR} offset:{src*2048 + e*1024}")
    for src in range(4):
        k(f"s_waitcnt lgkmcnt({6-2*src})")
        for i in range(4): k(f"v_pk_add_f32 {vr(SA+2*i,2)}, {vr(SA+2*i,2)}, {vr(U+8*src+2*i,2)}")
    for e in range(2):
        for i in range(4*e, 4*e + 4): k(f"v_fma_f32 v{TBv+i}, v{vG}, v{SA+i}, v{Y8+i}")
        k(f"global_store_dwordx4 v{vO}, {vr(TBv+4*e,4)}, {OUTP} offset:{64*e}{OST}")
    stamp(k, 11)
    stamps_out(k)

import re
def unpk(L):
    o = []; on = False
    for l in L:
        t = l.strip()
        if t.startswith("; REG"):
            on = t.split()[2] in UNPK; continue
        m = re.match(r"v_pk_(fma|mul|add)_f32 (.*)", t)
        if not (m and on): o.append(l); continue
        op = m.group(1); rest = m.group(2)
        regs = [int(x) for x in re.findall(r"v\[(\d+):\d+\]", rest)]
        n = len(regs) - 1
        assert n == (3 if op == "fma" else 2), t
        def mod(name, dflt):
            mm = re.search(name + r":\[([\d,]+)\]", rest)
            return [int(x) for x in mm.group(1).split(",")] if mm else [dflt] * n
        sl, shi, nl, nh = mod("op_sel", 0), mod("op_sel_hi", 1), mod("neg_lo", 0), mod("neg_hi", 0)
        d = regs[0]; two = []
        for dd, se, ng in ((d, sl, nl), (d + 1, shi, nh)):
            src = [regs[1 + i] + se[i] for i in range(n)]
            if op == "fma" and src[2] == dd and not any(ng): ins = f"v_fmac_f32 v{dd}, v{src[0]}, v{src[1]}"
            else: ins = f"v_{op}_f32 v{dd}, " + ", ".join(("-" if ng[i] else "") + f"v{src[i]}" for i in range(n))
            two.append((ins, src))
        if d in two[1][1]:
            assert d + 1 not in two[0][1], t
            two.reverse()
        o += ["    " + x[0] for x in two]
    return o
UNPK = opt_s("unpk", "")
def finish(k):
    k(f"{k.label}_END:")
    k.L = unpk(k.L)
    k.L, n = haz.fix(k.L)
    print(k.label, "nops added", n, "vgpr", k.vgpr, "lines", len(k.L))

YF = opt("yf", 12)
HSC = " sc1" if opt("hsc", 0) else ""
PSL = opt("psl", 0)
PW = opt("pw", 7)
ROT = {0: "0", 1: sDT, 2: sW}[opt("rot", 1)]
k1 = K(NAME + "_kernel", 256, 512, LDS_TOTAL)
prologue(k1)
lds_zero_and_nonce(k1)
k1(f"s_cmp_ge_u32 {sW}, 4\ns_cbranch_scc1 {k1.label}_S4")
h5 = s5(k1)
k1(f"{k1.label}_S4:\n; REG E")
h4 = s4(k1)
print(h5, h4)
k1(f"{k1.label}_P2:\n; REG F")
phase2(k1)
finish(k1)
emit([k1], OUT, single=True)
```

```python
import sys, math
from lib import *
import haz
FUSED = True
def opt(n, d):
    for a in sys.argv:
        if a.startswith(f"--{n}="): return int(a.split("=")[1])
    return d
def opt_s(n, d):
    for a in sys.argv:
        if a.startswith(f"--{n}="): return a.split("=")[1]
    return d
MAP = opt("map", 1); HST = {0: "", 1: " sc1", 2: " nt", 3: " sc0"}[opt("hst", 1)]
LOCP = opt("locp", 0); HFS = {0: "", 2: " nt"}[opt("hfs", 0)]; OST = {0: "", 1: " sc1", 2: " nt", 3: " sc0 sc1", 4: " sc1 nt", 5: " sc0 sc1 nt"}[opt("ost", 0)]
LOC = opt("loc", 0); TW = opt("tw", 2); PFS = opt("pfs", 1); HTS = opt("hts", 1); HTG = opt("htg", 128); CST = opt("cst", 3)
SH1 = opt("sh1", 4); SH2 = opt("sh2", 8); SH3 = opt("sh3", 6)
STAMPS = "--stamps" in sys.argv
OUT = [a for a in sys.argv[1:] if a.endswith(".s")][0]

XT_OFF, H_OFF, Y_OFF, E_OFF = 0, 0x200000, 0x600000, 0x800000
F1_OFF, F2_OFF, F3_OFF, ST_OFF = 0x820000, 0x821000, 0x825000, 0x830000
LB, LX, LS = 0, 65536, 131072
LKC, LP, CHS = LS, LS + 2752, 11008
LPR = LS + 22016
LXT, XTS = LS + 22048, 4608
LH = LS + 31264
LDS_TOTAL = LH + 1024
LOG2E = 1.4426950408889634
INV2PI = 0.15915494309189535
import struct
def fl(x): return "0x%08x" % struct.unpack("<I", struct.pack("<f", x))[0]
SPIN = 1 << 20

X_, LRE, LIM, BRE, BIM, CRE, CIM, ALDT = [f"s[{16+2*i}:{17+2*i}]" for i in range(8)]
ADS, _BU, SARE, SAIM, SBRE, SBIM, SCRE, SCIM = [f"s[{32+2*i}:{33+2*i}]" for i in range(8)]
BLDT, BDS, GW, OUTP, DBG, WS = [f"s[{48+2*i}:{49+2*i}]" for i in range(6)]
sW, sXCD, sI, sC, sJ, sR, sDT = "s3", "s4", "s5", "s6", "s7", "s8", "s9"
sTAG = "s10"

class RA:
    def __init__(s, start=2, end=256): s.n = start; s.end = end; s.hi = start
    def __call__(s, n=1, al=1):
        s.n = (s.n + al - 1) // al * al
        r = s.n; s.n += n; s.hi = max(s.hi, s.n); assert s.n <= s.end, "out of vgprs"
        return r
def vr(a, n): return f"v[{a}:{a+n-1}]" if n > 1 else f"v{a}"

class VM:
    def __init__(s, k): s.k = k; s.q = []
    def op(s, line, tag=None): s.k(line); s.q.append(tag)
    def wait(s, tag):
        idx = max(i for i, t in enumerate(s.q) if t == tag)
        n = len(s.q) - 1 - idx
        n = min(n, 63)
        s.k(f"s_waitcnt vmcnt({n})")
    def all(s): s.k("s_waitcnt vmcnt(0)")

def sreg(i): return 98 if i == 0 else (100 if i == 11 else 76 + 2*i)
def stamp(k, i):
    if STAMPS: k(f"s_memrealtime s[{sreg(i)}:{sreg(i)+1}]")
def stamps_out(k):
    if not STAMPS: return
    k(f"""s_lshl_b32 s11, {sW}, 8
    s_add_u32 s11, s11, s2
    s_lshl_b32 s11, s11, 6
    s_add_u32 s11, s11, {ST_OFF}
    v_mov_b32 v8, s11
    s_mov_b64 exec, 1
    s_waitcnt lgkmcnt(0)""")
    for i in range(12):
        k(f"v_mov_b32 v9, s{sreg(i)}\nglobal_store_dword v8, v9, {WS} offset:{4*i}")

def srd(k, s, ptr, size):
    a = int(ptr[2:ptr.index(":")])
    k(f"s_mov_b32 s{s}, s{a}\ns_and_b32 s{s+1}, s{a+1}, 0xffff\ns_mov_b32 s{s+2}, {size}\ns_mov_b32 s{s+3}, 0x20000")

def prologue(k, first=True):
    k(f"""s_cmp_ge_u32 s2, 256
    s_cbranch_scc1 {k.label}_END
    s_load_dwordx16 s[16:31], s[0:1], 0
    s_load_dwordx16 s[32:47], s[0:1], 64
    s_load_dwordx8 s[48:55], s[0:1], 128
    s_load_dwordx4 s[56:59], s[0:1], 160
    s_memrealtime s[98:99]
    s_getpc_b64 s[12:13]
    {k.label}_PC:
    v_lshrrev_b32 v2, 6, v0
    v_and_b32 v1, 63, v0
    v_readfirstlane_b32 {sW}, v2
    s_and_b32 {sXCD}, s2, 7
    s_lshr_b32 {sI}, s2, 3
    """)
    L = k.lab("NPF")
    k(f"""s_cmp_lg_u32 {sW}, {k.block//64-1}
    s_cbranch_scc1 {L}
    s_and_b32 s11, {sI}, 3
    s_lshl_b32 s11, s11, 13
    v_lshlrev_b32 v2, 7, v1
    v_add_u32 v2, s11, v2
    v_min_u32 v2, {k.label}_END-{k.label}_PC, v2
    global_load_dword v3, v2, s[12:13]
    {L}:
    """)
    if MAP == 0: k(f"""s_and_b32 s11, {sXCD}, 3
    s_and_b32 s14, {sI}, 3
    s_lshl_b32 {sC}, s11, 2
    s_add_u32 {sC}, {sC}, s14
    s_lshr_b32 s15, {sXCD}, 2
    s_lshr_b32 {sDT}, {sI}, 2
    s_lshl_b32 {sJ}, s15, 3
    s_add_u32 {sJ}, {sJ}, {sDT}
    s_lshl_b32 {sR}, s11, 3
    s_lshl_b32 s15, s15, 2
    s_add_u32 {sR}, {sR}, s15
    s_add_u32 {sR}, {sR}, s14
    """)
    else: k(f"""s_and_b32 s11, {sI}, 1
    s_lshl_b32 {sC}, {sXCD}, 1
    s_add_u32 {sC}, {sC}, s11
    s_lshr_b32 {sJ}, {sI}, 1
    s_lshr_b32 {sDT}, {sI}, 2
    s_and_b32 s14, {sI}, 3
    s_lshl_b32 {sR}, {sXCD}, 2
    s_add_u32 {sR}, {sR}, s14
    """)

def census(k, a, b, sh=0):
    L = k.lab("NA")
    k(f"""s_cmp_lg_u32 {sW}, {opt("locw", 5)}
    s_cbranch_scc1 {L}
    v_mov_b32 v{a}, s0
    v_mov_b32 v{b}, s1
    {f"v_lshrrev_b32 v{a}, 5, v{a}" if sh else ""}
    s_mov_b64 exec, 1
    global_atomic_add v{b}, v{a}, {DBG}{" sc1" if LOC == 2 else ""}
    s_mov_b64 exec, -1
    {L}:""")

def lds_zero_and_nonce(k):
    L = k.lab("NN")
    k(f"""s_lshl_b32 s11, {sW}, 10
    s_add_u32 s14, s11, {LS}
    s_add_u32 s15, s11, {LS + CHS - 3072}
    s_cmp_lt_u32 {sW}, 3
    s_cselect_b32 s14, s14, s15
    s_cmp_eq_u32 {sW}, 6
    s_cselect_b32 s14, {LPR}, s14
    s_cmp_eq_u32 {sW}, 7
    s_cselect_b32 s14, {LXT + XTS}, s14
    v_lshl_add_u32 v2, v1, 4, s14
    v_mov_b32 v4, 0
    v_mov_b32 v5, 0
    v_mov_b32 v6, 0
    v_mov_b32 v7, 0
    ds_write_b128 v2, v[4:7]
    s_waitcnt lgkmcnt(0)
    s_or_b32 s11, s2, {sW}
    s_cmp_lg_u32 s11, 0
    s_cbranch_scc1 {L}
    s_or_b32 s11, s98, 1
    v_mov_b32 v5, s11
    s_mov_b64 exec, 1
    global_store_dword v4, v5, {DBG} sc1
    s_mov_b64 exec, -1
    {L}:""")
    if LOC:
        L = k.lab("NA")
        k(f"""s_getreg_b32 s0, hwreg(HW_REG_XCC_ID, 0, 4)
        s_mul_i32 s1, s0, s0
        s_lshl_b32 s1, s1, 9
        s_add_u32 s0, s0, s1
        s_lshl_b32 s0, s0, 6
        s_add_u32 s0, s0, 1
        s_lshl_b32 s1, {sXCD}, 4
        s_add_u32 s1, s1, 128
        """)
        if LOCP == 0: census(k, 5, 6)
        k(f"""        s_lshl_b32 s0, s0, 5""")

def get_tag(k, vm, vt, vz):
    L, D = k.lab("TG"), k.lab("TD")
    vm.wait("tag")
    k(f"""v_readfirstlane_b32 {sTAG}, v{vt}
    s_cmp_lg_u32 {sTAG}, 0
    s_cbranch_scc1 {D}
    s_mov_b32 s11, {SPIN}
    {L}:
    global_load_dword v{vt}, v{vz}, {DBG} sc1
    s_waitcnt vmcnt(0)
    v_readfirstlane_b32 {sTAG}, v{vt}
    s_sub_u32 s11, s11, 1
    s_cmp_eq_u32 s11, 0
    s_cbranch_scc1 {D}
    s_cmp_eq_u32 {sTAG}, 0
    s_cbranch_scc1 {L}
    {D}:""")

def prog_set(k, vaddr, vtmp, val):
    k(f"v_mov_b32 v{vtmp}, {val}\nds_write_b32 v{vaddr}, v{vtmp}")
def prog_wait4(k, vz, vt4, off, val):
    L, D = k.lab("PW"), k.lab("PD")
    k(f"""s_mov_b32 s11, {SPIN}
    {L}:
    ds_read_b128 {vr(vt4,4)}, v{vz} offset:{off}
    s_waitcnt lgkmcnt(0)
    v_min3_u32 v{vt4}, v{vt4}, v{vt4+1}, v{vt4+2}
    v_min_u32 v{vt4}, v{vt4}, v{vt4+3}
    s_sub_u32 s11, s11, 1
    v_readfirstlane_b32 s14, v{vt4}
    s_cmp_eq_u32 s11, 0
    s_cbranch_scc1 {D}
    s_cmp_lt_u32 s14, {val}
    s_cbranch_scc1 {L}
    {D}:""")
def prog_wait1(k, vaddr, vt, val):
    L, D = k.lab("PW"), k.lab("PD")
    k(f"""s_mov_b32 s11, {SPIN}
    {L}:
    ds_read_b32 v{vt}, v{vaddr}
    s_waitcnt lgkmcnt(0)
    s_sub_u32 s11, s11, 1
    v_readfirstlane_b32 s14, v{vt}
    s_cmp_eq_u32 s11, 0
    s_cbranch_scc1 {D}
    s_cmp_lt_u32 s14, {val}
    s_cbranch_scc1 {L}
    {D}:""")

def cexp(k, va, vth, n, dre, dim, t0, t1):
    k(f"""v_mul_f32 v{t0}, {n}, v{va}
    v_mul_f32 v{t1}, {n}, v{vth}
    v_exp_f32 v{t0}, v{t0}
    v_fract_f32 v{t1}, v{t1}
    v_cos_f32 v{dre}, v{t1}
    v_sin_f32 v{dim}, v{t1}
    v_mul_f32 v{dre}, v{dre}, v{t0}
    v_mul_f32 v{dim}, v{dim}, v{t0}""")
def cmul(k, dr, di, ar, ai, br, bi):
    k(f"""v_mul_f32 v{dr}, v{ar}, v{br}
    v_mul_f32 v{di}, v{ar}, v{bi}
    v_fma_f32 v{dr}, -v{ai}, v{bi}, v{dr}
    v_fmac_f32 v{di}, v{ai}, v{br}""")
def cfma(k, dr, di, ar, ai, br, bi):
    k(f"""v_fmac_f32 v{dr}, v{ar}, v{br}
    v_fmac_f32 v{di}, v{ar}, v{bi}
    v_fma_f32 v{dr}, -v{ai}, v{bi}, v{dr}
    v_fmac_f32 v{di}, v{ai}, v{br}""")

def dma_patterns(k, VP, t):
    k(f"""v_lshrrev_b32 v{t}, 4, v1
    v_and_b32 v{VP}, 15, v1
    v_xor_b32 v{VP}, v{VP}, v{t}
    v_lshlrev_b32 v{VP}, 4, v{VP}
    v_lshl_add_u32 v{VP}, v{t}, 10, v{VP}""")
    for q in range(1, 4): k(f"v_xor_b32 v{VP+q}, {64*q}, v{VP}")

def c_dma(k, vm, VP, half, wsg, cb=None):
    for sl in (2*half, 2*half+1):
        for comp in range(2):
            for q in range(4):
                k(f"s_add_u32 m0, s77, {sl*32768 + comp*16384 + q*1024}")
                k(f"s_add_u32 s15, s76, {q*4096 + sl*256}")
                vm.op(f"buffer_load_dwordx4 v{VP+q}, s[{68+4*comp}:{71+4*comp}], s15 offen lds", f"C{half}")
                if cb: cb()
def c_setup(k, wsg):
    srd(k, 68, CRE, 524288); srd(k, 72, CIM, 524288)
    k(f"""s_lshl_b32 s76, {sDT}, 16
    s_lshl_b32 s77, {wsg}, 14
    s_add_u32 s76, s76, s77
    s_lshl_b32 s77, {wsg}, 12""")

def pcmul(k, d, a, b):
    k(f"v_pk_mul_f32 {vr(d,2)}, {vr(a,2)}, {vr(b,2)} op_sel:[0,0] op_sel_hi:[0,1]")
    k(f"v_pk_fma_f32 {vr(d,2)}, {vr(a,2)}, {vr(b,2)}, {vr(d,2)} op_sel:[1,1,0] op_sel_hi:[1,0,1] neg_lo:[1,0,0]")


def spec_wait4(k, vz, vt4, off, val, reads):
    L, D = k.lab("SW"), k.lab("SD")
    k(f"s_mov_b32 s11, {SPIN}\n{L}:\nds_read_b128 {vr(vt4,4)}, v{vz} offset:{off}")
    for r in reads: k(r)
    k(f"""s_waitcnt lgkmcnt({min(len(reads), 15)})
    v_min3_u32 v{vt4}, v{vt4}, v{vt4+1}, v{vt4+2}
    v_min_u32 v{vt4}, v{vt4}, v{vt4+3}
    s_sub_u32 s11, s11, 1
    v_readfirstlane_b32 s14, v{vt4}
    s_cmp_eq_u32 s11, 0
    s_cbranch_scc1 {D}
    s_cmp_lt_u32 s14, {val}
    s_cbranch_scc1 {L}
    {D}:""")
class Buf:
    def __init__(s): s.L = []
    def __call__(s, t):
        for l in t.strip("\n").split("\n"):
            if l.strip(): s.L.append(l.strip())
    def take(s, k, n):
        for _ in range(min(n, len(s.L))): k(s.L.pop(0))
def pk_cfma_b(k, dR, dI, a, sR, sI):
    k(f"v_pk_fma_f32 {vr(dR,2)}, {vr(a,2)}, {vr(sR,2)}, {vr(dR,2)} op_sel:[0,0,0] op_sel_hi:[0,1,1]")
    k(f"v_pk_fma_f32 {vr(dI,2)}, {vr(a,2)}, {vr(sI,2)}, {vr(dI,2)} op_sel:[0,0,0] op_sel_hi:[0,1,1]")
    k(f"v_pk_fma_f32 {vr(dR,2)}, {vr(a,2)}, {vr(sI,2)}, {vr(dR,2)} op_sel:[1,0,0] op_sel_hi:[1,1,1] neg_lo:[1,0,0] neg_hi:[1,0,0]")
    k(f"v_pk_fma_f32 {vr(dI,2)}, {vr(a,2)}, {vr(sR,2)}, {vr(dI,2)} op_sel:[1,0,0] op_sel_hi:[1,1,1]")
def pcfma(k, d, a, b):
    k(f"v_pk_fma_f32 {vr(d,2)}, {vr(a,2)}, {vr(b,2)}, {vr(d,2)} op_sel:[0,0,0] op_sel_hi:[0,1,1]")
    k(f"v_pk_fma_f32 {vr(d,2)}, {vr(a,2)}, {vr(b,2)}, {vr(d,2)} op_sel:[1,1,0] op_sel_hi:[1,0,1] neg_lo:[1,0,0]")

def s5(k):
    ra = RA(8); vm = VM(k)
    MS = 18
    VP = ra(4); VPX = ra(4); VA = ra(8); VX = ra(8)
    T = ra(8, 4); vPR = ra(); vPW = ra(); vZ = ra(); vTG = ra()
    pLre, pLim, pDt, va, vth, vS, vG, vXR = [ra() for _ in range(8)]
    L1 = ra(2, 2); L8 = ra(2, 2); L16 = ra(2, 2); C2 = ra(2, 2); SR = ra(2, 2); SI = ra(2, 2); LSR = ra(2, 2); LSI = ra(2, 2); H = ra(2, 2)
    Q = ra(6, 2)
    GX = ra(8, 4); GWv = ra(8, 4)
    ACR = ra(16, 4); ACI = ra(16, 4)
    FR = ra(24, 4)
    EX = ra(16, 4)
    EG = ra(32, 4); XR = EG
    RT = ra(16, 4)
    Wt = ra(4, 2)
    vGA = ra(); vEA = ra(); vPF = ra(); vHW = ra(); vHR = ra(); vHT = ra()
    k("; REG A")
    srd(k, 60, X_, 2097152)
    k(f"""s_and_b32 s11, {sW}, 1
    s_cmp_eq_u32 s11, 0
    s_cselect_b32 s64, s22, s24
    s_cselect_b32 s65, s23, s25
    s_cselect_b32 s68, s26, s28
    s_cselect_b32 s69, s27, s29
    s_and_b32 s65, s65, 0xffff
    s_mov_b32 s66, 524288
    s_mov_b32 s67, 0x20000""")
    pfs = f"""s_and_b32 s69, s69, 0xffff
    s_mov_b32 s70, 524288
    s_mov_b32 s71, 0x20000
    s_lshl_b32 s45, {sI}, 1
    s_lshr_b32 s46, {sW}, 1
    s_add_u32 s45, s45, s46
    s_lshl_b32 s45, s45, 13
    v_lshlrev_b32 v{vPF}, 7, v1"""
    if PFS == -2:
        k(pfs); pfs = ""
        vm.op(f"buffer_load_dword v{vPF}, v{vPF}, s[68:71], s45 offen", "pf")
    dma_patterns(k, VP, T)
    k(f"""v_and_b32 v{T}, 31, v1
    s_lshl_b32 s14, {sJ}, 6
    v_lshl_add_u32 v{T+1}, v{T}, 1, s14
    v_lshrrev_b32 v{T+2}, 5, v1
    s_lshl_b32 s14, {sC}, 7
    s_lshl_b32 s15, {sW}, 5
    s_add_u32 s14, s14, s15
    s_lshl_b32 s36, s14, 10
    s_lshl_b32 s15, {sJ}, 11
    s_add_u32 s15, s15, s36
    v_lshlrev_b32 v{T+3}, 5, v{T}
    v_lshl_add_u32 v{T+4}, v{T+2}, 10, v{T+3}
    v_add_u32 v{T+4}, s15, v{T+4}
    v_mov_b32 v{vZ}, 0""")
    if LOC: k(f"v_writelane_b32 v{vZ}, s1, 1")
    vm.op(f"global_load_ushort v{pDt}, v{T+1}, {ALDT}", "par")
    vm.op(f"global_load_ushort v{pLre}, v{T+1}, {LRE}", "par")
    vm.op(f"global_load_ushort v{pLim}, v{T+1}, {LIM}", "par")
    k(f"""s_add_u32 s11, {sC}, {sJ}
    s_and_b32 s11, s11, 3
    s_lshl_b32 s37, s11, 8
    s_add_u32 s38, s37, 256
    s_and_b32 s38, s38, 1023
    s_add_u32 s39, s37, 512
    s_and_b32 s39, s39, 1023
    s_add_u32 s40, s37, 768
    s_and_b32 s40, s40, 1023
    s_lshr_b32 s11, {sW}, 1
    s_lshl_b32 s41, {sJ}, 15
    s_lshl_b32 s14, s11, 14
    s_add_u32 s41, s41, s14
    s_lshl_b32 s42, s11, 12
    s_and_b32 s11, {sW}, 1
    s_lshl_b32 s11, s11, 13
    s_add_u32 s42, s42, s11
    s_lshl_b32 s43, {sW}, 14
    s_add_u32 s43, s43, {LX}
    v_lshrrev_b32 v{T+5}, 4, v1
    v_and_b32 v{T+6}, 1, v{T+5}
    v_lshlrev_b32 v{T+6}, 3, v{T+6}
    v_add_u32 v{T+6}, v{T+6}, v{T+2}
    v_sub_u32 v{T+6}, v{T+6}, v{T+5}
    v_lshlrev_b32 v{T+6}, 10, v{T+6}""")
    for q in range(4): k(f"v_add_u32 v{VPX+q}, v{VP+q}, v{T+6}")
    sh = Buf()
    def dB(slot, qs=range(4), n=0):
        for q in qs:
            k(f"s_add_u32 s14, s41, s{37+slot}")
            k(f"s_add_u32 m0, s42, {LB + slot*16384 + q*1024}")
            k(f"s_add_u32 s15, s14, {q*4096}")
            vm.op(f"buffer_load_dwordx4 v{VP+q}, s[64:67], s15 offen lds", f"B{slot}")
            sh.take(k, n)
    def dX(slot, ring, n=0):
        k(f"s_add_u32 s14, s36, s{37+slot}")
        for i in range(8):
            k(f"s_add_u32 m0, s43, {ring*8192 + i*1024}")
            k(f"s_add_u32 s15, s14, {(16*(i&1) + 2*(i>>1))*1024}")
            vm.op(f"buffer_load_dwordx4 v{VPX+(i&3)}, s[60:63], s15 offen lds", f"X{slot}")
            sh.take(k, n)
    vm.op(f"global_load_dwordx4 {vr(GX,4)}, v{T+4}, {X_}", "gate")
    vm.op(f"global_load_dwordx4 {vr(GX+4,4)}, v{T+4}, {X_} offset:16", "gate")
    vm.op(f"global_load_dwordx4 {vr(GWv,4)}, v{T+3}, {GW}", "gate")
    vm.op(f"global_load_dwordx4 {vr(GWv+4,4)}, v{T+3}, {GW} offset:16", "gate")
    k('s_barrier')
    sh(f"""v_and_b32 v{T+5}, 15, v1
    v_xor_b32 v{T+5}, v{T+5}, v{T+2}
    v_lshlrev_b32 v{T+5}, 4, v{T+5}
    v_lshl_add_u32 v{VA}, v{T}, 8, v{T+5}""")
    for ks in range(1, 8): sh(f"v_xor_b32 v{VA+ks}, {32*ks}, v{VA}")
    for ks in range(8): sh(f"v_add_u32 v{VX+ks}, s43, v{VA+ks}")
    sh(f"""v_mov_b32 v{vPR}, {LPR}
    s_lshl_b32 s11, {sW}, 2
    v_add_u32 v{vPW}, s11, v{vPR}
    s_lshl_b32 s11, {sW}, 1
    v_add_u32 v{vS}, s11, v{T+2}
    {pfs}
    s_lshl_b32 s46, {sJ}, 13
    s_add_u32 s46, s46, {E_OFF}
    v_lshl_add_u32 v{vGA}, v1, 4, s46
    s_lshl_b32 s46, {sC}, 9
    v_add_u32 v{vEA}, s46, v{vGA}
    s_lshl_b32 s46, {sW}, 11
    v_add_u32 v{vGA}, s46, v{vGA}
    v_lshlrev_b32 v{vHR}, 3, v{T}
    v_add_u32 v{vHR}, {LH}, v{vHR}
    s_lshl_b32 s46, {sW}, 8
    v_add_u32 v{vHW}, s46, v{vHR}
    s_lshl_b32 s46, {sC}, 2
    s_add_u32 s46, s46, {sW}
    s_lshl_b32 s46, s46, 4
    s_add_u32 s46, s46, {sJ}
    s_lshl_b32 s46, s46, 4
    s_add_u32 s46, s46, {F2_OFF}
    v_mov_b32 v2, s46""")
    srd(sh, 72, CRE, 524288)
    sh(f"""s_lshl_b32 s46, {sC}, 2
    s_add_u32 s46, s46, {sW}
    s_lshl_b32 s46, s46, 5
    s_add_u32 s46, s46, {sJ}
    s_lshl_b32 s46, s46, 11
    s_add_u32 s34, s46, {H_OFF}
    v_bfe_u32 v{vHT}, v1, 4, 1
    v_lshlrev_b32 v{vHT}, 8, v{vHT}
    v_and_or_b32 v{vHT}, v1, 15, v{vHT}
    v_lshl_add_u32 v{vHT}, v{vHT}, 7, s34""")
    if HTS == -3:
        a = int(WS[2:WS.index(":")])
        sh(f"s_add_u32 s76, s{a}, s34\ns_addc_u32 s77, s{a+1}, 0")
        for hh in range(2):
            for o in range(0, 2048, HTG): sh(f"s_load_dword s35, s[76:77], {hh*32768 + o}")
    if PFS == -3:
        sh(f"s_add_u32 s96, s68, s45\ns_addc_u32 s97, s69, 0")
        for o in range(0, 8192, HTG): sh(f"s_load_dword s35, s[96:97], {o}")
    ht = lambda: vm.op(f"global_load_dword v{vHT}, v{vHT}, {WS}", "ht")
    sh(f"""s_lshl_b32 s25, {sDT}, 16
    s_lshr_b32 s46, {sW}, 1
    s_lshl_b32 s22, s46, 15
    s_add_u32 s22, s22, s25
    s_lshl_b32 s23, s46, 13
    s_lshl_b32 s24, s46, 8
    s_add_u32 s24, s24, s25
    s_and_b32 s46, {sW}, 1
    s_lshl_b32 s46, s46, 14
    s_add_u32 s23, s23, s46
    s_lshl_b32 s46, {sW}, 14
    s_add_u32 s25, s25, s46
    s_lshl_b32 s44, {sW}, 12""")
    def dC(t_, i):
        lb, lo, gb, go, sr = {"CA": ("s23", 0, "s22", 0, 68), "CR": ("s43", 0, "s24", 512, 68), "CB": ("s44", 32768, "s25", 256, 72)}[t_]
        k(f"s_add_u32 m0, {lb}, {lo + i*1024}\ns_add_u32 s15, {gb}, {go + i*4096}")
        vm.op(f"buffer_load_dwordx4 v{VP+(i&3)}, s[{sr}:{sr+3}], s15 offen lds", "C")
    dB(0, n=5); dX(0, 0, n=5); sh.take(k, 999)
    vm.wait("gate")
    sh(f"""v_lshlrev_b32 v{pDt}, 16, v{pDt}
    v_lshlrev_b32 v{pLre}, 16, v{pLre}
    v_mul_f32 v{pDt}, {fl(LOG2E)}, v{pDt}
    v_lshlrev_b32 v{pLim}, 16, v{pLim}
    v_exp_f32 v{pDt}, v{pDt}
    v_cvt_pk_bf16_f32 v{pDt}, v{pDt}, v{pDt}
    v_lshlrev_b32 v{pDt}, 16, v{pDt}
    v_mul_f32 v{va}, v{pDt}, v{pLre}
    v_mul_f32 v{vth}, v{pDt}, v{pLim}
    v_mul_f32 v{va}, {fl(LOG2E)}, v{va}
    v_mul_f32 v{vth}, {fl(INV2PI)}, v{vth}""")
    cexp(sh, va, vth, "1.0", L1, L1 + 1, Q, Q + 1)
    cexp(sh, va, vth, fl(8.0), L8, L8 + 1, Q + 2, Q + 3)
    cexp(sh, va, vth, fl(16.0), L16, L16 + 1, Q, Q + 1)
    sh(f"""v_mul_f32 v{Q}, v{pLre}, v{pLre}
    v_fmac_f32 v{Q}, v{pLim}, v{pLim}
    v_rcp_f32 v{Q}, v{Q}
    v_add_f32 v{Q+1}, -1.0, v{L1}
    v_mul_f32 v{C2}, v{Q+1}, v{pLre}
    v_fmac_f32 v{C2}, v{L1+1}, v{pLim}
    v_mul_f32 v{C2+1}, v{L1+1}, v{pLre}
    v_fma_f32 v{C2+1}, -v{Q+1}, v{pLim}, v{C2+1}
    v_add_f32 v{Q}, v{Q}, v{Q}
    v_mul_f32 v{C2}, v{C2}, v{Q}
    v_mul_f32 v{C2+1}, v{C2+1}, v{Q}""")
    pcmul(sh, RT, C2, L1)
    for t in range(1, 8): pcmul(sh, RT + 2*t, RT + 2*t - 2, L1)
    sh(f"v_cvt_f32_u32 v{Q+2}, v{vS}\nv_mul_f32 v{Q+2}, {fl(16.0)}, v{Q+2}\nv_add_f32 v{Q+3}, {fl(8.0)}, v{Q+2}")
    cexp(sh, va, vth, f"v{Q+2}", LSR, LSI, Q, Q + 1)
    cexp(sh, va, vth, f"v{Q+3}", LSR + 1, LSI + 1, Q + 4, Q + 5)
    sh(f"v_mov_b32 v{vG}, 0")
    for i in range(8):
        sh(f"""v_lshlrev_b32 v{Q}, 16, v{GX+i}
        v_and_b32 v{Q+1}, 0xffff0000, v{GX+i}
        v_lshlrev_b32 v{Q+2}, 16, v{GWv+i}
        v_and_b32 v{Q+3}, 0xffff0000, v{GWv+i}
        v_pk_mul_f32 {vr(Q,2)}, {vr(Q,2)}, {vr(Q+2,2)}
        v_cvt_pk_bf16_f32 v{Q}, v{Q}, v{Q+1}
        v_lshlrev_b32 v{Q+1}, 16, v{Q}
        v_and_b32 v{Q}, 0xffff0000, v{Q}
        v_add_f32 v{vG}, v{vG}, v{Q+1}
        v_add_f32 v{vG}, v{vG}, v{Q}""")
    for s_ in (1, 2, 4, 8):
        sh(f"v_add_f32_dpp v{vG}, v{vG}, v{vG} row_ror:{s_} row_mask:0xf bank_mask:0xf")
    sh(f"""v_mov_b32 v{Q}, v{vG}
    v_permlane16_swap_b32 v{Q}, v{vG}
    v_add_f32 v{vG}, v{vG}, v{Q}
    v_cvt_pk_bf16_f32 v{vG}, v{vG}, v{vG}
    v_lshlrev_b32 v{vG}, 16, v{vG}
    v_mul_f32 v{vG}, {fl(-LOG2E)}, v{vG}
    v_exp_f32 v{vG}, v{vG}
    v_add_f32 v{vG}, 1.0, v{vG}
    v_rcp_f32 v{vG}, v{vG}
    v_cvt_pk_bf16_f32 v{vG}, v{vG}, v{vG}
    v_lshlrev_b32 v5, 16, v{vG}
    v_lshlrev_b32 v4, 16, v{vG}
    v_permlane32_swap_b32 v4, v5""")
    sh(f"""v_lshrrev_b32 v{Q+3}, 5, v1
    s_lshl_b32 s47, {sW}, 2
    s_sub_u32 s46, {sC}, 1
    s_sub_u32 s46, s46, s47
    v_sub_u32 v{Q+3}, s46, v{Q+3}""")
    for i in range(2):
        sh(f"""v_subrev_u32 v{Q+4}, {2*i}, v{Q+3}
        v_cmp_le_i32 s[{MS+2*i}:{MS+1+2*i}], 0, v{Q+4}
        v_max_i32 v{Q+4}, 0, v{Q+4}
        v_cvt_f32_i32 v{Q+2}, v{Q+4}
        v_mul_f32 v{Q+2}, {fl(128.0)}, v{Q+2}""")
        cexp(sh, va, vth, f"v{Q+2}", Wt + 2*i, Wt + 2*i + 1, Q, Q + 1)
    print("shadow instrs", len(sh.L))
    dB(1, n=SH1); dX(1, 1, n=SH1)
    if HTS == -1: ht()
    if PFS == -1: vm.op(f"buffer_load_dword v{vPF}, v{vPF}, s[68:71], s45 offen", "pf")
    k("s_setprio 2")
    def rdB(slot, ks):
        f = FR + 8 * (ks % 3)
        return [f"ds_read_b128 {vr(f,4)}, v{VA+ks} offset:{LB + slot*16384}",
                f"ds_read_b128 {vr(f+4,4)}, v{VA+ks} offset:{LB + slot*16384 + 8192}"]
    def dX1(slot, i):
        k(f"s_add_u32 s14, s36, s{37+slot}")
        k(f"s_add_u32 m0, s43, {(slot&1)*8192 + i*1024}")
        k(f"s_add_u32 s15, s14, {(16*(i&1) + 2*(i>>1))*1024}")
        vm.op(f"buffer_load_dwordx4 v{VPX+(i&3)}, s[60:63], s15 offen lds", f"X{slot}")
    for slot in range(4):
        vm.wait(f"X{slot}")
        prog_set(k, vPW, T, slot + 1)
        for ks in range(8): k(f"ds_read_b128 {vr(XR+4*ks,4)}, v{VX+ks} offset:{(slot&1)*8192}")
        spec_wait4(k, vPR, T, 0, slot + 1, rdB(slot, 0) + rdB(slot, 1))
        if slot in (0, 2): stamp(k, 1 + slot // 2)
        todo = ([("B", q) for q in range(4)] + [("X", i) for i in range(8)]) if slot < 2 else []
        if slot == 2: todo = [("CA", i) for i in range(8)] + [("CR", i) for i in range(8)]
        if slot == 3: todo = [("CB", i) for i in range(4)] + [("CR", i) for i in range(8, 15)]
        for ks in range(8):
            if ks + 2 < 8:
                for r in rdB(slot, ks + 2): k(r)
                k(f"s_waitcnt lgkmcnt(4)")
            elif ks + 1 < 8: k(f"s_waitcnt lgkmcnt(2)")
            else: k("s_waitcnt lgkmcnt(0)")
            f = FR + 8 * (ks % 3)
            fa = XR + 4 * ks
            z = slot == 0 and ks == 0
            k(f"v_mfma_f32_32x32x16_bf16 {vr(ACR,16)}, {vr(fa,4)}, {vr(f,4)}, {'0' if z else vr(ACR,16)}")
            k(f"v_mfma_f32_32x32x16_bf16 {vr(ACI,16)}, {vr(fa,4)}, {vr(f+4,4)}, {'0' if z else vr(ACI,16)}")
            for _ in range(2 if ks < 4 or slot == 2 else 1):
                if todo:
                    t_, i_ = todo.pop(0)
                    if t_ == "B": dB(slot + 2, [i_])
                    elif t_ == "X": dX1(slot + 2, i_)
                    else: dC(t_, i_)
            sh.take(k, SH2 if slot < 2 else SH3)
            if ks == 7 and slot == 1:
                vm.op(f"global_load_dword v{vTG}, v{vZ}, {DBG} sc1", "tag")
            if ks == 7 and slot == HTS: ht()
            if ks == 7 and slot == PFS:
                vm.op(f"buffer_load_dword v{vPF}, v{vPF}, s[68:71], s45 offen", "pf")
    print("shadow left", len(sh.L))
    stamp(k, 3)
    k("; REG B")
    for t in range(1, 8):
        pk_cfma_b(k, ACR + 2*t, ACI + 2*t, L1, ACR + 2*t - 2, ACI + 2*t - 2)
    k(f"""v_mov_b32 v{T}, v{ACR+15}
    v_mov_b32 v{T+1}, v{ACI+15}
    v_lshlrev_b32 v{T+2}, 3, v1
    v_add_u32 v{T+3}, s43, v{T+2}""")
    cfma(k, T, T + 1, L8, L8 + 1, ACR + 14, ACI + 14)
    k(f"ds_write_b64 v{T+3}, {vr(T,2)} offset:15360")
    prog_set(k, vPW, T + 4, 5)
    k(f"""v_and_b32 v{T+5}, 0xf8, v{T+2}
    v_add_u32 v{T+5}, {LX + 15360}, v{T+5}
    v_mov_b32 v{SR+1}, v{ACR+14}
    v_mov_b32 v{SI+1}, v{ACI+14}
    v_mov_b32 v{SR}, 0
    v_mov_b32 v{SI}, 0""")
    get_tag(k, vm, vTG, vZ)
    if LOC: k(f"v_readlane_b32 s1, v{vTG}, 1")
    k(f"v_mov_b32 v6, {sTAG}\nv_mov_b32 v7, {sTAG}\nv_mov_b32 v{EX+16}, {sTAG}\nv_mov_b32 v{EX+17}, {sTAG}")
    assert EG == EX + 16
    spec_wait4(k, vPR, T, 0, 5, [f"ds_read_b64 {vr(EX+2*s,2)}, v{T+5} offset:{(s>>1)*16384 + (s&1)*256}" for s in range(8)])
    for s in range(1, 8):
        k(f"s_waitcnt lgkmcnt({7-s})")
        pcfma(k, EX + 2*s, L16, EX + 2*s - 2)
    L = k.lab("NE")
    k(f"""s_cmp_lg_u32 {sW}, 0
    s_cbranch_scc1 {L}
    s_mov_b64 exec, 0xffffffff
    global_store_dwordx4 v{vEA}, {vr(EX+14,4)}, {WS} sc1
    s_mov_b64 exec, -1
    {L}:""")
    prog_set(k, vPW, T + 4, 6)
    stamp(k, 4)
    k("; REG C")
    sh.take(k, 999)
    for s in range(1, 8):
        k(f"v_cmp_eq_u32 vcc, {s}, v{vS}")
        k(f"v_cndmask_b32 v{SR}, v{SR}, v{EX+2*s-2}, vcc\nv_cndmask_b32 v{SI}, v{SI}, v{EX+2*s-1}, vcc")
    cfma(k, SR + 1, SI + 1, L8, L8 + 1, SR, SI)
    for t in range(8):
        r, i_ = ACR + 2*t, ACI + 2*t
        q = T + 2 * (t & 1)
        k(f"""v_pk_mul_f32 {vr(q,2)}, {vr(C2,2)}, {vr(i_,2)} op_sel:[1,0] op_sel_hi:[1,1]
        v_pk_mul_f32 {vr(i_,2)}, {vr(C2,2)}, {vr(i_,2)} op_sel:[0,0] op_sel_hi:[0,1]
        v_pk_fma_f32 {vr(i_,2)}, {vr(C2,2)}, {vr(r,2)}, {vr(i_,2)} op_sel:[1,0,0] op_sel_hi:[1,1,1]
        v_pk_fma_f32 {vr(r,2)}, {vr(C2,2)}, {vr(r,2)}, {vr(q,2)} op_sel:[0,0,0] op_sel_hi:[0,1,1] neg_lo:[0,0,1] neg_hi:[0,0,1]""")
    vTW, vTR, vHS = VX, VX + 1, VX + 2
    k(f"""s_lshl_b32 s43, {sW}, 12
    s_add_u32 s43, s43, {LS}
    v_lshl_add_u32 v{vTW}, v1, 5, s43
    v_lshrrev_b32 v{T+1}, 4, v1
    v_and_b32 v{T+2}, 15, v1
    v_lshlrev_b32 v{T+2}, 3, v{T+2}
    v_lshl_add_u32 v{vTR}, v{T+1}, 8, v{T+2}
    v_add_u32 v{vTR}, s43, v{vTR}
    v_lshl_add_u32 v{vHS}, v1, 4, s34
    v_add_u32 v{vHS+1}, 32768, v{vHS}""")
    k("; REG D")
    L, D, L2 = k.lab("GE"), k.lab("GD"), k.lab("GX")
    k(f"""v_mov_b32 v{H}, 0
    v_mov_b32 v{H+1}, 0
    s_cmp_eq_u64 s[{MS}:{MS+1}], 0
    s_cbranch_scc1 {D}
    s_mov_b32 s11, {SPIN}
    s_mov_b64 s[12:13], s[{MS}:{MS+1}]
    s_mov_b64 s[14:15], s[{MS+2}:{MS+3}]
    {L}:
    s_mov_b64 exec, s[12:13]
    global_load_dwordx3 {vr(EG+4,3)}, v{vGA}, {WS} sc1
    s_mov_b64 exec, s[14:15]
    global_load_dwordx3 {vr(EG+8,3)}, v{vGA}, {WS} offset:1024 sc1
    s_sub_u32 s11, s11, 1
    s_cmp_eq_u32 s11, 0
    s_waitcnt vmcnt(0)
    s_cbranch_scc1 {L2}
    v_cmp_ne_u32 s[14:15], {sTAG}, v{EG+10}
    s_mov_b64 exec, s[12:13]
    v_cmp_ne_u32 s[12:13], {sTAG}, v{EG+6}
    s_or_b64 vcc, s[12:13], s[14:15]
    s_cbranch_scc1 {L}
    {L2}:""")
    for i in range(2):
        k(f"s_mov_b64 exec, s[{MS+2*i}:{MS+1+2*i}]")
        pcfma(k, H, Wt + 2*i, EG + 4 + 4*i)
    k(f"""s_mov_b64 exec, -1
    v_mov_b32 v{T}, v{H}
    v_mov_b32 v{T+1}, v{H+1}
    v_permlane32_swap_b32 v{T}, v{H}
    v_permlane32_swap_b32 v{T+1}, v{H+1}
    v_pk_add_f32 {vr(H,2)}, {vr(H,2)}, {vr(T,2)}
    {D}:
    s_waitcnt vmcnt(0)
    ds_write_b64 v{vHW}, {vr(H,2)}""")
    prog_set(k, vPW, T + 4, 7)
    spec_wait4(k, vPR, T, 0, 7, [f"ds_read2_b64 {vr(EG,4)}, v{vHR} offset1:32", f"ds_read2_b64 {vr(EG+4,4)}, v{vHR} offset0:64 offset1:96"])
    stamp(k, 5)
    k(f"ds_read_b128 {vr(T+4,4)}, v{vPR} offset:16")
    k(f"""s_waitcnt lgkmcnt(1)
    v_pk_add_f32 {vr(EG,2)}, {vr(EG,2)}, {vr(EG+2,2)}
    v_pk_add_f32 {vr(EG+4,2)}, {vr(EG+4,2)}, {vr(EG+6,2)}
    v_pk_add_f32 {vr(H,2)}, {vr(EG,2)}, {vr(EG+4,2)}""")
    pk_cfma_b(k, SR, SI, H, LSR, LSI)
    HB = EG
    for t in range(8):
        pk_cfma_b(k, ACR + 2*t, ACI + 2*t, RT + 2*t, SR, SI)
        if t:
            k(f"v_cvt_pk_bf16_f32 v{HB+t-1}, v{ACR+2*t-2}, v{ACR+2*t-1}")
            k(f"v_cvt_pk_bf16_f32 v{HB+8+t-1}, -v{ACI+2*t-2}, -v{ACI+2*t-1}")
    D = k.lab("TF")
    k(f"""s_waitcnt lgkmcnt(0)
    v_min3_u32 v{T+4}, v{T+4}, v{T+5}, v{T+6}
    v_min_u32 v{T+4}, v{T+4}, v{T+7}
    v_cvt_pk_bf16_f32 v{HB+7}, v{ACR+14}, v{ACR+15}
    v_readfirstlane_b32 s14, v{T+4}
    v_cvt_pk_bf16_f32 v{HB+15}, -v{ACI+14}, -v{ACI+15}
    s_cmp_ge_u32 s14, 5
    s_cbranch_scc1 {D}""")
    prog_wait4(k, vPR, T + 4, 16, 5)
    k(f"""{D}:
    ds_write_b128 v{vTW}, {vr(HB,4)}
    ds_write_b128 v{vTW}, {vr(HB+4,4)} offset:16
    ds_write_b128 v{vTW}, {vr(HB+8,4)} offset:2048
    ds_write_b128 v{vTW}, {vr(HB+12,4)} offset:2064""")
    HF = EG + 16
    for comp in range(2):
        for hh in range(2):
            f = HF + 4 * (2*comp + hh)
            k(f"ds_read_b64_tr_b16 {vr(f,2)}, v{vTR} offset:{comp*2048 + hh*1024}")
            k(f"ds_read_b64_tr_b16 {vr(f+2,2)}, v{vTR} offset:{comp*2048 + hh*1024 + 128}")
    for comp in range(2):
        for hh in range(2):
            f = HF + 4 * (2*comp + hh)
            if not LOC:
                k(f"s_waitcnt lgkmcnt({6 - 2*(2*comp+hh)})")
                k(f"global_store_dwordx4 v{vHS+hh}, {vr(f,4)}, {WS} offset:{comp*1024}{HST}")
    if LOC:
        LS_ = k.lab("HS")
        k(f"s_cmp_lg_u32 s0, s1\ns_cbranch_scc1 {LS_}")
        for sc in (HFS, " sc1"):
            for comp in range(2):
                for hh in range(2):
                    f = HF + 4 * (2*comp + hh)
                    k(f"s_waitcnt lgkmcnt({6 - 2*(2*comp+hh)})")
                    k(f"global_store_dwordx4 v{vHS+hh}, {vr(f,4)}, {WS} offset:{comp*1024}{sc}")
            stamp(k, 6)
            k(f"s_branch {k.label}_P2")
            if sc == HFS: k(f"{LS_}:")
        return ra.hi
    stamp(k, 6)
    k(f"s_branch {k.label}_P2")
    return ra.hi

def s4(k):
    ra = RA(); vm = VM(k)
    sWp, sCH, sH, sD, sLC, sSC = "s60", "s61", "s62", "s63", "s64", "s65"
    T = ra(8, 4); vZ = ra(); vTG = ra(); vPW = ra(); vPP = ra(); vFA = ra(); va = ra(); vth = ra()
    VF = ra(8); VG = ra(); vYA = ra(); vSC = ra(); vSP = ra()
    ACC = ra(32, 4)
    base = ra.n
    XL = ra(8, 4); XO = ra(8, 4); PA = ra(8)
    IX = ra(20); SW = ra(16); SR = ra(4); DA = ra(3); vXS = ra(2)
    Z = ra(32, 2); TB = ra(18, 2); U = ra(4, 2); z16 = ra(2, 2); PKD = ra(4)
    OPB = ra(16, 4); OPA = ra(32, 4); KD = ra(12, 4)
    k(f"""s_setprio 3
    s_sub_u32 {sWp}, {sW}, 4
    s_lshr_b32 {sCH}, {sWp}, 1
    s_and_b32 {sH}, {sWp}, 1
    s_lshl_b32 {sD}, s2, 1
    s_add_u32 {sD}, {sD}, {sCH}
    s_mul_i32 {sLC}, {sCH}, {CHS}
    s_add_u32 {sLC}, {sLC}, {LS}
    s_xor_b32 {sSC}, {sH}, 1
    s_lshl_b32 {sSC}, {sSC}, 12
    s_add_u32 {sSC}, {sSC}, {sLC}
    s_add_u32 {sSC}, {sSC}, {LP + 64 - LS}
    s_lshl_b32 s14, {sC}, 7
    s_lshl_b32 s15, {sH}, 6
    s_add_u32 s14, s14, s15
    s_lshl_b32 s15, {sJ}, 5
    s_lshl_b32 s11, {sCH}, 4
    s_add_u32 s15, s15, s11
    s_lshl_b32 s12, s14, 10
    s_lshl_b32 s13, s15, 1
    s_add_u32 s12, s12, s13
    v_and_b32 v{T}, 7, v1
    v_lshrrev_b32 v{T+1}, 3, v1
    v_lshlrev_b32 v{T+2}, 13, v{T+1}
    v_lshl_add_u32 v{T+2}, v{T}, 2, v{T+2}
    v_add_u32 v{T+2}, s12, v{T+2}
    v_add_u32 v{T+3}, 4096, v{T+2}""")
    for i in range(8):
        vm.op(f"global_load_dword v{XL+i}, v{T+2+(i>>2)}, {X_} offset:{(i&3)*1024}", "xl")
    k(f"""s_lshl_b32 s12, {sD}, 8
    s_lshl_b32 s13, {sH}, 7
    s_add_u32 s12, s12, s13
    v_lshl_add_u32 v{T+4}, v1, 1, s12
    s_lshl_b32 s12, {sD}, 1
    v_mov_b32 v{T+5}, s12
    v_mov_b32 v{vZ}, 0""")
    vm.op(f"global_load_ushort v{PA+6}, v{T+5}, {BLDT}", "par")
    for i, p in enumerate((SARE, SAIM, SBRE, SBIM, SCRE, SCIM)):
        vm.op(f"global_load_ushort v{PA+i}, v{T+4}, {p}", "par")
    def touch(d):
        k(f"""s_mov_b64 exec, 15
        s_lshl_b32 s12, {sR}, 17
        v_mov_b32 v{d}, s12
        s_lshl_b32 s12, {sDT}, 16
        v_mov_b32 v{d+1}, s12
        v_lshlrev_b32 v{d+2}, 21, v1
        v_add_u32 v{d+2}, {H_OFF}, v{d+2}""")
        k(f"v_lshrrev_b32 v{d+4}, 9, v{d+1}")
        vm.op(f"global_load_dword v{d+3}, v{d+4}, {ADS}", "tw")
        vm.op(f"global_load_dword v{d+4}, v{d+4}, {BDS}", "tw")
        vm.op(f"global_load_dword v{d+2}, v{d+2}, {WS} sc1", "tw")
        vm.op(f"global_load_dword v{d}, v{d}, {OUTP}", "tw")
        vm.op(f"global_load_dword v{d+5}, v{d+1}, {CRE}", "tw")
        vm.op(f"global_load_dword v{d+1}, v{d+1}, {CIM}", "tw")
        k("s_mov_b64 exec, -1")
    if TW == 1: touch(ACC)
    k("s_barrier")
    k(f"""s_lshl_b32 s12, s15, 12
    s_lshl_b32 s13, s14, 1
    s_add_u32 s12, s12, s13
    s_add_u32 s12, s12, {XT_OFF}
    v_lshlrev_b32 v{vXS}, 13, v{T}
    v_lshl_add_u32 v{vXS}, v{T+1}, 4, v{vXS}
    v_add_u32 v{vXS}, s12, v{vXS}
    v_add_u32 v{vXS+1}, 4096, v{vXS}
    s_lshl_b32 s12, {sJ}, 1
    s_add_u32 s12, s12, {sCH}
    s_lshl_b32 s12, s12, 4
    s_add_u32 s12, s12, {sC}
    s_lshl_b32 s12, s12, 1
    s_add_u32 s12, s12, {sH}
    s_lshl_b32 s12, s12, 2
    s_add_u32 s66, s12, {F1_OFF}
    s_lshl_b32 s12, {sW}, 2
    s_add_u32 s12, s12, {LPR}
    v_mov_b32 v{vPW}, s12
    v_xor_b32 v{vPP}, 4, v{vPW}
    v_lshl_add_u32 v{SW}, v1, 2, {sSC}
    v_lshl_add_u32 v{vSC}, v1, 4, {sSC}
    v_and_b32 v{T}, 15, v1
    v_lshrrev_b32 v{T+1}, 4, v1
    v_xor_b32 v{T+2}, v{T}, v{T+1}
    v_lshlrev_b32 v{T+2}, 4, v{T+2}
    v_lshl_add_u32 v{T+2}, v{T}, 8, v{T+2}
    v_add_u32 v{SR}, {sSC}, v{T+2}""")
    for r in range(1, 16): k(f"v_xor_b32 v{SW+r}, {16*r}, v{SW}")
    for s in range(1, 4): k(f"v_xor_b32 v{SR+s}, {64*s}, v{SR}")
    k(f"""s_add_u32 s12, {sLC}, 16
    v_lshlrev_b32 v{T+2}, 4, v{T+1}
    v_lshl_add_u32 v{DA}, v{T}, 6, v{T+2}
    v_add_u32 v{DA}, s12, v{DA}
    v_lshl_add_u32 v{T+3}, v{T}, 5, v{T+2}
    v_lshlrev_b32 v{T+4}, 8, v{T+1}
    v_lshl_add_u32 v{T+5}, v{T}, 4, v{T+4}
    v_cmp_gt_u32 vcc, 2, v{T+1}
    v_cndmask_b32 v{DA+1}, v{T+5}, v{T+3}, vcc
    v_add_u32 v{DA+1}, s12, v{DA+1}
    v_lshl_add_u32 v{DA+2}, v{T}, 3, v{T+4}
    v_add_u32 v{DA+2}, s12, v{DA+2}""")
    k(f"""s_lshl_b32 s12, {sH}, 9
    s_add_u32 s12, s12, {sLC}
    s_add_u32 s12, s12, {LP - LS + 26*4}
    v_lshlrev_b32 v{T+2}, 5, v{T+1}
    v_lshl_add_u32 v{VF}, v{T}, 2, s12
    v_sub_u32 v{VF}, v{VF}, v{T+2}
    s_mul_i32 s12, {sCH}, {XTS}
    s_add_u32 s67, s12, {LXT}
    s_lshl_b32 s13, {sH}, 8
    s_sub_u32 s12, s67, s13
    s_add_u32 s12, s12, {480 - 192}
    v_lshlrev_b32 v{T+2}, 4, v{T+1}
    v_lshl_add_u32 v{VG}, v{T}, 5, v{T+2}
    v_add_u32 v{VG}, s12, v{VG}
    s_lshl_b32 s12, {sD}, 12
    s_lshl_b32 s13, {sH}, 11
    s_add_u32 s68, s12, s13
    s_add_u32 s12, s68, {Y_OFF}
    v_and_b32 v{T+2}, 1, v{T+1}
    v_lshlrev_b32 v{T+2}, 9, v{T+2}
    v_lshl_add_u32 v{T+2}, v{T}, 5, v{T+2}
    v_lshrrev_b32 v{T+3}, 1, v{T+1}
    v_lshl_add_u32 v{T+2}, v{T+3}, 4, v{T+2}
    v_add_u32 v{vYA}, s12, v{T+2}
    s_lshr_b32 s12, s2, 3
    s_lshl_b32 s12, s12, 7
    s_add_u32 s12, s12, {F1_OFF}
    v_and_b32 v{T+2}, 31, v1
    v_lshl_add_u32 v{vFA}, v{T+2}, 2, s12""")
    for m in range(1, 8): k(f"v_add_u32 v{VF+m}, {1024*m}, v{VF}")
    k(f"""s_lshl_b32 s12, {sH}, 10
    s_sub_u32 s12, s12, 1
    v_lshl_add_u32 v{T}, v1, 2, s12
    v_cvt_f32_i32 v{T+1}, v{T}
    s_add_u32 s13, {sLC}, 16
    s_sub_u32 s12, s13, {0x4280*4}
    v_mov_b32 v{T+7}, s12
    v_lshl_add_u32 v{T+6}, v{T}, 2, s13
    s_cmp_eq_u32 {sH}, 0
    s_cselect_b64 vcc, -1, 0""")
    for it in range(4):
        for e in range(5):
            c = 256*it + e
            if c: k(f"v_add_f32 v{PKD+(e&1)}, {fl(float(c))}, v{T+1}")
            else: k(f"v_mov_b32 v{PKD}, v{T+1}")
            if e & 1 or e == 4:
                k(f"v_cvt_pk_bf16_f32 v{T+2}, v{PKD}, v{PKD+1}")
                e0 = e & ~1
                k(f"v_mad_u32_u16 v{IX+5*it+e0}, v{T+2}, 4, v{T+7}")
                if e & 1: k(f"v_mad_u32_u16 v{IX+5*it+e}, v{T+2}, 4, v{T+7} op_sel:[1,0,0,0]")
    for e in range(5):
        k(f"v_add_u32 v{T+2}, {4*e}, v{T+6}\nv_cndmask_b32 v{IX+e}, v{IX+e}, v{T+2}, vcc")
    vm.wait("xl")
    k("s_mov_b32 s12, 0x05040100\ns_mov_b32 s13, 0x07060302")
    for i in range(4):
        k(f"v_perm_b32 v{XO+i}, v{XL+2*i+1}, v{XL+2*i}, s12")
        k(f"v_perm_b32 v{XO+4+i}, v{XL+2*i+1}, v{XL+2*i}, s13")
    vm.op(f"global_store_dwordx4 v{vXS}, {vr(XO,4)}, {WS} sc1", "xs")
    vm.op(f"global_store_dwordx4 v{vXS+1}, {vr(XO+4,4)}, {WS} sc1", "xs")
    vm.op(f"global_load_dword v{vTG}, v{vZ}, {DBG} sc1", "tag")
    if LOC and LOCP == 2: census(k, T + 2, T + 3, 1)
    vm.wait("par")
    for i in range(7): k(f"v_lshlrev_b32 v{PA+i}, 16, v{PA+i}")
    k(f"""v_mul_f32 v{PA+6}, {fl(LOG2E)}, v{PA+6}
    v_exp_f32 v{PA+6}, v{PA+6}
    v_cvt_pk_bf16_f32 v{PA+6}, v{PA+6}, v{PA+6}
    v_lshlrev_b32 v{PA+6}, 16, v{PA+6}
    v_mul_f32 v{va}, v{PA+6}, v{PA}
    v_mul_f32 v{vth}, v{PA+6}, v{PA+1}
    v_mul_f32 v{va}, {fl(LOG2E)}, v{va}
    v_mul_f32 v{vth}, {fl(INV2PI)}, v{vth}
    v_mul_f32 v{PA+2}, v{PA+6}, v{PA+2}
    v_mul_f32 v{PA+3}, v{PA+6}, v{PA+3}""")
    cmul(k, U, U + 1, PA + 4, PA + 5, PA + 2, PA + 3)
    cexp(k, va, vth, fl(16.0), z16, z16 + 1, T, T + 1)
    cexp(k, va, vth, "1.0", Z + 2, Z + 3, T + 2, T + 3)
    cexp(k, va, vth, fl(256.0), TB + 2, TB + 3, T + 4, T + 5)
    npk = [0]
    def put(row, src, neg=False):
        p = PKD + (npk[0] & 3); npk[0] += 1
        k(f"v_cvt_pk_bf16_f32 v{p}, v{src}, {'-' if neg else ''}v{src+1}")
        k(f"ds_write_b32 v{SW+row}, v{p} offset:{256*row}")
    def get(dst):
        for s in range(4): k(f"ds_read_b128 {vr(dst+4*s,4)}, v{SR+s}")
    for m in range(16):
        cur = U + 2 * (m & 1)
        if m < 15: pcmul(k, U + 2 * ((m + 1) & 1), cur, z16)
        put(m, cur, True)
        r = m + 2
        if r < 16:
            if r % 2 == 0: pcmul(k, Z + 2*r, Z + r, Z + r)
            else: pcmul(k, Z + 2*r, Z + 2*r - 2, Z + 2)
    get(OPB)
    k(f"v_mov_b32 v{Z}, 1.0\nv_mov_b32 v{Z+1}, 0")
    tb = [(2,1,1),(3,2,1),(4,2,2),(6,3,3),(5,4,1),(8,4,4),(7,6,1)]
    for r in range(16):
        put(r, Z + 2*r)
        if r < 7: pcmul(k, TB + 2*tb[r][0], TB + 2*tb[r][1], TB + 2*tb[r][2])
    get(OPA)
    get_tag(k, vm, vTG, vZ)
    k(f"""v_mov_b32 v{T}, s66
    v_mov_b32 v{T+1}, {sTAG}
    s_waitcnt vmcnt(0)
    s_mov_b64 exec, 1
    global_store_dword v{T}, v{T+1}, {WS} sc1
    s_mov_b64 exec, -1""")
    if LOC and LOCP == 1: census(k, T + 2, T + 3, 1)
    if TW == 2: touch(ACC)
    stamp(k, 1)
    rows1 = [(1, 2*i) for i in range(8)] + [(2, 4*i) for i in range(4)] + [(3, 4*i) for i in range(4)]
    rows2 = [(4 + (i >> 1), 8 * (i & 1)) for i in range(9)]
    def vrows(rows):
        for r, (B, f) in enumerate(rows):
            if f == 0: put(r, TB + 2*B)
            else:
                d = U + 2 * (r & 1)
                pcmul(k, d, TB + 2*B, Z + 2*f); put(r, d)
    vrows(rows1)
    get(OPA + 16)
    k("s_waitcnt lgkmcnt(15)")
    for s in range(4):
        k(f"v_mfma_f32_16x16x32_bf16 {vr(KD,4)}, {vr(OPA+4*s,4)}, {vr(OPB+4*s,4)}, {'0' if s == 0 else vr(KD,4)}")
    vrows(rows2)
    get(OPA)
    k("s_waitcnt lgkmcnt(13)")
    for s in range(4):
        k(f"v_mfma_f32_16x16x32_bf16 {vr(KD+4,4)}, {vr(OPA+16+4*s,4)}, {vr(OPB+4*s,4)}, {'0' if s == 0 else vr(KD+4,4)}")
    k(f"ds_write_b128 v{vSC}, {vr(KD,4)}")
    k("s_waitcnt lgkmcnt(1)")
    for s in range(4):
        k(f"v_mfma_f32_16x16x32_bf16 {vr(KD+8,4)}, {vr(OPA+4*s,4)}, {vr(OPB+4*s,4)}, {'0' if s == 0 else vr(KD+8,4)}")
    k(f"ds_write_b128 v{vSC}, {vr(KD+4,4)} offset:1024")
    k(f"global_load_dword v{T+6}, v{vFA}, {WS} sc1")
    k(f"s_lshl_b32 s12, {sH}, 12\ns_add_u32 s12, s12, {sLC}\ns_add_u32 s12, s12, {LP+64-LS}\nv_lshl_add_u32 v{vSP}, v1, 4, s12")
    k(f"ds_write_b128 v{vSC}, {vr(KD+8,4)} offset:2048")
    prog_set(k, vPW, T, 1)
    prog_wait1(k, vPP, T, 1)
    stamp(k, 2)
    LA, LB_ = k.lab("FA"), k.lab("FB")
    k(f"""v_lshl_add_u32 v{T+4}, v1, 4, s68
    s_lshl_b32 s12, {sH}, 11
    s_add_u32 s12, s12, s67
    v_lshl_add_u32 v{T+5}, v1, 4, s12
    s_waitcnt vmcnt(0)
    v_cmp_ne_u32 s[70:71], {sTAG}, v{T+6}
    s_cmp_lg_u64 s[70:71], 0
    s_cbranch_scc1 {LA}
    global_load_dwordx4 {vr(XL,4)}, v{T+4}, {WS} sc1
    global_load_dwordx4 {vr(XL+4,4)}, v{T+4}, {WS} offset:1024 sc1
    s_branch {LB_}
    {LA}:
    global_load_dword v{T+6}, v{vFA}, {WS} sc1
    {LB_}:""")
    for i in range(3): k(f"ds_read_b128 {vr(OPA+4*i,4)}, v{vSP} offset:{1024*i}")
    for i in range(3):
        k(f"s_waitcnt lgkmcnt(2)")
        for r in range(4): k(f"v_add_f32 v{KD+4*i+r}, v{KD+4*i+r}, v{OPA+4*i+r}")
        if i < 2: k(f"ds_write_b128 v{DA+i}, {vr(KD+4*i,4)} offset:{1024*i}")
    k(f"""s_mov_b32 exec_hi, 1
    ds_write_b64 v{DA+2}, {vr(KD+8,2)} offset:2048
    s_mov_b32 exec_hi, 0
    ds_write_b64 v{DA+2}, {vr(KD+10,2)} offset:{2048+128}
    s_mov_b32 exec_hi, -1""")
    KV = Z; PO = OPB
    for it in range(4):
        for e in range(5): k(f"ds_read_b32 v{KV+5*it+e}, v{IX+5*it+e}")
        if it == 2: k("s_waitcnt lgkmcnt(10)")
    for it in range(4):
        k(f"s_waitcnt lgkmcnt({15 - 4*it})")
        for e in range(4): k(f"v_cvt_pk_bf16_f32 v{PO+4*it+e}, v{KV+5*it+e+1}, v{KV+5*it+e}")
        k(f"ds_write_b128 v{vSP}, {vr(PO+4*it,4)} offset:{1024*it}")
    L, D, E_ = k.lab("F1"), k.lab("F1D"), k.lab("F1E")
    k(f"""s_cmp_eq_u64 s[70:71], 0
    s_cbranch_scc1 {E_}
    s_mov_b32 s11, {SPIN}
    {L}:
    s_waitcnt vmcnt(0)
    v_cmp_ne_u32 vcc, {sTAG}, v{T+6}
    s_cbranch_vccz {D}
    s_sub_u32 s11, s11, 1
    s_cmp_eq_u32 s11, 0
    s_cbranch_scc1 {D}
    global_load_dword v{T+6}, v{vFA}, {WS} sc1
    s_branch {L}
    {D}:
    global_load_dwordx4 {vr(XL,4)}, v{T+4}, {WS} sc1
    global_load_dwordx4 {vr(XL+4,4)}, v{T+4}, {WS} offset:1024 sc1
    {E_}:""")
    k(f"""s_waitcnt vmcnt(1)
    ds_write_b128 v{T+5}, {vr(XL,4)} offset:512
    s_waitcnt vmcnt(0)
    ds_write_b128 v{T+5}, {vr(XL+4,4)} offset:1536
    s_waitcnt lgkmcnt(0)""")
    prog_set(k, vPW, T, 2)
    prog_wait1(k, vPP, T, 2)
    stamp(k, 3)
    k("s_setprio 0")
    ra.n = base
    FB = [ra(32, 4), ra(32, 4)]; GB = [ra(32, 4), ra(32, 4)]
    if TW == 3: touch(ra(8))
    def reads(kk):
        o = []
        F, G = FB[kk & 1], GB[kk & 1]
        for i in range(8):
            o.append(f"ds_read_b128 {vr(G+4*i,4)}, v{VG} offset:{512*i + 192 - 64*kk}")
            o.append(f"ds_read2_b32 {vr(F+4*i,2)}, v{VF+i} offset0:{32*kk+6} offset1:{32*kk+4}")
            o.append(f"ds_read2_b32 {vr(F+4*i+2,2)}, v{VF+i} offset0:{32*kk+2} offset1:{32*kk}")
        return o
    for l in reads(0): k(l)
    su = Buf()
    VP = ra(4); vLP = ra()
    dma_patterns(su, VP, T)
    c_setup(su, sWp)
    su(f"""v_mov_b32 v{vLP}, {LPR}
    s_cmp_eq_u32 {sH}, 0
    s_cselect_b32 s36, s68, s72
    s_cselect_b32 s37, s69, s73
    s_mov_b32 s38, 524288
    s_mov_b32 s39, 0x20000
    s_lshl_b32 s40, {sDT}, 16
    s_lshl_b32 s41, {sCH}, 8
    s_add_u32 s40, s40, s41
    s_lshl_b32 s41, {sWp}, 14""")
    def cA(sl, comp, q):
        return [f"s_add_u32 m0, s77, {sl*32768 + comp*16384 + q*1024}", f"s_add_u32 s15, s76, {q*4096 + sl*256}",
                f"buffer_load_dwordx4 v{VP+q}, s[{68+4*comp}:{71+4*comp}], s15 offen lds"]
    def cB(i):
        return [f"s_add_u32 m0, s41, {65536 + i*1024}", f"s_add_u32 s15, s40, {i*4096 + 512}",
                f"buffer_load_dwordx4 v{VP+(i&3)}, s[36:39], s15 offen lds"]
    for kk in range(4):
        k("s_waitcnt lgkmcnt(0)")
        nxt = reads(kk + 1) if kk < 3 else []
        F, G = FB[kk & 1], GB[kk & 1]
        c_ = 0
        for n in range(8):
            for m in range(8 - n):
                a = ACC + 4 * (m + n)
                z = kk == 0 and n == 0
                k(f"v_mfma_f32_16x16x32_bf16 {vr(a,4)}, {vr(F+4*m,4)}, {vr(G+4*n,4)}, {'0' if z else vr(a,4)}")
                if nxt: k(nxt.pop(0))
                su.take(k, 1)
                c_ += 1
    stamp(k, 4)
    prog_set(k, vPW, T, 3)
    prog_wait1(k, vPP, T, 3)
    RD = FB[0]; YO = FB[0] + 16
    L1, L2 = k.lab("RH"), k.lab("RE")
    k(f"s_cmp_lg_u32 {sH}, 0\ns_cbranch_scc1 {L1}")
    for h in range(2):
        keep, send = ACC + 16*h, ACC + 16*(1-h)
        for q in range(4): k(f"ds_write_b128 v{vSC}, {vr(send+4*q,4)} offset:{1024*q}")
        prog_set(k, vPW, T, 4)
        prog_wait1(k, vPP, T, 4)
        for q in range(4): k(f"ds_read_b128 {vr(RD+4*q,4)}, v{vSP} offset:{1024*q}")
        for q in range(4):
            k(f"s_waitcnt lgkmcnt({3-q})")
            for r in range(4): k(f"v_add_f32 v{RD+4*q+r}, v{RD+4*q+r}, v{keep+4*q+r}")
        if h == 0: k(f"s_branch {L2}\n{L1}:")
    k(f"{L2}:")
    for q in range(4):
        for r in range(2): k(f"v_cvt_pk_bf16_f32 v{YO+2*q+r}, v{RD+4*q+2*r}, v{RD+4*q+2*r+1}")
    for p in range(2):
        for r in range(2): k(f"v_permlane16_swap_b32 v{YO+4*p+r}, v{YO+4*p+2+r}")
    vm.q = []
    prog_set(k, vPW, T, 5)
    for p in range(2):
        vm.op(f"global_store_dwordx4 v{vYA}, {vr(YO+4*p,4)}, {WS} offset:{1024*p} sc1", "y")
    k(f"""s_lshl_b32 s12, {sH}, 9
    s_add_u32 s12, s12, {sD}
    s_lshl_b32 s12, s12, 2
    s_add_u32 s12, s12, {F3_OFF}
    v_mov_b32 v4, s12
    v_mov_b32 v5, {sTAG}""")
    prog_wait4(k, vLP, T + 4, 0, 6)
    stamp(k, 5)
    for q in range(4):
        for l in cA(1, 1, q): k(l)
    for l in cB(15): k(l)
    k(f"""s_waitcnt vmcnt(5)
    s_mov_b64 exec, 1
    global_store_dword v4, v5, {WS} sc1
    s_mov_b64 exec, -1""")
    k(f"v_mov_b32 v2, v{vPW}")
    stamp(k, 6)
    return ra.hi

def phase2(k):
    vm = VM(k)
    sRP, sKQ, sRT, sDP = "s60", "s61", "s62", "s63"
    vG, GL, vO, vRW, vRR, vYF, Y8, SA, XB, ACC, HF, CF = 3, 4, 8, 9, 10, 11, 12, 20, 28, 32, 64, 128
    T = ACC; X2 = ACC + 8; AD = ACC + 12; BD = ACC + 16; VC = ACC + 20; vH = ACC + 24
    vF2, vF2b, vF3, vYb = ACC + 28, ACC + 29, ACC + 30, ACC + 31
    k(f"""s_and_b32 {sKQ}, {sW}, 3
    s_lshr_b32 {sRP}, {sW}, 2
    s_and_b32 {sRT}, {sKQ}, 1
    s_lshr_b32 {sDP}, {sKQ}, 1""")
    k(f"""s_lshl_b32 s12, {sR}, 2
    s_lshl_b32 s13, {sRP}, 1
    s_add_u32 s64, s12, s13
    s_add_u32 s12, s64, {sRT}
    s_lshl_b32 s12, s12, 4
    s_lshl_b32 s13, {sDT}, 6
    s_lshl_b32 s14, {sDP}, 5
    s_add_u32 s13, s13, s14
    v_and_b32 v{T}, 15, v1
    v_lshrrev_b32 v{T+1}, 4, v1
    v_and_b32 v{T+2}, 1, v1
    v_bfe_u32 v{T+3}, v1, 1, 3
    v_lshl_add_u32 v{T+2}, v{T+2}, 3, v{T+3}
    v_add_u32 v{T+2}, s12, v{T+2}
    v_lshl_add_u32 v{T+3}, v{T+1}, 2, s13
    v_lshlrev_b32 v{T+4}, 1, v{T+3}
    v_lshl_add_u32 v{T+5}, v{T+2}, 10, v{T+4}
    v_lshlrev_b32 v{vO}, 1, v{T+5}""")
    for e in range(2):
        vm.op(f"global_load_dwordx2 {vr(X2+2*e,2)}, v{T+5}, {X_} offset:{32*e}", "ep")
        vm.op(f"global_load_dwordx2 {vr(AD+2*e,2)}, v{T+4}, {ADS} offset:{32*e}", "ep")
        vm.op(f"global_load_dwordx2 {vr(BD+2*e,2)}, v{T+4}, {BDS} offset:{32*e}", "ep")
    k(f"""v_and_b32 v{vYF}, 63, v{T+2}
    v_lshlrev_b32 v{vYF}, 1, v{vYF}
    v_lshlrev_b32 v{vYb}, 5, v{T+1}
    v_xor_b32 v{vYF}, v{vYF}, v{vYb}
    v_and_b32 v{vYb}, 63, v{T+3}
    v_lshl_add_u32 v{vYF}, v{vYb}, 7, v{vYF}
    v_add_u32 v{vYF}, {LXT}, v{vYF}
    v_lshrrev_b32 v{vF2}, 1, v{T+2}
    v_lshlrev_b32 v{vF2}, 4, v{vF2}
    v_add_u32 v{vF2}, {F2_OFF}, v{vF2}
    s_lshr_b32 s14, {sR}, 4
    s_lshl_b32 s14, s14, 11
    s_lshl_b32 s15, {sDT}, 8
    s_add_u32 s14, s14, s15
    s_add_u32 s14, s14, {F3_OFF}
    v_lshl_add_u32 v{vF3}, v1, 2, s14
    s_lshl_b32 s14, {sR}, 9
    s_add_u32 s14, s14, {F2_OFF + 8}
    v_and_b32 v{vF2b}, 31, v1
    v_lshl_add_u32 v{vF2b}, v{vF2b}, 4, s14
    s_cmp_eq_u32 {sW}, {PW}
    s_cselect_b64 vcc, -1, 0
    v_cndmask_b32 v{vF3}, v{vF3}, v{vF2b}, vcc
    v_lshrrev_b32 v{vYb}, 5, v1
    v_lshlrev_b32 v{vYb}, 1, v{vYb}
    v_xor_b32 v{vYb}, v1, v{vYb}
    v_and_b32 v{vYb}, 7, v{vYb}
    v_lshlrev_b32 v{vYb}, 4, v{vYb}
    v_lshrrev_b32 v{vF2b}, 3, v1
    v_lshl_add_u32 v{vYb}, v{vF2b}, 12, v{vYb}
    v_xor_b32 v{vF2b}, 64, v{vYb}
    s_lshl_b32 s68, {sDT}, 18
    s_lshl_b32 s14, {sR}, 7
    s_add_u32 s68, s68, s14
    s_lshl_b32 s14, s64, 15
    {"s_and_b32 s14, s14, 0xfffeffff" if opt("hack", 0) == 1 else ""}
    {"s_sub_u32 s14, s14, 0x200000" if opt("hack", 0) == 2 else ""}
    {"s_and_b32 s14, s14, 0x70000" if opt("hack", 0) == 3 else ""}
    {"s_sub_u32 s14, s14, 0x200000" if opt("hack", 0) == 3 else ""}
    s_lshl_b32 s13, {sKQ}, 13
    s_add_u32 s14, s14, s13
    s_add_u32 s14, s14, {H_OFF}
    v_lshl_add_u32 v{vH}, v1, 4, s14
    s_and_b32 s13, {ROT}, 3
    s_lshl_b32 s14, s13, 11
    v_xor_b32 v{vH}, s14, v{vH}
    s_lshl_b32 s13, s13, 6
    v_xor_b32 v{T+2}, v{T}, v{T+1}
    v_lshlrev_b32 v{T+2}, 4, v{T+2}
    v_lshl_add_u32 v{T+2}, v{T}, 8, v{T+2}
    s_lshl_b32 s12, {sKQ}, 15
    v_add_u32 v{VC}, s12, v{T+2}
    v_xor_b32 v{VC}, s13, v{VC}""")
    for q in range(1, 4): k(f"v_xor_b32 v{VC+q}, {64*q}, v{VC}")
    srd(k, 64, WS, 0x900000)
    for i in range(8): k(f"v_mov_b32 v{Y8+i}, 0")
    k(f"""s_lshl_b32 s12, {sRP}, 15
    s_lshl_b32 s13, {sKQ}, 11
    s_add_u32 s13, s13, s12
    v_lshl_add_u32 v{vRW}, v1, 4, s13
    s_lshl_b32 s13, {sKQ}, 13
    s_add_u32 s13, s13, s12
    v_lshl_add_u32 v{vRR}, v1, 4, s13
    v_mov_b32 v{T+7}, {LPR}""")
    L1, L2 = k.lab("RL"), k.lab("RL")
    FLS = f"s_mov_b64 exec, 1\nglobal_store_dwordx4 v2, v[4:7], {WS}{HST}"
    if LOC:
        L3 = k.lab("RL")
        FLS = f"""s_mov_b64 exec, 1
        s_cmp_lg_u32 s0, s1
        s_cbranch_scc1 {L3}
        global_store_dwordx4 v2, v[4:7], {WS}
        s_mov_b64 exec, -1
        s_branch {L2}
        {L3}:
        global_store_dwordx4 v2, v[4:7], {WS} sc1"""
    k(f"""s_cmp_lg_u32 {sRP}, 0
    s_cbranch_scc1 {L1}
    s_waitcnt vmcnt(6)
    {FLS}
    s_mov_b64 exec, -1
    s_branch {L2}
    {L1}:
    v_mov_b32 v{T+6}, 6
    s_waitcnt vmcnt(7)
    ds_write_b32 v2, v{T+6}""")
    prog_wait4(k, T + 7, T, 0, 7)
    k(f"{L2}:")
    stamp(k, 7)
    prog_wait4(k, T + 7, T, 16, 6)
    stamp(k, 8)
    def cf(ks, dt): return CF + 4 * (4 * ks + dt)
    gl = f"global_load_dword v{GL}, v{vF3}, {WS} sc1"
    L = k.lab("NP")
    k(f"s_cmp_lt_u32 {sW}, 6\ns_cbranch_scc1 {L}\n{gl}\n{L}:")
    for ks in range(8):
        for dt in range(4):
            k(f"ds_read_b128 {vr(cf(ks,dt),4)}, v{VC+(ks>>1)} offset:{(ks&1)*16384 + dt*4096}")
    k("s_waitcnt vmcnt(0)")
    for w in range(4):
        k(f"""v_lshlrev_b32 v{T}, 16, v{X2+w}
        v_and_b32 v{T+1}, 0xffff0000, v{X2+w}
        v_lshlrev_b32 v{T+2}, 16, v{AD+w}
        v_and_b32 v{T+3}, 0xffff0000, v{AD+w}
        v_lshlrev_b32 v{T+4}, 16, v{BD+w}
        v_and_b32 v{T+5}, 0xffff0000, v{BD+w}
        v_pk_mul_f32 {vr(T+2,2)}, {vr(T,2)}, {vr(T+2,2)}
        v_pk_mul_f32 {vr(T+4,2)}, {vr(T,2)}, {vr(T+4,2)}
        v_cvt_pk_bf16_f32 v{T+2}, v{T+2}, v{T+3}
        v_cvt_pk_bf16_f32 v{XB+w}, v{T+4}, v{T+5}
        v_lshlrev_b32 v{SA+2*w}, 16, v{T+2}
        v_and_b32 v{SA+2*w+1}, 0xffff0000, v{T+2}""")
    for q in range(4): k(f"v_xor_b32 v{X2+2*q}, {2048*q}, v{vH}\nv_xor_b32 v{X2+2*q+1}, {2048*q+32768}, v{vH}")
    L, D, D2 = k.lab("SP"), k.lab("SD"), k.lab("SD")
    k(f"""s_cmp_lt_u32 {sW}, 6
    s_cbranch_scc1 {D2}
    s_mov_b32 s11, {SPIN}
    {L}:
    s_waitcnt vmcnt(0)
    v_cmp_ne_u32 vcc, {sTAG}, v{GL}
    s_and_b64 exec, exec, vcc
    s_cbranch_scc0 {D}
    s_sub_u32 s11, s11, 1
    s_cmp_eq_u32 s11, 0
    s_cbranch_scc1 {D}
    {"s_sleep %d" % PSL if PSL else ""}
    {gl}
    s_branch {L}
    {D}:
    s_mov_b64 exec, -1
    s_cmp_eq_u32 {sW}, {PW}
    s_cbranch_scc1 {D2}""")
    for i in range(8):
        k(f"""s_mov_b32 m0, {LXT + i*1024}
        s_add_u32 s15, s68, {Y_OFF + i*32768}
        buffer_load_dwordx4 v{vF2b if i & 1 else vYb}, s[64:67], s15 offen sc1 lds""")
    k(f"""s_waitcnt vmcnt(0)
    {D2}:
    s_waitcnt lgkmcnt(0)
    s_setprio 0
    s_barrier""")
    vm.q = []
    def hl(ks):
        for rt in range(2):
            vm.op(f"global_load_dwordx4 {vr(HF+8*ks+4*rt,4)}, v{X2+2*(ks>>1)+rt}, {CRE if opt('hack', 0) == 3 else WS} offset:{(ks&1)*1024}{HSC}", f"h{ks}")
    hl(0)
    vm.op(f"global_load_dwordx2 {vr(GL,2)}, v{vF2}, {WS} sc1", "g")
    hl(1)
    for ks in range(2, 8): hl(ks)
    stamp(k, 9)
    for i in range(8): k(f"ds_read_u16_d16_hi v{Y8+i}, v{vYF} offset:{(16*(i>>2) + (i&3))*128}")
    def prepG():
        k(f"""v_and_b32 v2, 2, v1
        s_waitcnt lgkmcnt(0)
        v_cmp_eq_u32 vcc, 0, v2
        v_cndmask_b32 v{vG}, v{GL+1}, v{GL}, vcc
        v_sub_f32 v2, 1.0, v{vG}
        v_cvt_pk_bf16_f32 v2, v2, v2
        v_and_b32 v2, 0xffff0000, v2""")
    def prepB(w):
        k(f"""v_lshlrev_b32 v4, 16, v{XB+w}
        v_and_b32 v5, 0xffff0000, v{XB+w}
        v_pk_add_f32 v[4:5], v[4:5], {vr(Y8+2*w,2)}
        v_cvt_pk_bf16_f32 v4, v4, v5
        v_and_b32 v5, 0xffff0000, v4
        v_lshlrev_b32 v4, 16, v4
        v_mul_f32 v4, v2, v4
        v_mul_f32 v5, v2, v5
        v_cvt_pk_bf16_f32 v4, v4, v5
        v_lshlrev_b32 v{Y8+2*w}, 16, v4
        v_and_b32 v{Y8+2*w+1}, 0xffff0000, v4""")
    for ks in range(8):
        vm.wait(f"h{ks}")
        for dt in range(4):
            for rt in range(2):
                a = ACC + 16 * rt + 4 * dt
                k(f"v_mfma_f32_16x16x32_bf16 {vr(a,4)}, {vr(cf(ks,dt),4)}, {vr(HF+8*ks+4*rt,4)}, {'0' if ks == 0 else vr(a,4)}")
        if ks == 7 and opt("wb", 0):
            LW = k.lab("WB")
            k(f"""s_and_b32 s12, {sI}, {opt("wbm", 29)}
            s_or_b32 s12, s12, {sW}
            s_cmp_lg_u32 s12, 0
            s_cbranch_scc1 {LW}
            buffer_wbl2 sc1
            {LW}:""")
        if ks == 1: prepG()
        if 2 <= ks < 6: prepB(ks - 2)
    stamp(k, 10)
    U = HF; TBv = HF + 32
    for dst in range(4):
        for e in range(2):
            a = ACC + 16 * (dst & 1) + 4 * (2 * (dst >> 1) + e)
            k(f"ds_write_b128 v{vRW}, {vr(a,4)} offset:{dst*8192 + e*1024}")
    k("s_waitcnt lgkmcnt(0)\ns_barrier")
    for src in range(4):
        for e in range(2):
            k(f"ds_read_b128 {vr(U+8*src+4*e,4)}, v{vRR} offset:{src*2048 + e*1024}")
    for src in range(4):
        k(f"s_waitcnt lgkmcnt({6-2*src})")
        for i in range(4): k(f"v_pk_add_f32 {vr(SA+2*i,2)}, {vr(SA+2*i,2)}, {vr(U+8*src+2*i,2)}")
    for e in range(2):
        for i in range(4*e, 4*e + 4): k(f"v_fma_f32 v{TBv+i}, v{vG}, v{SA+i}, v{Y8+i}")
        k(f"global_store_dwordx4 v{vO}, {vr(TBv+4*e,4)}, {OUTP} offset:{64*e}{OST}")
    stamp(k, 11)
    stamps_out(k)

import re
def unpk(L):
    o = []; on = False
    for l in L:
        t = l.strip()
        if t.startswith("; REG"):
            on = t.split()[2] in UNPK; continue
        m = re.match(r"v_pk_(fma|mul|add)_f32 (.*)", t)
        if not (m and on): o.append(l); continue
        op = m.group(1); rest = m.group(2)
        regs = [int(x) for x in re.findall(r"v\[(\d+):\d+\]", rest)]
        n = len(regs) - 1
        assert n == (3 if op == "fma" else 2), t
        def mod(name, dflt):
            mm = re.search(name + r":\[([\d,]+)\]", rest)
            return [int(x) for x in mm.group(1).split(",")] if mm else [dflt] * n
        sl, shi, nl, nh = mod("op_sel", 0), mod("op_sel_hi", 1), mod("neg_lo", 0), mod("neg_hi", 0)
        d = regs[0]; two = []
        for dd, se, ng in ((d, sl, nl), (d + 1, shi, nh)):
            src = [regs[1 + i] + se[i] for i in range(n)]
            if op == "fma" and src[2] == dd and not any(ng): ins = f"v_fmac_f32 v{dd}, v{src[0]}, v{src[1]}"
            else: ins = f"v_{op}_f32 v{dd}, " + ", ".join(("-" if ng[i] else "") + f"v{src[i]}" for i in range(n))
            two.append((ins, src))
        if d in two[1][1]:
            assert d + 1 not in two[0][1], t
            two.reverse()
        o += ["    " + x[0] for x in two]
    return o
UNPK = opt_s("unpk", "")
def finish(k):
    k(f"{k.label}_END:")
    k.L = unpk(k.L)
    k.L, n = haz.fix(k.L)
    print(k.label, "nops added", n, "vgpr", k.vgpr, "lines", len(k.L))

YF = opt("yf", 12)
HSC = " sc1" if opt("hsc", 0) else ""
PSL = opt("psl", 0)
PW = opt("pw", 7)
ROT = {0: "0", 1: sDT, 2: sW}[opt("rot", 1)]
k1 = K(NAME + "_kernel", 256, 512, LDS_TOTAL)
prologue(k1)
lds_zero_and_nonce(k1)
k1(f"s_cmp_ge_u32 {sW}, 4\ns_cbranch_scc1 {k1.label}_S4")
h5 = s5(k1)
k1(f"{k1.label}_S4:\n; REG E")
h4 = s4(k1)
print(h5, h4)
k1(f"{k1.label}_P2:\n; REG F")
phase2(k1)
finish(k1)
emit([k1], OUT, single=True)
```

```python
import sys, math
from lib import *
import haz
FUSED = True
def opt(n, d):
    for a in sys.argv:
        if a.startswith(f"--{n}="): return int(a.split("=")[1])
    return d
def opt_s(n, d):
    for a in sys.argv:
        if a.startswith(f"--{n}="): return a.split("=")[1]
    return d
MAP = opt("map", 1); HST = {0: "", 1: " sc1", 2: " nt", 3: " sc0"}[opt("hst", 1)]
LOCP = opt("locp", 0); HFS = {0: "", 2: " nt"}[opt("hfs", 0)]; OST = {0: "", 1: " sc1", 2: " nt", 3: " sc0 sc1", 4: " sc1 nt", 5: " sc0 sc1 nt"}[opt("ost", 0)]
L2C = opt("loc2", 0); LOC = opt("loc", 0); TW = opt("tw", 2); PFS = opt("pfs", 1); HTS = opt("hts", 1); HTG = opt("htg", 128); CST = opt("cst", 3)
SH1 = opt("sh1", 4); SH2 = opt("sh2", 8); SH3 = opt("sh3", 6)
STAMPS = "--stamps" in sys.argv
OUT = [a for a in sys.argv[1:] if a.endswith(".s")][0]

XT_OFF, H_OFF, Y_OFF, E_OFF = 0, 0x200000, 0x600000, 0x800000
F1_OFF, F2_OFF, F3_OFF, ST_OFF = 0x820000, 0x821000, 0x825000, 0x830000
LB, LX, LS = 0, 65536, 131072
LKC, LP, CHS = LS, LS + 2752, 11008
LPR = LS + 22016
LXT, XTS = LS + 22048, 4608
LH = LS + 31264
LDS_TOTAL = LH + 1024
LOG2E = 1.4426950408889634
INV2PI = 0.15915494309189535
import struct
def fl(x): return "0x%08x" % struct.unpack("<I", struct.pack("<f", x))[0]
SPIN = 1 << 20

X_, LRE, LIM, BRE, BIM, CRE, CIM, ALDT = [f"s[{16+2*i}:{17+2*i}]" for i in range(8)]
ADS, _BU, SARE, SAIM, SBRE, SBIM, SCRE, SCIM = [f"s[{32+2*i}:{33+2*i}]" for i in range(8)]
BLDT, BDS, GW, OUTP, DBG, WS = [f"s[{48+2*i}:{49+2*i}]" for i in range(6)]
sW, sXCD, sI, sC, sJ, sR, sDT = "s3", "s4", "s5", "s6", "s7", "s8", "s9"
sTAG = "s10"

class RA:
    def __init__(s, start=2, end=256): s.n = start; s.end = end; s.hi = start
    def __call__(s, n=1, al=1):
        s.n = (s.n + al - 1) // al * al
        r = s.n; s.n += n; s.hi = max(s.hi, s.n); assert s.n <= s.end, "out of vgprs"
        return r
def vr(a, n): return f"v[{a}:{a+n-1}]" if n > 1 else f"v{a}"

class VM:
    def __init__(s, k): s.k = k; s.q = []
    def op(s, line, tag=None): s.k(line); s.q.append(tag)
    def wait(s, tag):
        idx = max(i for i, t in enumerate(s.q) if t == tag)
        n = len(s.q) - 1 - idx
        n = min(n, 63)
        s.k(f"s_waitcnt vmcnt({n})")
    def all(s): s.k("s_waitcnt vmcnt(0)")

def sreg(i): return 98 if i == 0 else (100 if i == 11 else 76 + 2*i)
def stamp(k, i):
    if STAMPS: k(f"s_memrealtime s[{sreg(i)}:{sreg(i)+1}]")
def stamps_out(k):
    if not STAMPS: return
    k(f"""s_lshl_b32 s11, {sW}, 8
    s_add_u32 s11, s11, s2
    s_lshl_b32 s11, s11, 6
    s_add_u32 s11, s11, {ST_OFF}
    v_mov_b32 v8, s11
    s_mov_b64 exec, 1
    s_waitcnt lgkmcnt(0)""")
    for i in range(12):
        k(f"v_mov_b32 v9, s{sreg(i)}\nglobal_store_dword v8, v9, {WS} offset:{4*i}")

def srd(k, s, ptr, size):
    a = int(ptr[2:ptr.index(":")])
    k(f"s_mov_b32 s{s}, s{a}\ns_and_b32 s{s+1}, s{a+1}, 0xffff\ns_mov_b32 s{s+2}, {size}\ns_mov_b32 s{s+3}, 0x20000")

def prologue(k, first=True):
    k(f"""s_cmp_ge_u32 s2, 256
    s_cbranch_scc1 {k.label}_END
    s_load_dwordx16 s[16:31], s[0:1], 0
    s_load_dwordx16 s[32:47], s[0:1], 64
    s_load_dwordx8 s[48:55], s[0:1], 128
    s_load_dwordx4 s[56:59], s[0:1], 160
    s_memrealtime s[98:99]
    s_getpc_b64 s[12:13]
    {k.label}_PC:
    v_lshrrev_b32 v2, 6, v0
    v_and_b32 v1, 63, v0
    v_readfirstlane_b32 {sW}, v2
    s_and_b32 {sXCD}, s2, 7
    s_lshr_b32 {sI}, s2, 3
    """)
    L = k.lab("NPF")
    k(f"""s_cmp_lg_u32 {sW}, {k.block//64-1}
    s_cbranch_scc1 {L}
    s_and_b32 s11, {sI}, 3
    s_lshl_b32 s11, s11, 13
    v_lshlrev_b32 v2, 7, v1
    v_add_u32 v2, s11, v2
    v_min_u32 v2, {k.label}_END-{k.label}_PC, v2
    global_load_dword v3, v2, s[12:13]
    {L}:
    """)
    if MAP == 0: k(f"""s_and_b32 s11, {sXCD}, 3
    s_and_b32 s14, {sI}, 3
    s_lshl_b32 {sC}, s11, 2
    s_add_u32 {sC}, {sC}, s14
    s_lshr_b32 s15, {sXCD}, 2
    s_lshr_b32 {sDT}, {sI}, 2
    s_lshl_b32 {sJ}, s15, 3
    s_add_u32 {sJ}, {sJ}, {sDT}
    s_lshl_b32 {sR}, s11, 3
    s_lshl_b32 s15, s15, 2
    s_add_u32 {sR}, {sR}, s15
    s_add_u32 {sR}, {sR}, s14
    """)
    else: k(f"""s_and_b32 s11, {sI}, 1
    s_lshl_b32 {sC}, {sXCD}, 1
    s_add_u32 {sC}, {sC}, s11
    s_lshr_b32 {sJ}, {sI}, 1
    s_lshr_b32 {sDT}, {sI}, 2
    s_and_b32 s14, {sI}, 3
    s_lshl_b32 {sR}, {sXCD}, 2
    s_add_u32 {sR}, {sR}, s14
    """)

def census(k, a, b, sh=0):
    L = k.lab("NA")
    k(f"""s_cmp_lg_u32 {sW}, {opt("locw", 5)}
    s_cbranch_scc1 {L}
    v_mov_b32 v{a}, s0
    v_mov_b32 v{b}, s1
    {f"v_lshrrev_b32 v{a}, 5, v{a}" if sh else ""}
    s_mov_b64 exec, 1
    global_atomic_add v{b}, v{a}, {DBG}{" sc1" if LOC == 2 else ""}
    s_mov_b64 exec, -1
    {L}:""")

def lds_zero_and_nonce(k):
    L = k.lab("NN")
    k(f"""s_lshl_b32 s11, {sW}, 10
    s_add_u32 s14, s11, {LS}
    s_add_u32 s15, s11, {LS + CHS - 3072}
    s_cmp_lt_u32 {sW}, 3
    s_cselect_b32 s14, s14, s15
    s_cmp_eq_u32 {sW}, 6
    s_cselect_b32 s14, {LPR}, s14
    s_cmp_eq_u32 {sW}, 7
    s_cselect_b32 s14, {LXT + XTS}, s14
    v_lshl_add_u32 v2, v1, 4, s14
    v_mov_b32 v4, 0
    v_mov_b32 v5, 0
    v_mov_b32 v6, 0
    v_mov_b32 v7, 0
    ds_write_b128 v2, v[4:7]
    s_waitcnt lgkmcnt(0)
    s_or_b32 s11, s2, {sW}
    s_cmp_lg_u32 s11, 0
    s_cbranch_scc1 {L}
    s_or_b32 s11, s98, 1
    v_mov_b32 v5, s11
    s_mov_b64 exec, 1
    global_store_dword v4, v5, {DBG} sc1
    s_mov_b64 exec, -1
    {L}:""")
    if LOC:
        L = k.lab("NA")
        k(f"""s_getreg_b32 s0, hwreg(HW_REG_XCC_ID, 0, 4)
        s_mul_i32 s1, s0, s0
        s_lshl_b32 s1, s1, 9
        s_add_u32 s0, s0, s1
        s_lshl_b32 s0, s0, 6
        s_add_u32 s0, s0, 1
        s_lshl_b32 s1, {sXCD}, 4
        s_add_u32 s1, s1, 128
        """)
        if LOCP == 0: census(k, 5, 6)
        k(f"""        s_lshl_b32 s0, s0, 5""")

def get_tag(k, vm, vt, vz):
    L, D = k.lab("TG"), k.lab("TD")
    vm.wait("tag")
    k(f"""v_readfirstlane_b32 {sTAG}, v{vt}
    s_cmp_lg_u32 {sTAG}, 0
    s_cbranch_scc1 {D}
    s_mov_b32 s11, {SPIN}
    {L}:
    global_load_dword v{vt}, v{vz}, {DBG} sc1
    s_waitcnt vmcnt(0)
    v_readfirstlane_b32 {sTAG}, v{vt}
    s_sub_u32 s11, s11, 1
    s_cmp_eq_u32 s11, 0
    s_cbranch_scc1 {D}
    s_cmp_eq_u32 {sTAG}, 0
    s_cbranch_scc1 {L}
    {D}:""")

def prog_set(k, vaddr, vtmp, val):
    k(f"v_mov_b32 v{vtmp}, {val}\nds_write_b32 v{vaddr}, v{vtmp}")
def prog_wait4(k, vz, vt4, off, val):
    L, D = k.lab("PW"), k.lab("PD")
    k(f"""s_mov_b32 s11, {SPIN}
    {L}:
    ds_read_b128 {vr(vt4,4)}, v{vz} offset:{off}
    s_waitcnt lgkmcnt(0)
    v_min3_u32 v{vt4}, v{vt4}, v{vt4+1}, v{vt4+2}
    v_min_u32 v{vt4}, v{vt4}, v{vt4+3}
    s_sub_u32 s11, s11, 1
    v_readfirstlane_b32 s14, v{vt4}
    s_cmp_eq_u32 s11, 0
    s_cbranch_scc1 {D}
    s_cmp_lt_u32 s14, {val}
    s_cbranch_scc1 {L}
    {D}:""")
def prog_wait1(k, vaddr, vt, val):
    L, D = k.lab("PW"), k.lab("PD")
    k(f"""s_mov_b32 s11, {SPIN}
    {L}:
    ds_read_b32 v{vt}, v{vaddr}
    s_waitcnt lgkmcnt(0)
    s_sub_u32 s11, s11, 1
    v_readfirstlane_b32 s14, v{vt}
    s_cmp_eq_u32 s11, 0
    s_cbranch_scc1 {D}
    s_cmp_lt_u32 s14, {val}
    s_cbranch_scc1 {L}
    {D}:""")

def cexp(k, va, vth, n, dre, dim, t0, t1):
    k(f"""v_mul_f32 v{t0}, {n}, v{va}
    v_mul_f32 v{t1}, {n}, v{vth}
    v_exp_f32 v{t0}, v{t0}
    v_fract_f32 v{t1}, v{t1}
    v_cos_f32 v{dre}, v{t1}
    v_sin_f32 v{dim}, v{t1}
    v_mul_f32 v{dre}, v{dre}, v{t0}
    v_mul_f32 v{dim}, v{dim}, v{t0}""")
def cmul(k, dr, di, ar, ai, br, bi):
    k(f"""v_mul_f32 v{dr}, v{ar}, v{br}
    v_mul_f32 v{di}, v{ar}, v{bi}
    v_fma_f32 v{dr}, -v{ai}, v{bi}, v{dr}
    v_fmac_f32 v{di}, v{ai}, v{br}""")
def cfma(k, dr, di, ar, ai, br, bi):
    k(f"""v_fmac_f32 v{dr}, v{ar}, v{br}
    v_fmac_f32 v{di}, v{ar}, v{bi}
    v_fma_f32 v{dr}, -v{ai}, v{bi}, v{dr}
    v_fmac_f32 v{di}, v{ai}, v{br}""")

def dma_patterns(k, VP, t):
    k(f"""v_lshrrev_b32 v{t}, 4, v1
    v_and_b32 v{VP}, 15, v1
    v_xor_b32 v{VP}, v{VP}, v{t}
    v_lshlrev_b32 v{VP}, 4, v{VP}
    v_lshl_add_u32 v{VP}, v{t}, 10, v{VP}""")
    for q in range(1, 4): k(f"v_xor_b32 v{VP+q}, {64*q}, v{VP}")

def c_dma(k, vm, VP, half, wsg, cb=None):
    for sl in (2*half, 2*half+1):
        for comp in range(2):
            for q in range(4):
                k(f"s_add_u32 m0, s77, {sl*32768 + comp*16384 + q*1024}")
                k(f"s_add_u32 s15, s76, {q*4096 + sl*256}")
                vm.op(f"buffer_load_dwordx4 v{VP+q}, s[{68+4*comp}:{71+4*comp}], s15 offen lds", f"C{half}")
                if cb: cb()
def c_setup(k, wsg):
    srd(k, 68, CRE, 524288); srd(k, 72, CIM, 524288)
    k(f"""s_lshl_b32 s76, {sDT}, 16
    s_lshl_b32 s77, {wsg}, 14
    s_add_u32 s76, s76, s77
    s_lshl_b32 s77, {wsg}, 12""")

def pcmul(k, d, a, b):
    k(f"v_pk_mul_f32 {vr(d,2)}, {vr(a,2)}, {vr(b,2)} op_sel:[0,0] op_sel_hi:[0,1]")
    k(f"v_pk_fma_f32 {vr(d,2)}, {vr(a,2)}, {vr(b,2)}, {vr(d,2)} op_sel:[1,1,0] op_sel_hi:[1,0,1] neg_lo:[1,0,0]")


def spec_wait4(k, vz, vt4, off, val, reads):
    L, D = k.lab("SW"), k.lab("SD")
    k(f"s_mov_b32 s11, {SPIN}\n{L}:\nds_read_b128 {vr(vt4,4)}, v{vz} offset:{off}")
    for r in reads: k(r)
    k(f"""s_waitcnt lgkmcnt({min(len(reads), 15)})
    v_min3_u32 v{vt4}, v{vt4}, v{vt4+1}, v{vt4+2}
    v_min_u32 v{vt4}, v{vt4}, v{vt4+3}
    s_sub_u32 s11, s11, 1
    v_readfirstlane_b32 s14, v{vt4}
    s_cmp_eq_u32 s11, 0
    s_cbranch_scc1 {D}
    s_cmp_lt_u32 s14, {val}
    s_cbranch_scc1 {L}
    {D}:""")
class Buf:
    def __init__(s): s.L = []
    def __call__(s, t):
        for l in t.strip("\n").split("\n"):
            if l.strip(): s.L.append(l.strip())
    def take(s, k, n):
        for _ in range(min(n, len(s.L))): k(s.L.pop(0))
def pk_cfma_b(k, dR, dI, a, sR, sI):
    k(f"v_pk_fma_f32 {vr(dR,2)}, {vr(a,2)}, {vr(sR,2)}, {vr(dR,2)} op_sel:[0,0,0] op_sel_hi:[0,1,1]")
    k(f"v_pk_fma_f32 {vr(dI,2)}, {vr(a,2)}, {vr(sI,2)}, {vr(dI,2)} op_sel:[0,0,0] op_sel_hi:[0,1,1]")
    k(f"v_pk_fma_f32 {vr(dR,2)}, {vr(a,2)}, {vr(sI,2)}, {vr(dR,2)} op_sel:[1,0,0] op_sel_hi:[1,1,1] neg_lo:[1,0,0] neg_hi:[1,0,0]")
    k(f"v_pk_fma_f32 {vr(dI,2)}, {vr(a,2)}, {vr(sR,2)}, {vr(dI,2)} op_sel:[1,0,0] op_sel_hi:[1,1,1]")
def pcfma(k, d, a, b):
    k(f"v_pk_fma_f32 {vr(d,2)}, {vr(a,2)}, {vr(b,2)}, {vr(d,2)} op_sel:[0,0,0] op_sel_hi:[0,1,1]")
    k(f"v_pk_fma_f32 {vr(d,2)}, {vr(a,2)}, {vr(b,2)}, {vr(d,2)} op_sel:[1,1,0] op_sel_hi:[1,0,1] neg_lo:[1,0,0]")

def s5(k):
    ra = RA(8); vm = VM(k)
    MS = 18
    VP = ra(4); VPX = ra(4); VA = ra(8); VX = ra(8)
    T = ra(8, 4); vPR = ra(); vPW = ra(); vZ = ra(); vTG = ra()
    pLre, pLim, pDt, va, vth, vS, vG, vXR = [ra() for _ in range(8)]
    L1 = ra(2, 2); L8 = ra(2, 2); L16 = ra(2, 2); C2 = ra(2, 2); SR = ra(2, 2); SI = ra(2, 2); LSR = ra(2, 2); LSI = ra(2, 2); H = ra(2, 2)
    Q = ra(6, 2)
    GX = ra(8, 4); GWv = ra(8, 4)
    ACR = ra(16, 4); ACI = ra(16, 4)
    FR = ra(24, 4)
    EX = ra(16, 4)
    EG = ra(32, 4); XR = EG
    RT = ra(16, 4)
    Wt = ra(4, 2)
    vGA = ra(); vEA = ra(); vPF = ra(); vHW = ra(); vHR = ra(); vHT = ra()
    k("; REG A")
    srd(k, 60, X_, 2097152)
    k(f"""s_and_b32 s11, {sW}, 1
    s_cmp_eq_u32 s11, 0
    s_cselect_b32 s64, s22, s24
    s_cselect_b32 s65, s23, s25
    s_cselect_b32 s68, s26, s28
    s_cselect_b32 s69, s27, s29
    s_and_b32 s65, s65, 0xffff
    s_mov_b32 s66, 524288
    s_mov_b32 s67, 0x20000""")
    pfs = f"""s_and_b32 s69, s69, 0xffff
    s_mov_b32 s70, 524288
    s_mov_b32 s71, 0x20000
    s_lshl_b32 s45, {sI}, 1
    s_lshr_b32 s46, {sW}, 1
    s_add_u32 s45, s45, s46
    s_lshl_b32 s45, s45, 13
    v_lshlrev_b32 v{vPF}, 7, v1"""
    if PFS == -2:
        k(pfs); pfs = ""
        vm.op(f"buffer_load_dword v{vPF}, v{vPF}, s[68:71], s45 offen", "pf")
    dma_patterns(k, VP, T)
    k(f"""v_and_b32 v{T}, 31, v1
    s_lshl_b32 s14, {sJ}, 6
    v_lshl_add_u32 v{T+1}, v{T}, 1, s14
    v_lshrrev_b32 v{T+2}, 5, v1
    s_lshl_b32 s14, {sC}, 7
    s_lshl_b32 s15, {sW}, 5
    s_add_u32 s14, s14, s15
    s_lshl_b32 s36, s14, 10
    s_lshl_b32 s15, {sJ}, 11
    s_add_u32 s15, s15, s36
    v_lshlrev_b32 v{T+3}, 5, v{T}
    v_lshl_add_u32 v{T+4}, v{T+2}, 10, v{T+3}
    v_add_u32 v{T+4}, s15, v{T+4}
    v_mov_b32 v{vZ}, 0""")
    if LOC: k(f"v_writelane_b32 v{vZ}, s1, 1")
    vm.op(f"global_load_ushort v{pDt}, v{T+1}, {ALDT}", "par")
    vm.op(f"global_load_ushort v{pLre}, v{T+1}, {LRE}", "par")
    vm.op(f"global_load_ushort v{pLim}, v{T+1}, {LIM}", "par")
    k(f"""s_add_u32 s11, {sC}, {sJ}
    s_and_b32 s11, s11, 3
    s_lshl_b32 s37, s11, 8
    s_add_u32 s38, s37, 256
    s_and_b32 s38, s38, 1023
    s_add_u32 s39, s37, 512
    s_and_b32 s39, s39, 1023
    s_add_u32 s40, s37, 768
    s_and_b32 s40, s40, 1023
    s_lshr_b32 s11, {sW}, 1
    s_lshl_b32 s41, {sJ}, 15
    s_lshl_b32 s14, s11, 14
    s_add_u32 s41, s41, s14
    s_lshl_b32 s42, s11, 12
    s_and_b32 s11, {sW}, 1
    s_lshl_b32 s11, s11, 13
    s_add_u32 s42, s42, s11
    s_lshl_b32 s43, {sW}, 14
    s_add_u32 s43, s43, {LX}
    v_lshrrev_b32 v{T+5}, 4, v1
    v_and_b32 v{T+6}, 1, v{T+5}
    v_lshlrev_b32 v{T+6}, 3, v{T+6}
    v_add_u32 v{T+6}, v{T+6}, v{T+2}
    v_sub_u32 v{T+6}, v{T+6}, v{T+5}
    v_lshlrev_b32 v{T+6}, 10, v{T+6}""")
    for q in range(4): k(f"v_add_u32 v{VPX+q}, v{VP+q}, v{T+6}")
    sh = Buf()
    def dB(slot, qs=range(4), n=0):
        for q in qs:
            k(f"s_add_u32 s14, s41, s{37+slot}")
            k(f"s_add_u32 m0, s42, {LB + slot*16384 + q*1024}")
            k(f"s_add_u32 s15, s14, {q*4096}")
            vm.op(f"buffer_load_dwordx4 v{VP+q}, s[64:67], s15 offen lds", f"B{slot}")
            sh.take(k, n)
    def dX(slot, ring, n=0):
        k(f"s_add_u32 s14, s36, s{37+slot}")
        for i in range(8):
            k(f"s_add_u32 m0, s43, {ring*8192 + i*1024}")
            k(f"s_add_u32 s15, s14, {(16*(i&1) + 2*(i>>1))*1024}")
            vm.op(f"buffer_load_dwordx4 v{VPX+(i&3)}, s[60:63], s15 offen lds", f"X{slot}")
            sh.take(k, n)
    vm.op(f"global_load_dwordx4 {vr(GX,4)}, v{T+4}, {X_}", "gate")
    vm.op(f"global_load_dwordx4 {vr(GX+4,4)}, v{T+4}, {X_} offset:16", "gate")
    vm.op(f"global_load_dwordx4 {vr(GWv,4)}, v{T+3}, {GW}", "gate")
    vm.op(f"global_load_dwordx4 {vr(GWv+4,4)}, v{T+3}, {GW} offset:16", "gate")
    k('s_barrier')
    sh(f"""v_and_b32 v{T+5}, 15, v1
    v_xor_b32 v{T+5}, v{T+5}, v{T+2}
    v_lshlrev_b32 v{T+5}, 4, v{T+5}
    v_lshl_add_u32 v{VA}, v{T}, 8, v{T+5}""")
    for ks in range(1, 8): sh(f"v_xor_b32 v{VA+ks}, {32*ks}, v{VA}")
    for ks in range(8): sh(f"v_add_u32 v{VX+ks}, s43, v{VA+ks}")
    sh(f"""v_mov_b32 v{vPR}, {LPR}
    s_lshl_b32 s11, {sW}, 2
    v_add_u32 v{vPW}, s11, v{vPR}
    s_lshl_b32 s11, {sW}, 1
    v_add_u32 v{vS}, s11, v{T+2}
    {pfs}
    s_lshl_b32 s46, {sJ}, 13
    s_add_u32 s46, s46, {E_OFF}
    v_lshl_add_u32 v{vGA}, v1, 4, s46
    s_lshl_b32 s46, {sC}, 9
    v_add_u32 v{vEA}, s46, v{vGA}
    s_lshl_b32 s46, {sW}, 11
    v_add_u32 v{vGA}, s46, v{vGA}
    v_lshlrev_b32 v{vHR}, 3, v{T}
    v_add_u32 v{vHR}, {LH}, v{vHR}
    s_lshl_b32 s46, {sW}, 8
    v_add_u32 v{vHW}, s46, v{vHR}
    s_lshl_b32 s46, {sC}, 2
    s_add_u32 s46, s46, {sW}
    s_lshl_b32 s46, s46, 4
    s_add_u32 s46, s46, {sJ}
    s_lshl_b32 s46, s46, 4
    s_add_u32 s46, s46, {F2_OFF}
    v_mov_b32 v2, s46""")
    srd(sh, 72, CRE, 524288)
    sh(f"""s_lshl_b32 s46, {sC}, 2
    s_add_u32 s46, s46, {sW}
    s_lshl_b32 s46, s46, 5
    s_add_u32 s46, s46, {sJ}
    s_lshl_b32 s46, s46, 11
    s_add_u32 s34, s46, {H_OFF}
    v_bfe_u32 v{vHT}, v1, 4, 1
    v_lshlrev_b32 v{vHT}, 8, v{vHT}
    v_and_or_b32 v{vHT}, v1, 15, v{vHT}
    v_lshl_add_u32 v{vHT}, v{vHT}, 7, s34""")
    if HTS == -3:
        a = int(WS[2:WS.index(":")])
        sh(f"s_add_u32 s76, s{a}, s34\ns_addc_u32 s77, s{a+1}, 0")
        for hh in range(2):
            for o in range(0, 2048, HTG): sh(f"s_load_dword s35, s[76:77], {hh*32768 + o}")
    if PFS == -3:
        sh(f"s_add_u32 s96, s68, s45\ns_addc_u32 s97, s69, 0")
        for o in range(0, 8192, HTG): sh(f"s_load_dword s35, s[96:97], {o}")
    ht = lambda: vm.op(f"global_load_dword v{vHT}, v{vHT}, {WS}", "ht")
    sh(f"""s_lshl_b32 s25, {sDT}, 16
    s_lshr_b32 s46, {sW}, 1
    s_lshl_b32 s22, s46, 15
    s_add_u32 s22, s22, s25
    s_lshl_b32 s23, s46, 13
    s_lshl_b32 s24, s46, 8
    s_add_u32 s24, s24, s25
    s_and_b32 s46, {sW}, 1
    s_lshl_b32 s46, s46, 14
    s_add_u32 s23, s23, s46
    s_lshl_b32 s46, {sW}, 14
    s_add_u32 s25, s25, s46
    s_lshl_b32 s44, {sW}, 12""")
    def dC(t_, i):
        lb, lo, gb, go, sr = {"CA": ("s23", 0, "s22", 0, 68), "CR": ("s43", 0, "s24", 512, 68), "CB": ("s44", 32768, "s25", 256, 72)}[t_]
        k(f"s_add_u32 m0, {lb}, {lo + i*1024}\ns_add_u32 s15, {gb}, {go + i*4096}")
        vm.op(f"buffer_load_dwordx4 v{VP+(i&3)}, s[{sr}:{sr+3}], s15 offen lds", "C")
    dB(0, n=5); dX(0, 0, n=5); sh.take(k, 999)
    vm.wait("gate")
    sh(f"""v_lshlrev_b32 v{pDt}, 16, v{pDt}
    v_lshlrev_b32 v{pLre}, 16, v{pLre}
    v_mul_f32 v{pDt}, {fl(LOG2E)}, v{pDt}
    v_lshlrev_b32 v{pLim}, 16, v{pLim}
    v_exp_f32 v{pDt}, v{pDt}
    v_cvt_pk_bf16_f32 v{pDt}, v{pDt}, v{pDt}
    v_lshlrev_b32 v{pDt}, 16, v{pDt}
    v_mul_f32 v{va}, v{pDt}, v{pLre}
    v_mul_f32 v{vth}, v{pDt}, v{pLim}
    v_mul_f32 v{va}, {fl(LOG2E)}, v{va}
    v_mul_f32 v{vth}, {fl(INV2PI)}, v{vth}""")
    cexp(sh, va, vth, "1.0", L1, L1 + 1, Q, Q + 1)
    cexp(sh, va, vth, fl(8.0), L8, L8 + 1, Q + 2, Q + 3)
    cexp(sh, va, vth, fl(16.0), L16, L16 + 1, Q, Q + 1)
    sh(f"""v_mul_f32 v{Q}, v{pLre}, v{pLre}
    v_fmac_f32 v{Q}, v{pLim}, v{pLim}
    v_rcp_f32 v{Q}, v{Q}
    v_add_f32 v{Q+1}, -1.0, v{L1}
    v_mul_f32 v{C2}, v{Q+1}, v{pLre}
    v_fmac_f32 v{C2}, v{L1+1}, v{pLim}
    v_mul_f32 v{C2+1}, v{L1+1}, v{pLre}
    v_fma_f32 v{C2+1}, -v{Q+1}, v{pLim}, v{C2+1}
    v_add_f32 v{Q}, v{Q}, v{Q}
    v_mul_f32 v{C2}, v{C2}, v{Q}
    v_mul_f32 v{C2+1}, v{C2+1}, v{Q}""")
    pcmul(sh, RT, C2, L1)
    for t in range(1, 8): pcmul(sh, RT + 2*t, RT + 2*t - 2, L1)
    sh(f"v_cvt_f32_u32 v{Q+2}, v{vS}\nv_mul_f32 v{Q+2}, {fl(16.0)}, v{Q+2}\nv_add_f32 v{Q+3}, {fl(8.0)}, v{Q+2}")
    cexp(sh, va, vth, f"v{Q+2}", LSR, LSI, Q, Q + 1)
    cexp(sh, va, vth, f"v{Q+3}", LSR + 1, LSI + 1, Q + 4, Q + 5)
    sh(f"v_mov_b32 v{vG}, 0")
    for i in range(8):
        sh(f"""v_lshlrev_b32 v{Q}, 16, v{GX+i}
        v_and_b32 v{Q+1}, 0xffff0000, v{GX+i}
        v_lshlrev_b32 v{Q+2}, 16, v{GWv+i}
        v_and_b32 v{Q+3}, 0xffff0000, v{GWv+i}
        v_pk_mul_f32 {vr(Q,2)}, {vr(Q,2)}, {vr(Q+2,2)}
        v_cvt_pk_bf16_f32 v{Q}, v{Q}, v{Q+1}
        v_lshlrev_b32 v{Q+1}, 16, v{Q}
        v_and_b32 v{Q}, 0xffff0000, v{Q}
        v_add_f32 v{vG}, v{vG}, v{Q+1}
        v_add_f32 v{vG}, v{vG}, v{Q}""")
    for s_ in (1, 2, 4, 8):
        sh(f"v_add_f32_dpp v{vG}, v{vG}, v{vG} row_ror:{s_} row_mask:0xf bank_mask:0xf")
    sh(f"""v_mov_b32 v{Q}, v{vG}
    v_permlane16_swap_b32 v{Q}, v{vG}
    v_add_f32 v{vG}, v{vG}, v{Q}
    v_cvt_pk_bf16_f32 v{vG}, v{vG}, v{vG}
    v_lshlrev_b32 v{vG}, 16, v{vG}
    v_mul_f32 v{vG}, {fl(-LOG2E)}, v{vG}
    v_exp_f32 v{vG}, v{vG}
    v_add_f32 v{vG}, 1.0, v{vG}
    v_rcp_f32 v{vG}, v{vG}
    v_cvt_pk_bf16_f32 v{vG}, v{vG}, v{vG}
    v_lshlrev_b32 v5, 16, v{vG}
    v_lshlrev_b32 v4, 16, v{vG}
    v_permlane32_swap_b32 v4, v5""")
    sh(f"""v_lshrrev_b32 v{Q+3}, 5, v1
    s_lshl_b32 s47, {sW}, 2
    s_sub_u32 s46, {sC}, 1
    s_sub_u32 s46, s46, s47
    v_sub_u32 v{Q+3}, s46, v{Q+3}""")
    for i in range(2):
        sh(f"""v_subrev_u32 v{Q+4}, {2*i}, v{Q+3}
        v_cmp_le_i32 s[{MS+2*i}:{MS+1+2*i}], 0, v{Q+4}
        v_max_i32 v{Q+4}, 0, v{Q+4}
        v_cvt_f32_i32 v{Q+2}, v{Q+4}
        v_mul_f32 v{Q+2}, {fl(128.0)}, v{Q+2}""")
        cexp(sh, va, vth, f"v{Q+2}", Wt + 2*i, Wt + 2*i + 1, Q, Q + 1)
    print("shadow instrs", len(sh.L))
    dB(1, n=SH1); dX(1, 1, n=SH1)
    if HTS == -1: ht()
    if PFS == -1: vm.op(f"buffer_load_dword v{vPF}, v{vPF}, s[68:71], s45 offen", "pf")
    k("s_setprio 2")
    def rdB(slot, ks):
        f = FR + 8 * (ks % 3)
        return [f"ds_read_b128 {vr(f,4)}, v{VA+ks} offset:{LB + slot*16384}",
                f"ds_read_b128 {vr(f+4,4)}, v{VA+ks} offset:{LB + slot*16384 + 8192}"]
    def dX1(slot, i):
        k(f"s_add_u32 s14, s36, s{37+slot}")
        k(f"s_add_u32 m0, s43, {(slot&1)*8192 + i*1024}")
        k(f"s_add_u32 s15, s14, {(16*(i&1) + 2*(i>>1))*1024}")
        vm.op(f"buffer_load_dwordx4 v{VPX+(i&3)}, s[60:63], s15 offen lds", f"X{slot}")
    cdef = []
    for slot in range(4):
        vm.wait(f"X{slot}")
        prog_set(k, vPW, T, slot + 1)
        for ks in range(8): k(f"ds_read_b128 {vr(XR+4*ks,4)}, v{VX+ks} offset:{(slot&1)*8192}")
        spec_wait4(k, vPR, T, 0, slot + 1, rdB(slot, 0) + rdB(slot, 1))
        if slot in (0, 2): stamp(k, 1 + slot // 2)
        todo = ([("B", q) for q in range(4)] + [("X", i) for i in range(8)]) if slot < 2 else []
        if slot == 2: todo = [("CA", i) for i in range(8)] + [("CR", i) for i in range(8)]
        if slot == 3: todo = [("CB", i) for i in range(4)] + [("CR", i) for i in range(8, 15)]
        CD = opt("cdef", 0)
        if slot == 2 and CD > 11: cdef += todo[27 - CD:]; todo = todo[:27 - CD]
        if slot == 3 and CD: cdef += todo[max(11 - CD, 0):]; todo = todo[:max(11 - CD, 0)]
        for ks in range(8):
            if ks + 2 < 8:
                for r in rdB(slot, ks + 2): k(r)
                k(f"s_waitcnt lgkmcnt(4)")
            elif ks + 1 < 8: k(f"s_waitcnt lgkmcnt(2)")
            else: k("s_waitcnt lgkmcnt(0)")
            f = FR + 8 * (ks % 3)
            fa = XR + 4 * ks
            z = slot == 0 and ks == 0
            k(f"v_mfma_f32_32x32x16_bf16 {vr(ACR,16)}, {vr(fa,4)}, {vr(f,4)}, {'0' if z else vr(ACR,16)}")
            k(f"v_mfma_f32_32x32x16_bf16 {vr(ACI,16)}, {vr(fa,4)}, {vr(f+4,4)}, {'0' if z else vr(ACI,16)}")
            for _ in range(2 if ks < 4 or slot == 2 else 1):
                if todo:
                    t_, i_ = todo.pop(0)
                    if t_ == "B": dB(slot + 2, [i_])
                    elif t_ == "X": dX1(slot + 2, i_)
                    else: dC(t_, i_)
            sh.take(k, SH2 if slot < 2 else SH3)
            if ks == 7 and slot == 1:
                if L2C: k("s_mov_b64 exec, 1")
                vm.op(f"global_load_dword v{vTG}, v{vZ}, {DBG} sc1", "tag")
                if L2C: k("s_mov_b64 exec, -1")
            if ks == 7 and slot == HTS: ht()
            if ks == 7 and slot == PFS:
                vm.op(f"buffer_load_dword v{vPF}, v{vPF}, s[68:71], s45 offen", "pf")
    print("shadow left", len(sh.L))
    if opt("c4", 0): cdef = []
    stamp(k, 3)
    k("; REG B")
    for t in range(1, 8):
        pk_cfma_b(k, ACR + 2*t, ACI + 2*t, L1, ACR + 2*t - 2, ACI + 2*t - 2)
    k(f"""v_mov_b32 v{T}, v{ACR+15}
    v_mov_b32 v{T+1}, v{ACI+15}
    v_lshlrev_b32 v{T+2}, 3, v1
    v_add_u32 v{T+3}, s43, v{T+2}""")
    cfma(k, T, T + 1, L8, L8 + 1, ACR + 14, ACI + 14)
    k(f"ds_write_b64 v{T+3}, {vr(T,2)} offset:15360")
    prog_set(k, vPW, T + 4, 5)
    k(f"""v_and_b32 v{T+5}, 0xf8, v{T+2}
    v_add_u32 v{T+5}, {LX + 15360}, v{T+5}
    v_mov_b32 v{SR+1}, v{ACR+14}
    v_mov_b32 v{SI+1}, v{ACI+14}
    v_mov_b32 v{SR}, 0
    v_mov_b32 v{SI}, 0""")
    get_tag(k, vm, vTG, vZ)
    if LOC and not L2C: k(f"v_readlane_b32 s1, v{vTG}, 1")
    k(f"v_mov_b32 v6, {sTAG}\nv_mov_b32 v7, {sTAG}\nv_mov_b32 v{EX+16}, {sTAG}\nv_mov_b32 v{EX+17}, {sTAG}")
    assert EG == EX + 16
    spec_wait4(k, vPR, T, 0, 5, [f"ds_read_b64 {vr(EX+2*s,2)}, v{T+5} offset:{(s>>1)*16384 + (s&1)*256}" for s in range(8)])
    for s in range(1, 8):
        k(f"s_waitcnt lgkmcnt({7-s})")
        pcfma(k, EX + 2*s, L16, EX + 2*s - 2)
    L = k.lab("NE")
    k(f"""s_cmp_lg_u32 {sW}, 0
    s_cbranch_scc1 {L}
    s_mov_b64 exec, 0xffffffff
    global_store_dwordx4 v{vEA}, {vr(EX+14,4)}, {WS} sc1
    s_mov_b64 exec, -1
    {L}:""")
    prog_set(k, vPW, T + 4, 6)
    if L2C: k(f"s_mov_b64 exec, 2\nglobal_load_dword v{vTG}, v{vZ}, {DBG} sc1\ns_mov_b64 exec, -1")
    stamp(k, 4)
    k("; REG C")
    sh.take(k, 999)
    for s in range(1, 8):
        k(f"v_cmp_eq_u32 vcc, {s}, v{vS}")
        k(f"v_cndmask_b32 v{SR}, v{SR}, v{EX+2*s-2}, vcc\nv_cndmask_b32 v{SI}, v{SI}, v{EX+2*s-1}, vcc")
        if cdef: dC(*cdef.pop(0))
    cfma(k, SR + 1, SI + 1, L8, L8 + 1, SR, SI)
    for t in range(8):
        r, i_ = ACR + 2*t, ACI + 2*t
        q = T + 2 * (t & 1)
        k(f"""v_pk_mul_f32 {vr(q,2)}, {vr(C2,2)}, {vr(i_,2)} op_sel:[1,0] op_sel_hi:[1,1]
        v_pk_mul_f32 {vr(i_,2)}, {vr(C2,2)}, {vr(i_,2)} op_sel:[0,0] op_sel_hi:[0,1]
        v_pk_fma_f32 {vr(i_,2)}, {vr(C2,2)}, {vr(r,2)}, {vr(i_,2)} op_sel:[1,0,0] op_sel_hi:[1,1,1]
        v_pk_fma_f32 {vr(r,2)}, {vr(C2,2)}, {vr(r,2)}, {vr(q,2)} op_sel:[0,0,0] op_sel_hi:[0,1,1] neg_lo:[0,0,1] neg_hi:[0,0,1]""")
        for _ in range(3 if t < 7 else 99):
            if cdef: dC(*cdef.pop(0))
    vTW, vTR, vHS = VX, VX + 1, VX + 2
    k(f"""s_lshl_b32 s43, {sW}, 12
    s_add_u32 s43, s43, {LS}
    v_lshl_add_u32 v{vTW}, v1, 5, s43
    v_lshrrev_b32 v{T+1}, 4, v1
    v_and_b32 v{T+2}, 15, v1
    v_lshlrev_b32 v{T+2}, 3, v{T+2}
    v_lshl_add_u32 v{vTR}, v{T+1}, 8, v{T+2}
    v_add_u32 v{vTR}, s43, v{vTR}
    v_lshl_add_u32 v{vHS}, v1, 4, s34
    v_add_u32 v{vHS+1}, 32768, v{vHS}""")
    k("; REG D")
    L, D, L2 = k.lab("GE"), k.lab("GD"), k.lab("GX")
    k(f"""v_mov_b32 v{H}, 0
    v_mov_b32 v{H+1}, 0
    s_cmp_eq_u64 s[{MS}:{MS+1}], 0
    s_cbranch_scc1 {D}
    s_mov_b32 s11, {SPIN}
    s_mov_b64 s[12:13], s[{MS}:{MS+1}]
    s_mov_b64 s[14:15], s[{MS+2}:{MS+3}]
    {L}:
    s_mov_b64 exec, s[12:13]
    global_load_dwordx3 {vr(EG+4,3)}, v{vGA}, {WS} sc1
    s_mov_b64 exec, s[14:15]
    global_load_dwordx3 {vr(EG+8,3)}, v{vGA}, {WS} offset:1024 sc1
    s_sub_u32 s11, s11, 1
    s_cmp_eq_u32 s11, 0
    s_waitcnt vmcnt(0)
    s_cbranch_scc1 {L2}
    v_cmp_ne_u32 s[14:15], {sTAG}, v{EG+10}
    s_mov_b64 exec, s[12:13]
    v_cmp_ne_u32 s[12:13], {sTAG}, v{EG+6}
    s_or_b64 vcc, s[12:13], s[14:15]
    s_cbranch_scc1 {L}
    {L2}:""")
    for i in range(2):
        k(f"s_mov_b64 exec, s[{MS+2*i}:{MS+1+2*i}]")
        pcfma(k, H, Wt + 2*i, EG + 4 + 4*i)
    k(f"""s_mov_b64 exec, -1
    v_mov_b32 v{T}, v{H}
    v_mov_b32 v{T+1}, v{H+1}
    v_permlane32_swap_b32 v{T}, v{H}
    v_permlane32_swap_b32 v{T+1}, v{H+1}
    v_pk_add_f32 {vr(H,2)}, {vr(H,2)}, {vr(T,2)}
    {D}:
    s_waitcnt vmcnt(0)
    ds_write_b64 v{vHW}, {vr(H,2)}""")
    if L2C: k(f"v_readlane_b32 s1, v{vTG}, 1")
    prog_set(k, vPW, T + 4, 7)
    spec_wait4(k, vPR, T, 0, 7, [f"ds_read2_b64 {vr(EG,4)}, v{vHR} offset1:32", f"ds_read2_b64 {vr(EG+4,4)}, v{vHR} offset0:64 offset1:96"])
    stamp(k, 5)
    k(f"ds_read_b128 {vr(T+4,4)}, v{vPR} offset:16")
    k(f"""s_waitcnt lgkmcnt(1)
    v_pk_add_f32 {vr(EG,2)}, {vr(EG,2)}, {vr(EG+2,2)}
    v_pk_add_f32 {vr(EG+4,2)}, {vr(EG+4,2)}, {vr(EG+6,2)}
    v_pk_add_f32 {vr(H,2)}, {vr(EG,2)}, {vr(EG+4,2)}""")
    pk_cfma_b(k, SR, SI, H, LSR, LSI)
    HB = EG
    for t in range(8):
        pk_cfma_b(k, ACR + 2*t, ACI + 2*t, RT + 2*t, SR, SI)
        if t:
            k(f"v_cvt_pk_bf16_f32 v{HB+t-1}, v{ACR+2*t-2}, v{ACR+2*t-1}")
            k(f"v_cvt_pk_bf16_f32 v{HB+8+t-1}, -v{ACI+2*t-2}, -v{ACI+2*t-1}")
    D = k.lab("TF")
    k(f"""s_waitcnt lgkmcnt(0)
    v_min3_u32 v{T+4}, v{T+4}, v{T+5}, v{T+6}
    v_min_u32 v{T+4}, v{T+4}, v{T+7}
    v_cvt_pk_bf16_f32 v{HB+7}, v{ACR+14}, v{ACR+15}
    v_readfirstlane_b32 s14, v{T+4}
    v_cvt_pk_bf16_f32 v{HB+15}, -v{ACI+14}, -v{ACI+15}
    s_cmp_ge_u32 s14, 5
    s_cbranch_scc1 {D}""")
    prog_wait4(k, vPR, T + 4, 16, 5)
    k(f"""{D}:
    ds_write_b128 v{vTW}, {vr(HB,4)}
    ds_write_b128 v{vTW}, {vr(HB+4,4)} offset:16
    ds_write_b128 v{vTW}, {vr(HB+8,4)} offset:2048
    ds_write_b128 v{vTW}, {vr(HB+12,4)} offset:2064""")
    HF = EG + 16
    for comp in range(2):
        for hh in range(2):
            f = HF + 4 * (2*comp + hh)
            k(f"ds_read_b64_tr_b16 {vr(f,2)}, v{vTR} offset:{comp*2048 + hh*1024}")
            k(f"ds_read_b64_tr_b16 {vr(f+2,2)}, v{vTR} offset:{comp*2048 + hh*1024 + 128}")
    for comp in range(2):
        for hh in range(2):
            f = HF + 4 * (2*comp + hh)
            if not LOC:
                k(f"s_waitcnt lgkmcnt({6 - 2*(2*comp+hh)})")
                k(f"global_store_dwordx4 v{vHS+hh}, {vr(f,4)}, {WS} offset:{comp*1024}{HST}")
    if LOC:
        LS_ = k.lab("HS")
        k(f"s_cmp_lg_u32 s0, s1\ns_cbranch_scc1 {LS_}")
        for sc in (HFS, " sc1"):
            for comp in range(2):
                for hh in range(2):
                    f = HF + 4 * (2*comp + hh)
                    k(f"s_waitcnt lgkmcnt({6 - 2*(2*comp+hh)})")
                    k(f"global_store_dwordx4 v{vHS+hh}, {vr(f,4)}, {WS} offset:{comp*1024}{sc}")
            stamp(k, 6)
            k(f"s_branch {k.label}_P2")
            if sc == HFS: k(f"{LS_}:")
        return ra.hi
    stamp(k, 6)
    k(f"s_branch {k.label}_P2")
    return ra.hi

def s4(k):
    ra = RA(); vm = VM(k)
    sWp, sCH, sH, sD, sLC, sSC = "s60", "s61", "s62", "s63", "s64", "s65"
    T = ra(8, 4); vZ = ra(); vTG = ra(); vPW = ra(); vPP = ra(); vFA = ra(); va = ra(); vth = ra()
    VF = ra(8); VG = ra(); vYA = ra(); vSC = ra(); vSP = ra()
    ACC = ra(32, 4)
    base = ra.n
    XL = ra(8, 4); XO = ra(8, 4); PA = ra(8)
    IX = ra(20); SW = ra(16); SR = ra(4); DA = ra(3); vXS = ra(2)
    Z = ra(32, 2); TB = ra(18, 2); U = ra(4, 2); z16 = ra(2, 2); PKD = ra(4)
    OPB = ra(16, 4); OPA = ra(32, 4); KD = ra(12, 4)
    k(f"""s_setprio 3
    s_sub_u32 {sWp}, {sW}, 4
    s_lshr_b32 {sCH}, {sWp}, 1
    s_and_b32 {sH}, {sWp}, 1
    s_lshl_b32 {sD}, s2, 1
    s_add_u32 {sD}, {sD}, {sCH}
    s_mul_i32 {sLC}, {sCH}, {CHS}
    s_add_u32 {sLC}, {sLC}, {LS}
    s_xor_b32 {sSC}, {sH}, 1
    s_lshl_b32 {sSC}, {sSC}, 12
    s_add_u32 {sSC}, {sSC}, {sLC}
    s_add_u32 {sSC}, {sSC}, {LP + 64 - LS}
    s_lshl_b32 s14, {sC}, 7
    s_lshl_b32 s15, {sH}, 6
    s_add_u32 s14, s14, s15
    s_lshl_b32 s15, {sJ}, 5
    s_lshl_b32 s11, {sCH}, 4
    s_add_u32 s15, s15, s11
    s_lshl_b32 s12, s14, 10
    s_lshl_b32 s13, s15, 1
    s_add_u32 s12, s12, s13
    v_and_b32 v{T}, 7, v1
    v_lshrrev_b32 v{T+1}, 3, v1
    v_lshlrev_b32 v{T+2}, 13, v{T+1}
    v_lshl_add_u32 v{T+2}, v{T}, 2, v{T+2}
    v_add_u32 v{T+2}, s12, v{T+2}
    v_add_u32 v{T+3}, 4096, v{T+2}""")
    for i in range(8):
        vm.op(f"global_load_dword v{XL+i}, v{T+2+(i>>2)}, {X_} offset:{(i&3)*1024}", "xl")
    k(f"""s_lshl_b32 s12, {sD}, 8
    s_lshl_b32 s13, {sH}, 7
    s_add_u32 s12, s12, s13
    v_lshl_add_u32 v{T+4}, v1, 1, s12
    s_lshl_b32 s12, {sD}, 1
    v_mov_b32 v{T+5}, s12
    v_mov_b32 v{vZ}, 0""")
    vm.op(f"global_load_ushort v{PA+6}, v{T+5}, {BLDT}", "par")
    for i, p in enumerate((SARE, SAIM, SBRE, SBIM, SCRE, SCIM)):
        vm.op(f"global_load_ushort v{PA+i}, v{T+4}, {p}", "par")
    def touch(d):
        k(f"""s_mov_b64 exec, 15
        s_lshl_b32 s12, {sR}, 17
        v_mov_b32 v{d}, s12
        s_lshl_b32 s12, {sDT}, 16
        v_mov_b32 v{d+1}, s12
        v_lshlrev_b32 v{d+2}, 21, v1
        v_add_u32 v{d+2}, {H_OFF}, v{d+2}""")
        k(f"v_lshrrev_b32 v{d+4}, 9, v{d+1}")
        vm.op(f"global_load_dword v{d+3}, v{d+4}, {ADS}", "tw")
        vm.op(f"global_load_dword v{d+4}, v{d+4}, {BDS}", "tw")
        vm.op(f"global_load_dword v{d+2}, v{d+2}, {WS} sc1", "tw")
        vm.op(f"global_load_dword v{d}, v{d}, {OUTP}", "tw")
        vm.op(f"global_load_dword v{d+5}, v{d+1}, {CRE}", "tw")
        vm.op(f"global_load_dword v{d+1}, v{d+1}, {CIM}", "tw")
        k("s_mov_b64 exec, -1")
    if TW == 1: touch(ACC)
    k("s_barrier")
    k(f"""s_lshl_b32 s12, s15, 12
    s_lshl_b32 s13, s14, 1
    s_add_u32 s12, s12, s13
    s_add_u32 s12, s12, {XT_OFF}
    v_lshlrev_b32 v{vXS}, 13, v{T}
    v_lshl_add_u32 v{vXS}, v{T+1}, 4, v{vXS}
    v_add_u32 v{vXS}, s12, v{vXS}
    v_add_u32 v{vXS+1}, 4096, v{vXS}
    s_lshl_b32 s12, {sJ}, 1
    s_add_u32 s12, s12, {sCH}
    s_lshl_b32 s12, s12, 4
    s_add_u32 s12, s12, {sC}
    s_lshl_b32 s12, s12, 1
    s_add_u32 s12, s12, {sH}
    s_lshl_b32 s12, s12, 2
    s_add_u32 s66, s12, {F1_OFF}
    s_lshl_b32 s12, {sW}, 2
    s_add_u32 s12, s12, {LPR}
    v_mov_b32 v{vPW}, s12
    v_xor_b32 v{vPP}, 4, v{vPW}
    v_lshl_add_u32 v{SW}, v1, 2, {sSC}
    v_lshl_add_u32 v{vSC}, v1, 4, {sSC}
    v_and_b32 v{T}, 15, v1
    v_lshrrev_b32 v{T+1}, 4, v1
    v_xor_b32 v{T+2}, v{T}, v{T+1}
    v_lshlrev_b32 v{T+2}, 4, v{T+2}
    v_lshl_add_u32 v{T+2}, v{T}, 8, v{T+2}
    v_add_u32 v{SR}, {sSC}, v{T+2}""")
    for r in range(1, 16): k(f"v_xor_b32 v{SW+r}, {16*r}, v{SW}")
    for s in range(1, 4): k(f"v_xor_b32 v{SR+s}, {64*s}, v{SR}")
    k(f"""s_add_u32 s12, {sLC}, 16
    v_lshlrev_b32 v{T+2}, 4, v{T+1}
    v_lshl_add_u32 v{DA}, v{T}, 6, v{T+2}
    v_add_u32 v{DA}, s12, v{DA}
    v_lshl_add_u32 v{T+3}, v{T}, 5, v{T+2}
    v_lshlrev_b32 v{T+4}, 8, v{T+1}
    v_lshl_add_u32 v{T+5}, v{T}, 4, v{T+4}
    v_cmp_gt_u32 vcc, 2, v{T+1}
    v_cndmask_b32 v{DA+1}, v{T+5}, v{T+3}, vcc
    v_add_u32 v{DA+1}, s12, v{DA+1}
    v_lshl_add_u32 v{DA+2}, v{T}, 3, v{T+4}
    v_add_u32 v{DA+2}, s12, v{DA+2}""")
    k(f"""s_lshl_b32 s12, {sH}, 9
    s_add_u32 s12, s12, {sLC}
    s_add_u32 s12, s12, {LP - LS + 26*4}
    v_lshlrev_b32 v{T+2}, 5, v{T+1}
    v_lshl_add_u32 v{VF}, v{T}, 2, s12
    v_sub_u32 v{VF}, v{VF}, v{T+2}
    s_mul_i32 s12, {sCH}, {XTS}
    s_add_u32 s67, s12, {LXT}
    s_lshl_b32 s13, {sH}, 8
    s_sub_u32 s12, s67, s13
    s_add_u32 s12, s12, {480 - 192}
    v_lshlrev_b32 v{T+2}, 4, v{T+1}
    v_lshl_add_u32 v{VG}, v{T}, 5, v{T+2}
    v_add_u32 v{VG}, s12, v{VG}
    s_lshl_b32 s12, {sD}, 12
    s_lshl_b32 s13, {sH}, 11
    s_add_u32 s68, s12, s13
    s_add_u32 s12, s68, {Y_OFF}
    v_and_b32 v{T+2}, 1, v{T+1}
    v_lshlrev_b32 v{T+2}, 9, v{T+2}
    v_lshl_add_u32 v{T+2}, v{T}, 5, v{T+2}
    v_lshrrev_b32 v{T+3}, 1, v{T+1}
    v_lshl_add_u32 v{T+2}, v{T+3}, 4, v{T+2}
    v_add_u32 v{vYA}, s12, v{T+2}
    s_lshr_b32 s12, s2, 3
    s_lshl_b32 s12, s12, 7
    s_add_u32 s12, s12, {F1_OFF}
    v_and_b32 v{T+2}, 31, v1
    v_lshl_add_u32 v{vFA}, v{T+2}, 2, s12""")
    for m in range(1, 8): k(f"v_add_u32 v{VF+m}, {1024*m}, v{VF}")
    k(f"""s_lshl_b32 s12, {sH}, 10
    s_sub_u32 s12, s12, 1
    v_lshl_add_u32 v{T}, v1, 2, s12
    v_cvt_f32_i32 v{T+1}, v{T}
    s_add_u32 s13, {sLC}, 16
    s_sub_u32 s12, s13, {0x4280*4}
    v_mov_b32 v{T+7}, s12
    v_lshl_add_u32 v{T+6}, v{T}, 2, s13
    s_cmp_eq_u32 {sH}, 0
    s_cselect_b64 vcc, -1, 0""")
    for it in range(4):
        for e in range(5):
            c = 256*it + e
            if c: k(f"v_add_f32 v{PKD+(e&1)}, {fl(float(c))}, v{T+1}")
            else: k(f"v_mov_b32 v{PKD}, v{T+1}")
            if e & 1 or e == 4:
                k(f"v_cvt_pk_bf16_f32 v{T+2}, v{PKD}, v{PKD+1}")
                e0 = e & ~1
                k(f"v_mad_u32_u16 v{IX+5*it+e0}, v{T+2}, 4, v{T+7}")
                if e & 1: k(f"v_mad_u32_u16 v{IX+5*it+e}, v{T+2}, 4, v{T+7} op_sel:[1,0,0,0]")
    for e in range(5):
        k(f"v_add_u32 v{T+2}, {4*e}, v{T+6}\nv_cndmask_b32 v{IX+e}, v{IX+e}, v{T+2}, vcc")
    vm.wait("xl")
    k("s_mov_b32 s12, 0x05040100\ns_mov_b32 s13, 0x07060302")
    for i in range(4):
        k(f"v_perm_b32 v{XO+i}, v{XL+2*i+1}, v{XL+2*i}, s12")
        k(f"v_perm_b32 v{XO+4+i}, v{XL+2*i+1}, v{XL+2*i}, s13")
    vm.op(f"global_store_dwordx4 v{vXS}, {vr(XO,4)}, {WS} sc1", "xs")
    vm.op(f"global_store_dwordx4 v{vXS+1}, {vr(XO+4,4)}, {WS} sc1", "xs")
    vm.op(f"global_load_dword v{vTG}, v{vZ}, {DBG} sc1", "tag")
    if LOC and LOCP == 2: census(k, T + 2, T + 3, 1)
    vm.wait("par")
    for i in range(7): k(f"v_lshlrev_b32 v{PA+i}, 16, v{PA+i}")
    k(f"""v_mul_f32 v{PA+6}, {fl(LOG2E)}, v{PA+6}
    v_exp_f32 v{PA+6}, v{PA+6}
    v_cvt_pk_bf16_f32 v{PA+6}, v{PA+6}, v{PA+6}
    v_lshlrev_b32 v{PA+6}, 16, v{PA+6}
    v_mul_f32 v{va}, v{PA+6}, v{PA}
    v_mul_f32 v{vth}, v{PA+6}, v{PA+1}
    v_mul_f32 v{va}, {fl(LOG2E)}, v{va}
    v_mul_f32 v{vth}, {fl(INV2PI)}, v{vth}
    v_mul_f32 v{PA+2}, v{PA+6}, v{PA+2}
    v_mul_f32 v{PA+3}, v{PA+6}, v{PA+3}""")
    cmul(k, U, U + 1, PA + 4, PA + 5, PA + 2, PA + 3)
    cexp(k, va, vth, fl(16.0), z16, z16 + 1, T, T + 1)
    cexp(k, va, vth, "1.0", Z + 2, Z + 3, T + 2, T + 3)
    cexp(k, va, vth, fl(256.0), TB + 2, TB + 3, T + 4, T + 5)
    npk = [0]
    def put(row, src, neg=False):
        p = PKD + (npk[0] & 3); npk[0] += 1
        k(f"v_cvt_pk_bf16_f32 v{p}, v{src}, {'-' if neg else ''}v{src+1}")
        k(f"ds_write_b32 v{SW+row}, v{p} offset:{256*row}")
    def get(dst):
        for s in range(4): k(f"ds_read_b128 {vr(dst+4*s,4)}, v{SR+s}")
    for m in range(16):
        cur = U + 2 * (m & 1)
        if m < 15: pcmul(k, U + 2 * ((m + 1) & 1), cur, z16)
        put(m, cur, True)
        r = m + 2
        if r < 16:
            if r % 2 == 0: pcmul(k, Z + 2*r, Z + r, Z + r)
            else: pcmul(k, Z + 2*r, Z + 2*r - 2, Z + 2)
    get(OPB)
    k(f"v_mov_b32 v{Z}, 1.0\nv_mov_b32 v{Z+1}, 0")
    tb = [(2,1,1),(3,2,1),(4,2,2),(6,3,3),(5,4,1),(8,4,4),(7,6,1)]
    for r in range(16):
        put(r, Z + 2*r)
        if r < 7: pcmul(k, TB + 2*tb[r][0], TB + 2*tb[r][1], TB + 2*tb[r][2])
    get(OPA)
    get_tag(k, vm, vTG, vZ)
    k(f"""v_mov_b32 v{T}, s66
    v_mov_b32 v{T+1}, {sTAG}
    s_waitcnt vmcnt(0)
    s_mov_b64 exec, 1
    global_store_dword v{T}, v{T+1}, {WS} sc1
    s_mov_b64 exec, -1""")
    if LOC and LOCP == 1: census(k, T + 2, T + 3, 1)
    if TW == 2: touch(ACC)
    stamp(k, 1)
    rows1 = [(1, 2*i) for i in range(8)] + [(2, 4*i) for i in range(4)] + [(3, 4*i) for i in range(4)]
    rows2 = [(4 + (i >> 1), 8 * (i & 1)) for i in range(9)]
    def vrows(rows):
        for r, (B, f) in enumerate(rows):
            if f == 0: put(r, TB + 2*B)
            else:
                d = U + 2 * (r & 1)
                pcmul(k, d, TB + 2*B, Z + 2*f); put(r, d)
    vrows(rows1)
    get(OPA + 16)
    k("s_waitcnt lgkmcnt(15)")
    for s in range(4):
        k(f"v_mfma_f32_16x16x32_bf16 {vr(KD,4)}, {vr(OPA+4*s,4)}, {vr(OPB+4*s,4)}, {'0' if s == 0 else vr(KD,4)}")
    vrows(rows2)
    get(OPA)
    k("s_waitcnt lgkmcnt(13)")
    for s in range(4):
        k(f"v_mfma_f32_16x16x32_bf16 {vr(KD+4,4)}, {vr(OPA+16+4*s,4)}, {vr(OPB+4*s,4)}, {'0' if s == 0 else vr(KD+4,4)}")
    k(f"ds_write_b128 v{vSC}, {vr(KD,4)}")
    k("s_waitcnt lgkmcnt(1)")
    for s in range(4):
        k(f"v_mfma_f32_16x16x32_bf16 {vr(KD+8,4)}, {vr(OPA+4*s,4)}, {vr(OPB+4*s,4)}, {'0' if s == 0 else vr(KD+8,4)}")
    k(f"ds_write_b128 v{vSC}, {vr(KD+4,4)} offset:1024")
    k(f"global_load_dword v{T+6}, v{vFA}, {WS} sc1")
    k(f"s_lshl_b32 s12, {sH}, 12\ns_add_u32 s12, s12, {sLC}\ns_add_u32 s12, s12, {LP+64-LS}\nv_lshl_add_u32 v{vSP}, v1, 4, s12")
    k(f"ds_write_b128 v{vSC}, {vr(KD+8,4)} offset:2048")
    prog_set(k, vPW, T, 1)
    prog_wait1(k, vPP, T, 1)
    stamp(k, 2)
    LA, LB_ = k.lab("FA"), k.lab("FB")
    k(f"""v_lshl_add_u32 v{T+4}, v1, 4, s68
    s_lshl_b32 s12, {sH}, 11
    s_add_u32 s12, s12, s67
    v_lshl_add_u32 v{T+5}, v1, 4, s12
    s_waitcnt vmcnt(0)
    v_cmp_ne_u32 s[70:71], {sTAG}, v{T+6}
    s_cmp_lg_u64 s[70:71], 0
    s_cbranch_scc1 {LA}
    global_load_dwordx4 {vr(XL,4)}, v{T+4}, {WS} sc1
    global_load_dwordx4 {vr(XL+4,4)}, v{T+4}, {WS} offset:1024 sc1
    s_branch {LB_}
    {LA}:
    global_load_dword v{T+6}, v{vFA}, {WS} sc1
    {LB_}:""")
    for i in range(3): k(f"ds_read_b128 {vr(OPA+4*i,4)}, v{vSP} offset:{1024*i}")
    for i in range(3):
        k(f"s_waitcnt lgkmcnt(2)")
        for r in range(4): k(f"v_add_f32 v{KD+4*i+r}, v{KD+4*i+r}, v{OPA+4*i+r}")
        if i < 2: k(f"ds_write_b128 v{DA+i}, {vr(KD+4*i,4)} offset:{1024*i}")
    k(f"""s_mov_b32 exec_hi, 1
    ds_write_b64 v{DA+2}, {vr(KD+8,2)} offset:2048
    s_mov_b32 exec_hi, 0
    ds_write_b64 v{DA+2}, {vr(KD+10,2)} offset:{2048+128}
    s_mov_b32 exec_hi, -1""")
    KV = Z; PO = OPB
    for it in range(4):
        for e in range(5): k(f"ds_read_b32 v{KV+5*it+e}, v{IX+5*it+e}")
        if it == 2: k("s_waitcnt lgkmcnt(10)")
    for it in range(4):
        k(f"s_waitcnt lgkmcnt({15 - 4*it})")
        for e in range(4): k(f"v_cvt_pk_bf16_f32 v{PO+4*it+e}, v{KV+5*it+e+1}, v{KV+5*it+e}")
        k(f"ds_write_b128 v{vSP}, {vr(PO+4*it,4)} offset:{1024*it}")
    L, D, E_ = k.lab("F1"), k.lab("F1D"), k.lab("F1E")
    k(f"""s_cmp_eq_u64 s[70:71], 0
    s_cbranch_scc1 {E_}
    s_mov_b32 s11, {SPIN}
    {L}:
    s_waitcnt vmcnt(0)
    v_cmp_ne_u32 vcc, {sTAG}, v{T+6}
    s_cbranch_vccz {D}
    s_sub_u32 s11, s11, 1
    s_cmp_eq_u32 s11, 0
    s_cbranch_scc1 {D}
    global_load_dword v{T+6}, v{vFA}, {WS} sc1
    s_branch {L}
    {D}:
    global_load_dwordx4 {vr(XL,4)}, v{T+4}, {WS} sc1
    global_load_dwordx4 {vr(XL+4,4)}, v{T+4}, {WS} offset:1024 sc1
    {E_}:""")
    k(f"""s_waitcnt vmcnt(1)
    ds_write_b128 v{T+5}, {vr(XL,4)} offset:512
    s_waitcnt vmcnt(0)
    ds_write_b128 v{T+5}, {vr(XL+4,4)} offset:1536
    s_waitcnt lgkmcnt(0)""")
    prog_set(k, vPW, T, 2)
    prog_wait1(k, vPP, T, 2)
    stamp(k, 3)
    k("s_setprio 0")
    ra.n = base
    FB = [ra(32, 4), ra(32, 4)]; GB = [ra(32, 4), ra(32, 4)]
    if TW == 3: touch(ra(8))
    def reads(kk):
        o = []
        F, G = FB[kk & 1], GB[kk & 1]
        for i in range(8):
            o.append(f"ds_read_b128 {vr(G+4*i,4)}, v{VG} offset:{512*i + 192 - 64*kk}")
            o.append(f"ds_read2_b32 {vr(F+4*i,2)}, v{VF+i} offset0:{32*kk+6} offset1:{32*kk+4}")
            o.append(f"ds_read2_b32 {vr(F+4*i+2,2)}, v{VF+i} offset0:{32*kk+2} offset1:{32*kk}")
        return o
    for l in reads(0): k(l)
    su = Buf()
    VP = ra(4); vLP = ra()
    dma_patterns(su, VP, T)
    c_setup(su, sWp)
    su(f"""v_mov_b32 v{vLP}, {LPR}
    s_cmp_eq_u32 {sH}, 0
    s_cselect_b32 s36, s68, s72
    s_cselect_b32 s37, s69, s73
    s_mov_b32 s38, 524288
    s_mov_b32 s39, 0x20000
    s_lshl_b32 s40, {sDT}, 16
    s_lshl_b32 s41, {sCH}, 8
    s_add_u32 s40, s40, s41
    s_lshl_b32 s41, {sWp}, 14""")
    def cA(sl, comp, q):
        return [f"s_add_u32 m0, s77, {sl*32768 + comp*16384 + q*1024}", f"s_add_u32 s15, s76, {q*4096 + sl*256}",
                f"buffer_load_dwordx4 v{VP+q}, s[{68+4*comp}:{71+4*comp}], s15 offen lds"]
    def cB(i):
        return [f"s_add_u32 m0, s41, {65536 + i*1024}", f"s_add_u32 s15, s40, {i*4096 + 512}",
                f"buffer_load_dwordx4 v{VP+(i&3)}, s[36:39], s15 offen lds"]
    cq = []
    for kk in range(4):
        assert not cq
        k("s_waitcnt lgkmcnt(0)")
        nxt = reads(kk + 1) if kk < 3 else []
        CC = {3: opt("cc3", 9), 4: opt("cc4", 9)}
        for lv in (4, 3):
            if kk + 1 == CC[lv]:
                nxt.append(f"ds_read_b128 {vr(T+4,4)}, v{vLP}"); break
        for lv in (4, 3):
            if kk == CC[lv]:
                assert not su.L
                D_ = k.lab("CC")
                k(f"""v_min3_u32 v{T+4}, v{T+4}, v{T+5}, v{T+6}
                v_min_u32 v{T+4}, v{T+4}, v{T+7}
                s_nop 0
                v_readfirstlane_b32 s14, v{T+4}
                s_cmp_ge_u32 s14, {lv}
                s_cbranch_scc1 {D_}""")
                prog_wait4(k, vLP, T + 4, 0, lv)
                k(f"{D_}:")
                break
        if kk == CC[3]: cq += [cA(0, c, q) for c in range(2) for q in range(4)]
        if kk == CC[4]: cq += [cA(1, 0, q) for q in range(4)] + [cB(i) for i in range(8)]
        stp = 36 // max(len(cq), 1)
        F, G = FB[kk & 1], GB[kk & 1]
        c_ = 0
        for n in range(8):
            for m in range(8 - n):
                a = ACC + 4 * (m + n)
                z = kk == 0 and n == 0
                k(f"v_mfma_f32_16x16x32_bf16 {vr(a,4)}, {vr(F+4*m,4)}, {vr(G+4*n,4)}, {'0' if z else vr(a,4)}")
                if nxt: k(nxt.pop(0))
                su.take(k, 1)
                if cq and (c_ % stp == 0 or c_ == 35):
                    for l in cq.pop(0): k(l)
                c_ += 1
    stamp(k, 4)
    prog_set(k, vPW, T, 3)
    prog_wait1(k, vPP, T, 3)
    RD = FB[0]; YO = FB[0] + 16
    L1, L2 = k.lab("RH"), k.lab("RE")
    k(f"s_cmp_lg_u32 {sH}, 0\ns_cbranch_scc1 {L1}")
    for h in range(2):
        keep, send = ACC + 16*h, ACC + 16*(1-h)
        for q in range(4): k(f"ds_write_b128 v{vSC}, {vr(send+4*q,4)} offset:{1024*q}")
        prog_set(k, vPW, T, 4)
        prog_wait1(k, vPP, T, 4)
        for q in range(4): k(f"ds_read_b128 {vr(RD+4*q,4)}, v{vSP} offset:{1024*q}")
        for q in range(4):
            k(f"s_waitcnt lgkmcnt({3-q})")
            for r in range(4): k(f"v_add_f32 v{RD+4*q+r}, v{RD+4*q+r}, v{keep+4*q+r}")
        if h == 0: k(f"s_branch {L2}\n{L1}:")
    k(f"{L2}:")
    for q in range(4):
        for r in range(2): k(f"v_cvt_pk_bf16_f32 v{YO+2*q+r}, v{RD+4*q+2*r}, v{RD+4*q+2*r+1}")
    for p in range(2):
        for r in range(2): k(f"v_permlane16_swap_b32 v{YO+4*p+r}, v{YO+4*p+2+r}")
    vm.q = []
    prog_set(k, vPW, T, 5)
    for p in range(2):
        vm.op(f"global_store_dwordx4 v{vYA}, {vr(YO+4*p,4)}, {WS} offset:{1024*p} sc1", "y")
    k(f"""s_lshl_b32 s12, {sH}, 9
    s_add_u32 s12, s12, {sD}
    s_lshl_b32 s12, s12, 2
    s_add_u32 s12, s12, {F3_OFF}
    v_mov_b32 v4, s12
    v_mov_b32 v5, {sTAG}""")
    prog_wait4(k, vLP, T + 4, 0, 6)
    stamp(k, 5)
    dl = [cA(1, 1, q) for q in range(4)] + [cB(15)]
    if opt("c4", 0):
        CD = opt("cdef", 0); assert CD in (11, 19, 27)
        assert not cq
        if CC[4] < 9: dl += [cB(i) for i in range(8, 15)]; assert CD > 11
        else: dl += [cA(1, 0, q) for q in range(4)] + [cB(i) for i in range(8 if CD == 11 else 0, 15)]
        if CC[3] < 9: assert CD == 27
        elif CD == 27: dl += [cA(0, c, q) for c in range(2) for q in range(4)]
    n0 = min(opt("n0", 8), len(dl))
    for d_ in dl[:n0]:
        for l in d_: k(l)
    k(f"""s_waitcnt vmcnt({n0})
    s_mov_b64 exec, 1
    global_store_dword v4, v5, {WS} sc1
    s_mov_b64 exec, -1""")
    for d_ in dl[n0:]:
        for l in d_: k(l)
    k(f"v_mov_b32 v2, v{vPW}")
    stamp(k, 6)
    return ra.hi

def phase2(k):
    vm = VM(k)
    sRP, sKQ, sRT, sDP = "s60", "s61", "s62", "s63"
    vG, GL, vO, vRW, vRR, vYF, Y8, SA, XB, ACC, HF, CF = 3, 4, 8, 9, 10, 11, 12, 20, 28, 32, 64, 128
    T = ACC; X2 = ACC + 8; AD = ACC + 12; BD = ACC + 16; VC = ACC + 20; vH = ACC + 24
    vF2, vF2b, vF3, vYb = ACC + 28, ACC + 29, ACC + 30, ACC + 31
    k(f"""s_and_b32 {sKQ}, {sW}, 3
    s_lshr_b32 {sRP}, {sW}, 2
    s_and_b32 {sRT}, {sKQ}, 1
    s_lshr_b32 {sDP}, {sKQ}, 1""")
    k(f"""s_lshl_b32 s12, {sR}, 2
    s_lshl_b32 s13, {sRP}, 1
    s_add_u32 s64, s12, s13
    s_add_u32 s12, s64, {sRT}
    s_lshl_b32 s12, s12, 4
    s_lshl_b32 s13, {sDT}, 6
    s_lshl_b32 s14, {sDP}, 5
    s_add_u32 s13, s13, s14
    v_and_b32 v{T}, 15, v1
    v_lshrrev_b32 v{T+1}, 4, v1
    v_and_b32 v{T+2}, 1, v1
    v_bfe_u32 v{T+3}, v1, 1, 3
    v_lshl_add_u32 v{T+2}, v{T+2}, 3, v{T+3}
    v_add_u32 v{T+2}, s12, v{T+2}
    v_lshl_add_u32 v{T+3}, v{T+1}, 2, s13
    v_lshlrev_b32 v{T+4}, 1, v{T+3}
    v_lshl_add_u32 v{T+5}, v{T+2}, 10, v{T+4}
    v_lshlrev_b32 v{vO}, 1, v{T+5}""")
    for e in range(2):
        vm.op(f"global_load_dwordx2 {vr(X2+2*e,2)}, v{T+5}, {X_} offset:{32*e}", "ep")
        vm.op(f"global_load_dwordx2 {vr(AD+2*e,2)}, v{T+4}, {ADS} offset:{32*e}", "ep")
        vm.op(f"global_load_dwordx2 {vr(BD+2*e,2)}, v{T+4}, {BDS} offset:{32*e}", "ep")
    k(f"""v_and_b32 v{vYF}, 63, v{T+2}
    v_lshlrev_b32 v{vYF}, 1, v{vYF}
    v_lshlrev_b32 v{vYb}, 5, v{T+1}
    v_xor_b32 v{vYF}, v{vYF}, v{vYb}
    v_and_b32 v{vYb}, 63, v{T+3}
    v_lshl_add_u32 v{vYF}, v{vYb}, 7, v{vYF}
    v_add_u32 v{vYF}, {LXT}, v{vYF}
    v_lshrrev_b32 v{vF2}, 1, v{T+2}
    v_lshlrev_b32 v{vF2}, 4, v{vF2}
    v_add_u32 v{vF2}, {F2_OFF}, v{vF2}
    s_lshr_b32 s14, {sR}, 4
    s_lshl_b32 s14, s14, 11
    s_lshl_b32 s15, {sDT}, 8
    s_add_u32 s14, s14, s15
    s_add_u32 s14, s14, {F3_OFF}
    v_lshl_add_u32 v{vF3}, v1, 2, s14
    s_lshl_b32 s14, {sR}, 9
    s_add_u32 s14, s14, {F2_OFF + 8}
    v_and_b32 v{vF2b}, 31, v1
    v_lshl_add_u32 v{vF2b}, v{vF2b}, 4, s14
    s_cmp_eq_u32 {sW}, {PW}
    s_cselect_b64 vcc, -1, 0
    v_cndmask_b32 v{vF3}, v{vF3}, v{vF2b}, vcc
    v_lshrrev_b32 v{vYb}, 5, v1
    v_lshlrev_b32 v{vYb}, 1, v{vYb}
    v_xor_b32 v{vYb}, v1, v{vYb}
    v_and_b32 v{vYb}, 7, v{vYb}
    v_lshlrev_b32 v{vYb}, 4, v{vYb}
    v_lshrrev_b32 v{vF2b}, 3, v1
    v_lshl_add_u32 v{vYb}, v{vF2b}, 12, v{vYb}
    v_xor_b32 v{vF2b}, 64, v{vYb}
    s_lshl_b32 s68, {sDT}, 18
    s_lshl_b32 s14, {sR}, 7
    s_add_u32 s68, s68, s14
    s_lshl_b32 s14, s64, 15
    {"s_and_b32 s14, s14, 0xfffeffff" if opt("hack", 0) == 1 else ""}
    {"s_sub_u32 s14, s14, 0x200000" if opt("hack", 0) == 2 else ""}
    {"s_and_b32 s14, s14, 0x70000" if opt("hack", 0) == 3 else ""}
    {"s_sub_u32 s14, s14, 0x200000" if opt("hack", 0) == 3 else ""}
    s_lshl_b32 s13, {sKQ}, 13
    s_add_u32 s14, s14, s13
    s_add_u32 s14, s14, {H_OFF}
    v_lshl_add_u32 v{vH}, v1, 4, s14
    s_and_b32 s13, {ROT}, 3
    s_lshl_b32 s14, s13, 11
    v_xor_b32 v{vH}, s14, v{vH}
    s_lshl_b32 s13, s13, 6
    v_xor_b32 v{T+2}, v{T}, v{T+1}
    v_lshlrev_b32 v{T+2}, 4, v{T+2}
    v_lshl_add_u32 v{T+2}, v{T}, 8, v{T+2}
    s_lshl_b32 s12, {sKQ}, 15
    v_add_u32 v{VC}, s12, v{T+2}
    v_xor_b32 v{VC}, s13, v{VC}""")
    for q in range(1, 4): k(f"v_xor_b32 v{VC+q}, {64*q}, v{VC}")
    srd(k, 64, WS, 0x900000)
    for i in range(8): k(f"v_mov_b32 v{Y8+i}, 0")
    k(f"""s_lshl_b32 s12, {sRP}, 15
    s_lshl_b32 s13, {sKQ}, 11
    s_add_u32 s13, s13, s12
    v_lshl_add_u32 v{vRW}, v1, 4, s13
    s_lshl_b32 s13, {sKQ}, 13
    s_add_u32 s13, s13, s12
    v_lshl_add_u32 v{vRR}, v1, 4, s13
    v_mov_b32 v{T+7}, {LPR}""")
    L1, L2 = k.lab("RL"), k.lab("RL")
    FLS = f"s_mov_b64 exec, 1\nglobal_store_dwordx4 v2, v[4:7], {WS}{HST}"
    if LOC:
        L3 = k.lab("RL")
        FLS = f"""s_mov_b64 exec, 1
        s_cmp_lg_u32 s0, s1
        s_cbranch_scc1 {L3}
        global_store_dwordx4 v2, v[4:7], {WS}
        s_mov_b64 exec, -1
        s_branch {L2}
        {L3}:
        global_store_dwordx4 v2, v[4:7], {WS} sc1"""
    k(f"""s_cmp_lg_u32 {sRP}, 0
    s_cbranch_scc1 {L1}
    s_waitcnt vmcnt(6)
    {FLS}
    s_mov_b64 exec, -1
    s_branch {L2}
    {L1}:
    v_mov_b32 v{T+6}, 6
    s_waitcnt vmcnt({6 if opt("c4", 0) else 7})
    ds_write_b32 v2, v{T+6}""")
    prog_wait4(k, T + 7, T, 0, 7)
    k(f"{L2}:")
    stamp(k, 7)
    prog_wait4(k, T + 7, T, 16, 6)
    stamp(k, 8)
    def cf(ks, dt): return CF + 4 * (4 * ks + dt)
    gl = f"global_load_dword v{GL}, v{vF3}, {WS} sc1"
    L = k.lab("NP")
    k(f"s_cmp_lt_u32 {sW}, 6\ns_cbranch_scc1 {L}\n{gl}\n{L}:")
    for ks in range(8):
        for dt in range(4):
            k(f"ds_read_b128 {vr(cf(ks,dt),4)}, v{VC+(ks>>1)} offset:{(ks&1)*16384 + dt*4096}")
    k("s_waitcnt vmcnt(0)")
    for w in range(4):
        k(f"""v_lshlrev_b32 v{T}, 16, v{X2+w}
        v_and_b32 v{T+1}, 0xffff0000, v{X2+w}
        v_lshlrev_b32 v{T+2}, 16, v{AD+w}
        v_and_b32 v{T+3}, 0xffff0000, v{AD+w}
        v_lshlrev_b32 v{T+4}, 16, v{BD+w}
        v_and_b32 v{T+5}, 0xffff0000, v{BD+w}
        v_pk_mul_f32 {vr(T+2,2)}, {vr(T,2)}, {vr(T+2,2)}
        v_pk_mul_f32 {vr(T+4,2)}, {vr(T,2)}, {vr(T+4,2)}
        v_cvt_pk_bf16_f32 v{T+2}, v{T+2}, v{T+3}
        v_cvt_pk_bf16_f32 v{XB+w}, v{T+4}, v{T+5}
        v_lshlrev_b32 v{SA+2*w}, 16, v{T+2}
        v_and_b32 v{SA+2*w+1}, 0xffff0000, v{T+2}""")
    for q in range(4): k(f"v_xor_b32 v{X2+2*q}, {2048*q}, v{vH}\nv_xor_b32 v{X2+2*q+1}, {2048*q+32768}, v{vH}")
    L, D, D2 = k.lab("SP"), k.lab("SD"), k.lab("SD")
    k(f"""s_cmp_lt_u32 {sW}, 6
    s_cbranch_scc1 {D2}
    s_mov_b32 s11, {SPIN}
    {L}:
    s_waitcnt vmcnt(0)
    v_cmp_ne_u32 vcc, {sTAG}, v{GL}
    s_and_b64 exec, exec, vcc
    s_cbranch_scc0 {D}
    s_sub_u32 s11, s11, 1
    s_cmp_eq_u32 s11, 0
    s_cbranch_scc1 {D}
    {"s_sleep %d" % PSL if PSL else ""}
    {gl}
    s_branch {L}
    {D}:
    s_mov_b64 exec, -1
    s_cmp_eq_u32 {sW}, {PW}
    s_cbranch_scc1 {D2}""")
    for i in range(8):
        k(f"""s_mov_b32 m0, {LXT + i*1024}
        s_add_u32 s15, s68, {Y_OFF + i*32768}
        buffer_load_dwordx4 v{vF2b if i & 1 else vYb}, s[64:67], s15 offen sc1 lds""")
    k(f"""s_waitcnt vmcnt(0)
    {D2}:
    s_waitcnt lgkmcnt(0)
    s_setprio 0
    s_barrier""")
    vm.q = []
    def hl(ks):
        for rt in range(2):
            vm.op(f"global_load_dwordx4 {vr(HF+8*ks+4*rt,4)}, v{X2+2*(ks>>1)+rt}, {CRE if opt('hack', 0) == 3 else WS} offset:{(ks&1)*1024}{HSC}", f"h{ks}")
    hl(0)
    vm.op(f"global_load_dwordx2 {vr(GL,2)}, v{vF2}, {WS} sc1", "g")
    hl(1)
    for ks in range(2, 8): hl(ks)
    if opt("wb", 0) == 2:
        LW, LX2 = k.lab("WB"), k.lab("WB")
        k(f"""s_and_b32 s12, {sI}, {opt("wbm", 29)}
        s_or_b32 s12, s12, {sW}
        s_cmp_lg_u32 s12, 0
        s_cbranch_scc1 {LW}
        buffer_wbl2 sc1
        s_branch {LX2}
        {LW}:
        s_mov_b64 exec, 1""")
        vm.op(f"global_load_dword v0, v{vF2}, {WS}", "wb")
        k(f"s_mov_b64 exec, -1\n{LX2}:")
    stamp(k, 9)
    for i in range(8): k(f"ds_read_u16_d16_hi v{Y8+i}, v{vYF} offset:{(16*(i>>2) + (i&3))*128}")
    def prepG():
        k(f"""v_and_b32 v2, 2, v1
        s_waitcnt lgkmcnt(0)
        v_cmp_eq_u32 vcc, 0, v2
        v_cndmask_b32 v{vG}, v{GL+1}, v{GL}, vcc
        v_sub_f32 v2, 1.0, v{vG}
        v_cvt_pk_bf16_f32 v2, v2, v2
        v_and_b32 v2, 0xffff0000, v2""")
    def prepB(w):
        k(f"""v_lshlrev_b32 v4, 16, v{XB+w}
        v_and_b32 v5, 0xffff0000, v{XB+w}
        v_pk_add_f32 v[4:5], v[4:5], {vr(Y8+2*w,2)}
        v_cvt_pk_bf16_f32 v4, v4, v5
        v_and_b32 v5, 0xffff0000, v4
        v_lshlrev_b32 v4, 16, v4
        v_mul_f32 v4, v2, v4
        v_mul_f32 v5, v2, v5
        v_cvt_pk_bf16_f32 v4, v4, v5
        v_lshlrev_b32 v{Y8+2*w}, 16, v4
        v_and_b32 v{Y8+2*w+1}, 0xffff0000, v4""")
    for ks in range(8):
        vm.wait(f"h{ks}")
        for dt in range(4):
            for rt in range(2):
                a = ACC + 16 * rt + 4 * dt
                k(f"v_mfma_f32_16x16x32_bf16 {vr(a,4)}, {vr(cf(ks,dt),4)}, {vr(HF+8*ks+4*rt,4)}, {'0' if ks == 0 else vr(a,4)}")
        if ks == 7 and opt("wb", 0) == 1:
            LW = k.lab("WB")
            k(f"""s_and_b32 s12, {sI}, {opt("wbm", 29)}
            s_or_b32 s12, s12, {sW}
            s_cmp_lg_u32 s12, 0
            s_cbranch_scc1 {LW}
            buffer_wbl2 sc1
            {LW}:""")
        if ks == 1: prepG()
        if 2 <= ks < 6: prepB(ks - 2)
    stamp(k, 10)
    U = HF; TBv = HF + 32
    for dst in range(4):
        for e in range(2):
            a = ACC + 16 * (dst & 1) + 4 * (2 * (dst >> 1) + e)
            k(f"ds_write_b128 v{vRW}, {vr(a,4)} offset:{dst*8192 + e*1024}")
    k("s_waitcnt lgkmcnt(0)\ns_barrier")
    for src in range(4):
        for e in range(2):
            k(f"ds_read_b128 {vr(U+8*src+4*e,4)}, v{vRR} offset:{src*2048 + e*1024}")
    for src in range(4):
        k(f"s_waitcnt lgkmcnt({6-2*src})")
        for i in range(4): k(f"v_pk_add_f32 {vr(SA+2*i,2)}, {vr(SA+2*i,2)}, {vr(U+8*src+2*i,2)}")
    for e in range(2):
        for i in range(4*e, 4*e + 4): k(f"v_fma_f32 v{TBv+i}, v{vG}, v{SA+i}, v{Y8+i}")
        k(f"global_store_dwordx4 v{vO}, {vr(TBv+4*e,4)}, {OUTP} offset:{64*e}{OST}")
    stamp(k, 11)
    stamps_out(k)

import re
def unpk(L):
    o = []; on = False
    for l in L:
        t = l.strip()
        if t.startswith("; REG"):
            on = t.split()[2] in UNPK; continue
        m = re.match(r"v_pk_(fma|mul|add)_f32 (.*)", t)
        if not (m and on): o.append(l); continue
        op = m.group(1); rest = m.group(2)
        regs = [int(x) for x in re.findall(r"v\[(\d+):\d+\]", rest)]
        n = len(regs) - 1
        assert n == (3 if op == "fma" else 2), t
        def mod(name, dflt):
            mm = re.search(name + r":\[([\d,]+)\]", rest)
            return [int(x) for x in mm.group(1).split(",")] if mm else [dflt] * n
        sl, shi, nl, nh = mod("op_sel", 0), mod("op_sel_hi", 1), mod("neg_lo", 0), mod("neg_hi", 0)
        d = regs[0]; two = []
        for dd, se, ng in ((d, sl, nl), (d + 1, shi, nh)):
            src = [regs[1 + i] + se[i] for i in range(n)]
            if op == "fma" and src[2] == dd and not any(ng): ins = f"v_fmac_f32 v{dd}, v{src[0]}, v{src[1]}"
            else: ins = f"v_{op}_f32 v{dd}, " + ", ".join(("-" if ng[i] else "") + f"v{src[i]}" for i in range(n))
            two.append((ins, src))
        if d in two[1][1]:
            assert d + 1 not in two[0][1], t
            two.reverse()
        o += ["    " + x[0] for x in two]
    return o
UNPK = opt_s("unpk", "")
def finish(k):
    k(f"{k.label}_END:")
    k.L = unpk(k.L)
    k.L, n = haz.fix(k.L)
    print(k.label, "nops added", n, "vgpr", k.vgpr, "lines", len(k.L))

YF = opt("yf", 12)
HSC = " sc1" if opt("hsc", 0) else ""
PSL = opt("psl", 0)
PW = opt("pw", 7)
ROT = {0: "0", 1: sDT, 2: sW}[opt("rot", 1)]
k1 = K(NAME + "_kernel", 256, 512, LDS_TOTAL)
prologue(k1)
lds_zero_and_nonce(k1)
k1(f"s_cmp_ge_u32 {sW}, 4\ns_cbranch_scc1 {k1.label}_S4")
h5 = s5(k1)
k1(f"{k1.label}_S4:\n; REG E")
h4 = s4(k1)
print(h5, h4)
k1(f"{k1.label}_P2:\n; REG F")
phase2(k1)
finish(k1)
emit([k1], OUT, single=True)
```
